```python
import torch

def _softmax(x, axis=-1):
    return torch.softmax(x, dim=axis)
def _gelu(x):
    return torch.nn.functional.gelu(x, approximate="tanh")
def _silu(x):
    return torch.nn.functional.silu(x)
def _sigmoid(x):
    return torch.sigmoid(x)
def _layernorm(x, axis=-1, eps=1e-5):
    m = x.mean(dim=axis, keepdim=True)
    v = x.var(dim=axis, keepdim=True, unbiased=False)
    return (x - m) / torch.sqrt(v + eps)
def _scatter_add(tgt, idx, src, axis=0):
    return tgt.clone().index_add_(axis, idx, src)
def _segment_sum(src, seg, n):
    out = torch.zeros((n,) + src.shape[1:], dtype=src.dtype)
    return out.index_add_(0, seg, src)
def _pad(x, pw):
    flat = tuple(v for pair in reversed(pw) for v in pair)
    return torch.nn.functional.pad(x, flat)

kernel_name = 'gated_mix__compressed_kv_cla__dense_activation_silu__decode'

def setup_inputs():

    _w = (lambda a: (lambda t: t.to(torch.bfloat16) if t.is_floating_point() else t)(torch.as_tensor(a)))
    def _A_setup():
        B, H, Sq, Sk, D, M = 1, 32, 1, 4096, 128, 640
        Dc = 4 * D
        return {
            "x": _w((lambda *s: torch.randn(*s, dtype=torch.bfloat16) * 0.05)(B, Sq, M)),
            "c_kv": _w((lambda *s: torch.randn(*s, dtype=torch.bfloat16) * 0.2)(B, Sk, Dc)),
            "w_q": _w((lambda *s: torch.randn(*s, dtype=torch.bfloat16) * 3.2)(M, H, D) * (M ** -0.5)),
            "w_uk": _w((lambda *s: torch.randn(*s, dtype=torch.bfloat16) * 3.2)(Dc, H, D) * (Dc ** -0.5)),
            "w_uv": _w((lambda *s: torch.randn(*s, dtype=torch.bfloat16) * 0.2)(Dc, H, D) * (Dc ** -0.5)),
            "w_o": _w((lambda *s: torch.randn(*s, dtype=torch.bfloat16) * 0.2)(H, D, M) * ((H * D) ** -0.5)),
        }
    _A_in = _A_setup()

    def _B_setup():
        B, S, D, F = 1, 1, 640, 1728
        return {
            "x": _w((lambda *s: torch.randn(*s, dtype=torch.bfloat16) * 0.05)(B, S, D)),
            "w1": _w((lambda *s: torch.randn(*s, dtype=torch.bfloat16) * 0.05)(D, F) * (D ** -0.5)),
            "w2": _w((lambda *s: torch.randn(*s, dtype=torch.bfloat16) * 0.05)(F, D) * (F ** -0.5)),
        }
    _B_in = _B_setup()

    return {
        "A_x": _A_in["x"],
        "A_c_kv": _A_in["c_kv"],
        "A_w_q": _A_in["w_q"],
        "A_w_uk": _A_in["w_uk"],
        "A_w_uv": _A_in["w_uv"],
        "A_w_o": _A_in["w_o"],
        "B_x": _B_in["x"],
        "B_w1": _B_in["w1"],
        "B_w2": _B_in["w2"],
        "gate_w": _w((lambda *s: torch.randn(*s, dtype=torch.bfloat16) * 0.05)(640) * 16.0),
    }

def reference(A_x, A_c_kv, A_w_q, A_w_uk, A_w_uv, A_w_o, B_x, B_w1, B_w2, gate_w):
    def _A_ref(x, c_kv, w_q, w_uk, w_uv, w_o):
        B, Sq, M = x.shape[0], x.shape[1], x.shape[2]
        Sk = c_kv.shape[1]
        H, D = w_q.shape[1], w_q.shape[2]
        q = torch.einsum("bqm,mhd->bhqd", x, w_q)
        k = torch.einsum("bkc,chd->bhkd", c_kv, w_uk)
        v = torch.einsum("bkc,chd->bhkd", c_kv, w_uv)
        scores = torch.einsum("bhqd,bhkd->bhqk", q, k) * (D ** -0.5)
        off = Sk - Sq
        qi = torch.arange(Sq)[:, None]
        kj = torch.arange(Sk)[None, :]
        cmask = kj <= (qi + off)
        scores = torch.where(cmask[None, None], scores, -1e9)
        p = _softmax(scores, axis=-1)
        ctx = torch.einsum("bhqk,bhkd->bhqd", p, v)
        return torch.einsum("bhqd,hdm->bqm", ctx, w_o)

    def _B_ref(x, w1, w2):
        h = torch.einsum("bsd,df->bsf", x, w1)
        h = _silu(h)
        out = torch.einsum("bsf,fd->bsd", h, w2)
        return out

    x = A_x
    g = _sigmoid((x * gate_w).sum(-1, keepdims=True))
    a = _A_ref(x, A_c_kv, A_w_q, A_w_uk, A_w_uv, A_w_o)
    b = _B_ref(x, B_w1, B_w2)
    return g * a + (1 - g) * b
```

```python
NAME = "gated_mix__compressed_kv_cla__dense_activation_silu__decode"
STAMP_OFF = 128 << 20
SZ = dict(x=1280, ckv=4194304, wq=5242880, wuk=4194304, wuv=4194304, wo=5242880, bx=1280, w1=2211840, w2=2211840, gw=1280, out=1280, dbg=256, ws=268435456)
KOFF = dict(x=0, ckv=8, wq=16, wuk=24, wuv=32, wo=40, bx=48, w1=56, w2=64, gw=72, out=80, dbg=88, ws=96)

class Asm:
    def __init__(self):
        self.lines = []
        self.nlab = 0
    def __call__(self, s):
        for l in s.split("\n"):
            l = l.strip()
            if l: self.lines.append(("" if l.endswith(":") else "    ") + l)
    def label(self, base="L"):
        self.nlab += 1
        return f"{base}_{self.nlab}"
    def text(self):
        return "\n".join(self.lines) + "\n"

def header(launch_lines):
    ref = open("cdna_kernels/" + NAME + ".s.ref").read().split("\n")
    hdr = [l for l in ref if l.startswith(";") and "@launch" not in l]
    return "\n".join(hdr) + "\n" + "\n".join(launch_lines) + "\n" + '.amdgcn_target "amdgcn-amd-amdhsa--gfx950"\n.text\n'

def kernel_begin(label):
    return f".globl {label}\n.p2align 8\n.type {label},@function\n{label}:\n"

def descriptor(label, vgpr, sgpr, accum):
    return f""".amdhsa_kernel {label}
  .amdhsa_next_free_vgpr {vgpr}
  .amdhsa_next_free_sgpr {sgpr}
  .amdhsa_accum_offset {accum}
  .amdhsa_group_segment_fixed_size 0
  .amdhsa_kernarg_size 104
  .amdhsa_user_sgpr_count 2
  .amdhsa_user_sgpr_kernarg_segment_ptr 1
  .amdhsa_system_sgpr_workgroup_id_x 1
  .amdhsa_float_denorm_mode_32 3
  .amdhsa_float_denorm_mode_16_64 3
.end_amdhsa_kernel
"""

def single(body, grid, block, lds, vgpr=256, sgpr=102, accum=256):
    lab = NAME + "_kernel"
    return (header([f"; @launch grid=({grid},1,1) block=({block},1,1) lds={lds}"]) + kernel_begin(lab) + body +
            '.section .rodata,"a"\n.p2align 6\n' + descriptor(lab, vgpr, sgpr, accum))
```

```python
import re
TRANS = ("v_exp_f32", "v_log_f32", "v_rcp_f32", "v_rsq_f32", "v_sqrt_f32", "v_sin_f32", "v_cos_f32")
def regs(tok):
    tok = tok.strip().lstrip("-")
    if tok.startswith("abs(") or tok.startswith("|"): tok = tok.strip("|").replace("abs(", "").rstrip(")")
    m = re.fullmatch(r"([vsa])\[(\d+):(\d+)\]", tok)
    if m: return {(m.group(1), i) for i in range(int(m.group(2)), int(m.group(3)) + 1)}
    m = re.fullmatch(r"([vsa])(\d+)", tok)
    if m: return {(m.group(1), int(m.group(2)))}
    if tok == "vcc": return {("s", 106), ("s", 107)}
    if tok == "exec": return {("s", 126), ("s", 127)}
    if tok == "m0": return {("s", 124)}
    return set()
def parse(line):
    s = line.split(";")[0].strip()
    if not s or s.endswith(":") or s.startswith("."): return None
    p = s.split(None, 1)
    mn = p[0]; rest = p[1] if len(p) > 1 else ""
    ops = []
    depth = 0; cur = ""
    for ch in rest:
        if ch == "[": depth += 1
        if ch == "]": depth -= 1
        if ch == "," and depth == 0: ops.append(cur.strip()); cur = ""
        else: cur += ch
    if cur.strip(): ops.append(cur.strip())
    mods = ""
    if ops:
        q = ops[-1].split(None, 1)
        ops[-1] = q[0]
        if len(q) > 1: mods = q[1]
    I = dict(mn=mn, ops=ops, mods=mods, w=set(), r=set(), kind="other", A=set(), B=set(), C=set(), data=set())
    R = [regs(o) for o in ops]
    U = lambda L: set().union(*L) if L else set()
    if mn.startswith("v_mfma"):
        I["kind"] = "mfma"; I["w"] = R[0]; I["A"] = R[1]; I["B"] = R[2]; I["C"] = R[3]; I["r"] = U(R[1:])
        I["passes"] = 8 if "32x32" in mn or "16x16x4_f32" in mn else 4
    elif mn.startswith("v_"):
        I["kind"] = "valu"
        if mn.startswith("v_permlane"): I["w"] = U(R); I["r"] = U(R); I["perm"] = True
        else:
            I["w"] = R[0]; I["r"] = U(R[1:])
            if mn.startswith(("v_fmac", "v_dot2c", "v_writelane")): I["r"] |= R[0]
            if "_dpp" in mn or "quad_perm" in mods or "row_" in mods: I["dpp"] = True; I["r"] |= R[0]
            if mn.startswith(("v_add_co", "v_addc_co", "v_sub_co")): I["w"] |= R[1]; I["r"] = U(R[2:])
            if mn.startswith("v_cndmask") and len(ops) == 3: I["r"] |= regs("vcc")
        if mn.replace("_e32", "").replace("_e64", "") in TRANS: I["trans"] = True
        if mn.startswith("v_dot2"): I["dot"] = True; I["C"] = R[3] if len(R) > 3 else R[0]
        if mn.startswith(("v_readlane", "v_readfirstlane")): I["rdl"] = True
    elif mn.startswith(("buffer_", "global_", "flat_")):
        I["kind"] = "vmem"
        lds = " lds" in (" " + mods) or "_lds_" in mn
        if lds: I["r"] = U(R) | regs("m0"); I["dma"] = True
        elif "load" in mn: I["w"] = R[0]; I["r"] = U(R[1:])
        elif "atomic" in mn and "sc0" in mods: I["w"] = R[0]; I["r"] = U(R[1:])
        else:
            I["r"] = U(R)
            if mn.endswith(("x3", "x4")): I["data"] = R[0] if mn.startswith("buffer") else R[1]
    elif mn.startswith("ds_"):
        I["kind"] = "ds"
        if "read" in mn or "permute" in mn or "swizzle" in mn or "rtn" in mn: I["w"] = R[0]; I["r"] = U(R[1:])
        else: I["r"] = U(R)
    elif mn.startswith("s_"):
        I["kind"] = "salu"
        if mn.startswith(("s_cmp", "s_cbranch", "s_branch", "s_waitcnt", "s_barrier", "s_nop", "s_endpgm", "s_sleep", "s_setprio", "s_bitcmp")): I["r"] = U(R)
        else: I["w"] = R[0] if R else set(); I["r"] = U(R[1:])
    return I
def need(P, C):
    n = 0
    vw = {x for x in P["w"] if x[0] in "va"}; sw = {x for x in P["w"] if x[0] == "s"}
    if P["kind"] == "valu":
        if C["kind"] == "mfma" and vw & C["r"]: n = max(n, 2)
        if C["kind"] == "valu":
            if C.get("dpp") and vw & C["r"]: n = max(n, 2)
            if C.get("perm") and vw & C["r"]: n = max(n, 2)
            if C.get("rdl") and vw & C["r"]: n = max(n, 1)
            if P.get("trans") and vw & C["r"]: n = max(n, 1)
            if sw & C["r"]: n = max(n, 4 if C.get("rdl") or C["mn"].startswith("v_writelane") else 2)
        if C["kind"] == "vmem" and sw & C["r"]: n = max(n, 5)
        if P.get("dot"):
            if C.get("dot") and C["mn"] == P["mn"]:
                if vw & (C["r"] - C["C"]): n = max(n, 3)
            elif vw & (C["r"] | C["w"]): n = max(n, 3)
    if P["kind"] == "mfma":
        p = P["passes"]
        if C["kind"] == "mfma":
            if vw & (C["A"] | C["B"]): n = max(n, {4: 8, 8: 12}[p])
            if vw & C["C"] and not (vw == C["C"] and C["passes"] == p): n = max(n, {4: 6, 8: 10}[p])
            if vw & C["w"] and not vw & C["C"]: n = max(n, {4: 8, 8: 12}[p])
        elif C["kind"] in ("valu", "vmem", "ds"):
            if vw & (C["r"] | C["w"]): n = max(n, {4: 8, 8: 12}[p])
            if C["kind"] == "valu" and P["C"] & C["w"]: n = max(n, {4: 3, 8: 7}[p])
    if P["kind"] == "salu" and ("s", 124) in P["w"] and C.get("dma"): n = max(n, 1)
    if P["kind"] == "vmem" and P["data"] and C["kind"] in ("valu", "mfma") and P["data"] & C["w"]: n = max(n, 2)
    return n
def fix(lines):
    out = []; hist = []
    nins = 0
    for line in lines:
        I = parse(line)
        if I is None:
            out.append(line); continue
        req = 0
        for P, d in hist:
            k = need(P, I)
            if k > d: req = max(req, k - d)
        if req:
            out.append(f"    s_nop {req-1}"); nins += 1
            hist = [(P, d + req) for P, d in hist]
        out.append(line)
        adv = 1
        if I["mn"] == "s_nop": adv = int(I["ops"][0]) + 1
        hist = [(P, d + adv) for P, d in hist if d + adv < 20]
        hist.append((I, 0))
    return out
```

```python
import sys, math, struct
from genlib import *
import hazard

def f2u(x): return struct.unpack("<I", struct.pack("<f", x))[0]

QA_OFF, ML_OFF, PC_OFF, PB_OFF = 0x0, 0x10000, 0x20000, 0x100000
SPIN = 200000

def build(DEV=False, NT=True, opts=None):
    o = dict(ckv_early=False)
    o.update(opts or {})
    a = Asm()
    nt = " nt" if NT else ""
    NST = 10
    def stamp(i):
        if DEV: a(f"s_memrealtime s[{80+2*i}:{81+2*i}]")
    class VA:
        def __init__(s, start): s.n = start
        def __call__(s, k=1, al=1):
            s.n = (s.n + al - 1) // al * al
            r = s.n; s.n += k
            assert s.n <= 256
            return r
    def vr(b, k): return f"v[{b}:{b+k-1}]"
    def srd(dst, src, size):
        a(f"s_mov_b32 s{dst}, s{src}\ns_mov_b32 s{dst+1}, s{src+1}\ns_mov_b32 s{dst+2}, {size}\ns_mov_b32 s{dst+3}, 0x20000")
    def setexec(mask):
        if mask == -1: a("s_mov_b64 exec, -1")
        else: a(f"s_mov_b32 exec_lo, {hex(mask & 0xffffffff)}\ns_mov_b32 exec_hi, {hex(mask >> 32)}")
    def sflag_wait(off_expr_sreg, target, tmp=12):
        L = a.label("L_sf"); E = a.label("L_sfe")
        a(f"""
        s_mov_b32 s13, 0
        {L}:
        s_load_dword s{tmp}, s[38:39], {off_expr_sreg} glc
        s_add_u32 s13, s13, 1
        s_cmp_gt_u32 s13, {SPIN}
        s_cbranch_scc1 {E}
        s_waitcnt lgkmcnt(0)
        s_cmp_lg_u32 s{tmp}, {target}
        s_cbranch_scc1 {L}
        {E}:
        s_waitcnt lgkmcnt(0)
        """)
    def maxtree(dst, rs):
        rs = list(rs)
        a(f"v_max3_u32 v{dst}, v{rs[0]}, v{rs[1]}, v{rs[2]}")
        rs = rs[3:]
        while len(rs) >= 2:
            a(f"v_max3_u32 v{dst}, v{dst}, v{rs[0]}, v{rs[1]}"); rs = rs[2:]
        if rs: a(f"v_max_u32 v{dst}, v{dst}, v{rs[0]}")

    if DEV:
        for i in range(1, NST): a(f"s_mov_b32 s{80+2*i}, 0")
    stamp(0)
    a(f"""
    s_cmp_ge_u32 s2, 256
    s_cbranch_scc1 L_end
    s_load_dwordx16 s[16:31], s[0:1], 0
    s_load_dwordx8 s[32:39], s[0:1], 64
    s_load_dwordx2 s[40:41], s[0:1], 96
    v_lshrrev_b32 v1, 6, v0
    v_and_b32 v0, 63, v0
    v_readfirstlane_b32 s3, v1
    s_and_b32 s4, s2, 7
    s_lshr_b32 s5, s2, 3
    v_lshrrev_b32 v1, 3, v0
    v_and_b32 v2, 7, v0
    v_and_b32 v3, 15, v0
    v_lshrrev_b32 v4, 4, v0
    s_cmp_ge_u32 s5, 16
    s_cbranch_scc1 L_roleA
    """)
    vL, vS, vE, vN, vG = 0, 1, 2, 3, 4
    V = VA(5)
    t0, t1, t2, t3 = V(1, 2), V(), V(), V()
    vXo, vWo, vKo = V(), V(), V()
    xd = V(5, 2)
    msk = V(4); selE = V(4); selO = V(4)
    Y = V(40, 2); WQ = V(40, 2); WK = V(16, 2)
    Dq = V(4, 2); qf = V(8, 2); qp = V(4, 2); acc = V(4, 2)
    o10 = V(5); xf = V(10, 2); gx = V(5, 2); gg = V(5, 2)
    OUT = V(20, 2)
    AUV = WQ + 8; AO = V(20, 2); ml = V(2, 2); YW = Y + 20; PBR = WQ + 24
    vScale = V()
    QS, HS, CT, GT, MLS, CC, W1L, W2L, WUVL, WOL = 0, 256, 320, 512, 1024, 2048, 4096, 24576, 45056, 77824
    a(f"""
    s_lshr_b32 s6, s5, 2
    s_lshl_b32 s6, s6, 3
    s_add_u32 s6, s6, s4              ; h
    s_and_b32 s7, s5, 3               ; sub
    v_mul_u32_u24 v{vXo}, 20, v{vS}
    s_mul_i32 s8, s3, 160
    v_add_u32 v{vXo}, s8, v{vXo}
    v_mul_u32_u24 v{vWo}, 81920, v{vS}
    v_lshl_add_u32 v{vWo}, v{vE}, 4, v{vWo}
    v_lshlrev_b32 v{vKo}, 15, v{vS}
    v_lshl_add_u32 v{vKo}, v{vE}, 4, v{vKo}
    s_and_b32 s9, s7, 1
    s_lshl_b32 s9, s9, 7
    s_lshl_b32 s10, s6, 8
    s_add_u32 s9, s9, s10             ; h*256 + dh*128
    s_mul_i32 s8, s3, 655360
    s_add_u32 s8, s8, s9
    s_lshr_b32 s10, s7, 1
    s_lshl_b32 s10, s10, 21
    s_lshl_b32 s11, s3, 18
    s_add_u32 s10, s10, s11
    s_add_u32 s10, s10, s9
    s_waitcnt lgkmcnt(0)
    global_load_dwordx4 {vr(xd,4)}, v{vXo}, s[16:17]
    global_load_dword v{xd+4}, v{vXo}, s[16:17] offset:16
    """)
    srd(44, 20, SZ['wq'])
    NQ1 = 7
    for u in range(NQ1):
        a(f"buffer_load_dwordx4 {vr(WQ+4*u,4)}, v{vWo}, s[44:47], s8 offen{nt}\ns_add_u32 s8, s8, 8192")
    srd(48, 22, SZ['wuk']); srd(52, 24, SZ['wuv']); srd(56, 26, SZ['wo']); srd(60, 30, SZ['w1']); srd(64, 32, SZ['w2'])
    a(f"""
    v_mov_b32 v{t0}, 0
    v_mov_b32 v{t1}, 0
    v_lshlrev_b32 v{t2}, 3, v{vL}
    s_cmp_lg_u32 s3, 0
    s_cbranch_scc1 L_noz
    ds_write_b64 v{t2}, v[{t0}:{t1}]
    L_noz:
    v_and_b32 v{t0}, 1, v{vL}
    v_lshlrev_b32 v{t0}, 4, v{t0}
    v_mov_b32 v{t1}, 0xffff
    v_lshlrev_b32 v{t0}, v{t0}, v{t1}
    v_lshrrev_b32 v{t1}, 1, v{vE}
    v_mov_b32 v{t2}, 0x0c0c0c0c
    s_mov_b32 s12, 0x01000100
    s_mov_b32 s13, 0x03020302
    """)
    for r in range(4):
        a(f"v_cmp_eq_u32 vcc, {r}, v{t1}\nv_cndmask_b32 v{msk+r}, 0, v{t0}, vcc")
    for r in range(4):
        a(f"v_bfi_b32 v{selE+r}, v{msk+r}, s12, v{t2}\nv_bfi_b32 v{selO+r}, v{msk+r}, s13, v{t2}")
    a(f"s_waitcnt vmcnt({NQ1})")
    stamp(1)
    for u in range(10):
        for r in range(4):
            a(f"v_perm_b32 v{Y+4*u+r}, v{xd+u//2}, v{xd+u//2}, v{(selO if u & 1 else selE)+r}")
    for u in range(NQ1, 10):
        a(f"buffer_load_dwordx4 {vr(WQ+4*u,4)}, v{vWo}, s[44:47], s8 offen{nt}\ns_add_u32 s8, s8, 8192")
    for u in range(4):
        a(f"buffer_load_dwordx4 {vr(WK+4*u,4)}, v{vKo}, s[48:51], s10 offen{nt}\ns_add_u32 s10, s10, 8192")
    a(f"s_mov_b32 s12, 6554")
    for j in range(5):
        a(f"""
        v_add_u32 v{t0}, {64*j}, v{vL}
        v_mul_u32_u24 v{t1}, s12, v{t0}
        v_lshrrev_b32 v{t1}, 16, v{t1}
        v_mul_u32_u24 v{t2}, 1120, v{t1}
        v_lshl_add_u32 v{o10+j}, v{t0}, 4, v{t2}
        """)
    for u in range(NQ1):
        a(f"s_waitcnt vmcnt({13-u})")
        a(f"v_mfma_f32_16x16x32_bf16 {vr(Dq,4)}, {vr(Y+4*u,4)}, {vr(WQ+4*u,4)}, {'0' if u == 0 else vr(Dq,4)}")
    a("s_waitcnt lgkmcnt(0)\ns_barrier")
    a("s_cmp_lg_u32 s3, 0\ns_cbranch_scc1 L_nofq\ns_lshr_b32 s14, s6, 3\ns_lshl_b32 s14, s14, 2")
    sflag_wait("s14", 1)
    a("L_nofq:")
    def p_tail(nb1):
        for u in range(NQ1, 10):
            a(f"s_waitcnt vmcnt({13-u+nb1})")
            a(f"v_mfma_f32_16x16x32_bf16 {vr(Dq,4)}, {vr(Y+4*u,4)}, {vr(WQ+4*u,4)}, {vr(Dq,4)}")
    a(f"""
    s_cmp_ge_u32 s6, 27
    s_cbranch_scc1 L_nob1
    s_lshl_b32 s11, s6, 7
    s_lshl_b32 s12, s7, 5
    s_add_u32 s11, s11, s12           ; f0*2
    s_mul_i32 s12, s3, {80*3456}
    s_add_u32 s12, s12, s11           ; w1 soffset
    v_lshrrev_b32 v{t0}, 1, v{vL}
    v_mul_u32_u24 v{t0}, 3456, v{t0}
    v_and_b32 v{t1}, 1, v{vL}
    v_lshl_add_u32 v{t0}, v{t1}, 4, v{t0}
    s_mul_i32 s13, s3, 2560
    s_add_u32 s14, s13, {W1L}
    s_mov_b32 m0, s14
    s_add_u32 s14, s14, 1024
    buffer_load_dwordx4 v{t0}, s[60:63], s12 offen{nt} lds
    s_mov_b32 m0, s14
    s_add_u32 s12, s12, {32*3456}
    s_add_u32 s14, s14, 1024
    buffer_load_dwordx4 v{t0}, s[60:63], s12 offen{nt} lds
    s_mov_b32 m0, s14
    s_add_u32 s12, s12, {32*3456}
    s_mov_b32 exec_hi, 0
    buffer_load_dwordx4 v{t0}, s[60:63], s12 offen{nt} lds
    s_mov_b32 exec_hi, -1
    s_mul_i32 s12, s11, 640           ; f0*1280
    s_mul_i32 s15, s3, 160
    s_add_u32 s12, s12, s15
    s_add_u32 s14, s13, {W2L}
    s_mov_b32 m0, s14
    s_add_u32 s14, s14, 1024
    buffer_load_dwordx4 v{o10}, s[64:67], s12 offen{nt} lds
    s_mov_b32 m0, s14
    s_add_u32 s14, s14, 1024
    buffer_load_dwordx4 v{o10+1}, s[64:67], s12 offen{nt} lds
    s_mov_b32 m0, s14
    s_mov_b32 exec_hi, 0
    buffer_load_dwordx4 v{o10+2}, s[64:67], s12 offen{nt} lds
    s_mov_b32 exec_hi, -1
    """)
    p_tail(6)
    a("s_mov_b32 s15, 6\ns_branch L_b1done\nL_nob1:")
    p_tail(0)
    a("s_waitcnt vmcnt(0)\nL_b1done:")
    stamp(2)
    a(f"""
    v_and_b32 v{t0}, 1, v{vG}
    v_lshlrev_b32 v{t0}, 4, v{t0}
    v_lshl_add_u32 v{t0}, v{vE}, 5, v{t0}
    v_lshlrev_b32 v{t1}, 5, v{vE}
    """)
    setexec(0xFF00FF0000FF00FF)
    for r in range(4): a(f"ds_add_f32 v{t0}, v{Dq+r} offset:{QS+4*r}")
    setexec(-1)
    a(f"""
    s_waitcnt lgkmcnt(0)
    s_barrier
    ds_read_b128 {vr(qf,4)}, v{t1} offset:{QS}
    ds_read_b128 {vr(qf+4,4)}, v{t1} offset:{QS+16}
    s_lshr_b32 s12, s6, 3
    s_lshl_b32 s12, s12, 14
    s_and_b32 s13, s6, 7
    s_lshl_b32 s13, s13, 11
    s_add_u32 s12, s12, s13
    s_and_b32 s13, s7, 1
    s_lshl_b32 s13, s13, 10
    s_add_u32 s12, s12, s13
    s_lshr_b32 s13, s7, 1
    s_lshl_b32 s13, s13, 9
    s_add_u32 s12, s12, s13
    s_lshl_b32 s13, s3, 6
    s_add_u32 s12, s12, s13
    v_lshl_add_u32 v{t2}, v{vS}, 3, s12
    s_mov_b32 s12, {hex(f2u(128**-0.5 * math.log2(math.e)))}
    s_waitcnt lgkmcnt(0)
    """)
    for r in range(4): a(f"v_cvt_pk_bf16_f32 v{qp+r}, v{qf+2*r}, v{qf+2*r+1}")
    a("s_waitcnt vmcnt(6)")
    for r in range(4):
        for u in range(4):
            a(f"v_dot2_f32_bf16 v{acc+u}, v{WK+4*u+r}, v{qp+r}, {'0' if r == 0 else 'v%d' % (acc+u)}")
    for d in ("quad_perm:[1,0,3,2]", "quad_perm:[2,3,0,1]", "row_half_mirror"):
        for u in range(4): a(f"v_add_f32_dpp v{acc+u}, v{acc+u}, v{acc+u} {d} row_mask:0xf bank_mask:0xf")
    for u in range(4): a(f"v_mul_f32 v{acc+u}, s12, v{acc+u}")
    a(f"v_cvt_pk_bf16_f32 v{acc}, v{acc}, v{acc+1}\nv_cvt_pk_bf16_f32 v{acc+1}, v{acc+2}, v{acc+3}")
    setexec(0x0101010101010101)
    a(f"global_store_dwordx2 v{t2}, {vr(acc,2)}, s[40:41] offset:{QA_OFF} sc1")
    setexec(-1)
    stamp(3)
    a(f"""
    v_mul_u32_u24 v{t0}, 40, v{vG}
    s_mul_i32 s12, s3, 160
    v_add_u32 v{t0}, s12, v{t0}
    v_mul_u32_u24 v{t1}, 20, v{vL}
    global_load_dwordx4 {vr(xf,4)}, v{t0}, s[16:17]
    global_load_dwordx4 {vr(xf+4,4)}, v{t0}, s[16:17] offset:16
    global_load_dwordx2 {vr(xf+8,2)}, v{t0}, s[16:17] offset:32
    s_cmp_lg_u32 s3, 7
    s_cbranch_scc1 L_nog1
    global_load_dwordx4 {vr(gx,4)}, v{t1}, s[16:17]
    global_load_dword v{gx+4}, v{t1}, s[16:17] offset:16
    global_load_dwordx4 {vr(gg,4)}, v{t1}, s[34:35]
    global_load_dword v{gg+4}, v{t1}, s[34:35] offset:16
    L_nog1:
    v_lshrrev_b32 v{t0}, 2, v{vL}
    v_lshlrev_b32 v{t0}, 13, v{t0}
    v_and_b32 v{t1}, 3, v{vL}
    v_lshl_add_u32 v{t0}, v{t1}, 4, v{t0}
    s_lshl_b32 s12, s3, 19
    s_lshl_b32 s13, s6, 8
    s_add_u32 s12, s12, s13
    s_lshl_b32 s13, s7, 6
    s_add_u32 s12, s12, s13
    s_lshl_b32 s14, s3, 12
    s_add_u32 s14, s14, {WUVL}
    """)
    for j in range(4):
        a(f"s_mov_b32 m0, s14\ns_add_u32 s14, s14, 1024\nbuffer_load_dwordx4 v{t0}, s[52:55], s12 offen{nt} lds\ns_add_u32 s12, s12, {16*8192}")
    a(f"""
    s_lshl_b32 s12, s6, 2
    s_add_u32 s12, s12, s7
    s_mul_i32 s12, s12, {32*1280}
    s_mul_i32 s13, s3, 160
    s_add_u32 s12, s12, s13
    s_mul_i32 s14, s3, 5120
    s_add_u32 s14, s14, {WOL}
    """)
    for j in range(5):
        a(f"s_mov_b32 m0, s14\ns_add_u32 s14, s14, 1024\nbuffer_load_dwordx4 v{o10+j}, s[56:59], s12 offen{nt} lds")
    for i in range(20): a(f"v_mov_b32 v{OUT+i}, 0")
    a("s_waitcnt vmcnt(9)")
    a(f"s_cmp_lg_u32 s3, 7\ns_cbranch_scc1 L_nog2\nv_mov_b32 v{t3}, 0")
    for i in range(5):
        a(f"""
        v_lshlrev_b32 v{t0}, 16, v{gx+i}
        v_lshlrev_b32 v{t1}, 16, v{gg+i}
        v_mul_f32 v{t0}, v{t0}, v{t1}
        v_and_b32 v{t1}, 0xffff0000, v{gx+i}
        v_and_b32 v{t2}, 0xffff0000, v{gg+i}
        v_mul_f32 v{t1}, v{t1}, v{t2}
        v_cvt_pk_bf16_f32 v{t0}, v{t0}, v{t1}
        v_lshlrev_b32 v{t1}, 16, v{t0}
        v_and_b32 v{t0}, 0xffff0000, v{t0}
        v_add_f32 v{t3}, v{t3}, v{t1}
        v_add_f32 v{t3}, v{t3}, v{t0}
        """)
    for d in ("row_ror:1", "row_ror:2", "row_ror:4", "row_ror:8"):
        a(f"v_add_f32_dpp v{t3}, v{t3}, v{t3} {d} row_mask:0xf bank_mask:0xf")
    a(f"""
    v_mov_b32 v{t0}, v{t3}
    v_permlane16_swap_b32 v{t3}, v{t0}
    v_add_f32 v{t3}, v{t3}, v{t0}
    v_mov_b32 v{t0}, v{t3}
    v_permlane32_swap_b32 v{t3}, v{t0}
    v_add_f32 v{t3}, v{t3}, v{t0}
    v_cvt_pk_bf16_f32 v{t3}, v{t3}, v{t3}
    v_and_b32 v{t3}, 0xffff0000, v{t3}
    v_mul_f32 v{t3}, {hex(f2u(-math.log2(math.e)))}, v{t3}
    v_exp_f32 v{t3}, v{t3}
    v_add_f32 v{t3}, 1.0, v{t3}
    v_rcp_f32 v{t3}, v{t3}
    v_cvt_pk_bf16_f32 v{t0}, v{t3}, v{t3}
    v_and_b32 v{t0}, 0xffff0000, v{t0}
    v_sub_f32 v{t1}, 1.0, v{t0}
    v_cvt_pk_bf16_f32 v{t1}, v{t1}, v{t1}
    v_and_b32 v{t1}, 0xffff0000, v{t1}
    v_mov_b32 v{t2}, {GT}
    ds_write_b64 v{t2}, v[{t0}:{t1}]
    L_nog2:
    s_cmp_ge_u32 s6, 27
    s_cbranch_scc1 L_nof1
    """)
    A1 = Y; A2 = Y + 10; D1 = Dq
    a(f"""
    v_mul_u32_u24 v{t0}, 640, v{vG}
    v_lshl_add_u32 v{t0}, v{vN}, 3, v{t0}
    s_mul_i32 s13, s3, 2560
    v_add_u32 v{t0}, s13, v{t0}
    v_lshrrev_b32 v{t1}, 2, v{vL}
    v_mul_u32_u24 v{t1}, 160, v{t1}
    v_and_b32 v{t2}, 3, v{vL}
    v_lshl_add_u32 v{t1}, v{t2}, 3, v{t1}
    v_add_u32 v{t1}, s13, v{t1}
    """)
    for t in range(5): a(f"ds_read_b64_tr_b16 {vr(A1+2*t,2)}, v{t0} offset:{W1L+128*t}")
    for T in range(5): a(f"ds_read_b64_tr_b16 {vr(A2+2*T,2)}, v{t1} offset:{W2L+32*T}")
    a("s_waitcnt lgkmcnt(5)")
    for t in range(5):
        a(f"v_mfma_f32_16x16x16_bf16 {vr(D1,4)}, {vr(A1+2*t,2)}, {vr(xf+2*t,2)}, {'0' if t == 0 else vr(D1,4)}")
    a(f"v_lshlrev_b32 v{t0}, 4, v{vG}")
    setexec(0x0001000100010001)
    for r in range(4): a(f"ds_add_f32 v{t0}, v{D1+r} offset:{HS+4*r}")
    setexec(-1)
    a(f"""
    L_nof1:
    s_waitcnt lgkmcnt(0)
    s_barrier
    v_mov_b32 v{t2}, {GT}
    ds_read_b64 {vr(ml,2)}, v{t2}
    v_lshlrev_b32 v{t0}, 4, v{vG}
    ds_read_b128 {vr(qf,4)}, v{t0} offset:{HS}
    s_waitcnt lgkmcnt(0)
    v_mov_b32 v{vScale}, v{ml}
    s_cmp_ge_u32 s6, 27
    s_cbranch_scc1 L_nof2
    v_cvt_pk_bf16_f32 v{qp}, v{qf}, v{qf+1}
    v_cvt_pk_bf16_f32 v{qp+1}, v{qf+2}, v{qf+3}
    v_lshlrev_b32 v{qf}, 16, v{qp}
    v_and_b32 v{qf+1}, 0xffff0000, v{qp}
    v_lshlrev_b32 v{qf+2}, 16, v{qp+1}
    v_and_b32 v{qf+3}, 0xffff0000, v{qp+1}
    """)
    for r in range(4): a(f"v_mul_f32 v{qf+4+r}, {hex(f2u(-math.log2(math.e)))}, v{qf+r}")
    for r in range(4): a(f"v_exp_f32 v{qf+4+r}, v{qf+4+r}")
    for r in range(4): a(f"v_add_f32 v{qf+4+r}, 1.0, v{qf+4+r}")
    for r in range(4): a(f"v_rcp_f32 v{qf+4+r}, v{qf+4+r}")
    for r in range(4): a(f"v_mul_f32 v{qf+r}, v{qf+r}, v{qf+4+r}")
    a(f"v_cvt_pk_bf16_f32 v{qp}, v{qf}, v{qf+1}\nv_cvt_pk_bf16_f32 v{qp+1}, v{qf+2}, v{qf+3}")
    for T in range(5): a(f"v_mfma_f32_16x16x16_bf16 {vr(OUT+4*T,4)}, {vr(A2+2*T,2)}, {vr(qp,2)}, 0")
    for i in range(20): a(f"v_mul_f32 v{OUT+i}, v{ml+1}, v{OUT+i}")
    a("L_nof2:")
    stamp(4)
    a(f"""
    v_and_b32 v{t0}, 1, v{vG}
    v_lshlrev_b32 v{t0}, 11, v{t0}           ; 32*(g&1)*64
    v_lshrrev_b32 v{t1}, 1, v{vG}
    v_lshl_add_u32 v{t0}, v{t1}, 8, v{t0}    ; 4*(g>>1)*64
    v_bfe_u32 v{t1}, v{vL}, 2, 2
    v_lshl_add_u32 v{t0}, v{t1}, 6, v{t0}    ; r*64
    v_and_b32 v{t2}, 3, v{vL}
    v_lshl_add_u32 v{t0}, v{t2}, 3, v{t0}    ; cc*8
    s_lshl_b32 s13, s3, 12
    s_add_u32 s13, s13, {WUVL}
    v_add_u32 v{t0}, s13, v{t0}
    v_lshrrev_b32 v{t1}, 2, v{vL}
    v_mul_u32_u24 v{t1}, 160, v{t1}
    v_lshl_add_u32 v{t1}, v{t2}, 3, v{t1}
    s_mul_i32 s13, s3, 5120
    s_add_u32 s13, s13, {WOL}
    v_add_u32 v{t1}, s13, v{t1}
    s_waitcnt vmcnt(0)
    """)
    stamp(5)
    for ks in range(2):
        for Td in range(2):
            for aa in range(2):
                a(f"ds_read_b64_tr_b16 {vr(AUV+8*ks+4*Td+2*aa,2)}, v{t0} offset:{aa*1024+ks*512+Td*32}")
    a("s_waitcnt lgkmcnt(4)")
    for T in range(5):
        for aa in range(2):
            a(f"ds_read_b64_tr_b16 {vr(AO+4*T+2*aa,2)}, v{t1} offset:{aa*2560+T*32}")
    vML, vPB, vCW, vCR, vCT, vPC, vMS = WQ, WQ+1, WQ+2, WQ+3, WQ+4, WQ+5, WQ+6
    a(f"""
    v_and_b32 v{t2}, 3, v{vL}
    v_lshl_add_u32 v{t2}, v{vS}, 2, v{t2}
    s_lshr_b32 s12, s6, 3
    s_lshl_b32 s12, s12, 12
    s_and_b32 s13, s6, 7
    s_lshl_b32 s13, s13, 3
    s_add_u32 s12, s12, s13
    s_add_u32 s12, s12, {ML_OFF}
    v_lshl_add_u32 v{vML}, v{t2}, 7, s12
    s_lshl_b32 s12, s6, 15
    s_lshl_b32 s13, s3, 7
    s_add_u32 s12, s12, s13
    s_add_u32 s12, s12, {PB_OFF}
    v_lshl_add_u32 v{vPB}, v{vS}, 12, s12
    v_lshl_add_u32 v{vPB}, v{vE}, 4, v{vPB}
    s_lshl_b32 s12, s3, 8
    s_add_u32 s12, s12, {CC}
    v_lshrrev_b32 v{t2}, 1, v{vG}
    v_lshl_add_u32 v{vCW}, v{t2}, 7, s12
    v_lshl_add_u32 v{vCW}, v{vE}, 4, v{vCW}
    v_and_b32 v{t2}, 1, v{vG}
    v_lshl_add_u32 v{vCW}, v{t2}, 3, v{vCW}
    v_and_b32 v{t2}, 1, v{vL}
    v_lshl_add_u32 v{vCR}, v{t2}, 7, s12
    v_lshl_add_u32 v{vCR}, v{vG}, 4, v{vCR}
    v_bfe_u32 v{t2}, v{vL}, 1, 1
    v_lshlrev_b32 v{vCT}, 6, v{t2}
    v_lshl_add_u32 v{vCT}, v{vG}, 4, v{vCT}
    v_cmp_eq_u32 s[68:69], 1, v{t2}
    s_mul_i32 s12, s2, 2560
    s_mul_i32 s13, s3, 320
    s_add_u32 s12, s12, s13
    s_add_u32 s12, s12, {PC_OFF}
    v_lshl_add_u32 v{vPC}, v{vG}, 4, s12
    v_lshlrev_b32 v{vMS}, 3, v{vL}
    s_cmp_lg_u32 s3, 0
    s_cbranch_scc1 L_mlw
    """)
    sflag_wait("128", 128)
    a(f"""
    s_mov_b32 s13, 0
    L_mlp:
    global_load_dwordx2 {vr(ml,2)}, v{vML}, s[40:41] sc1
    s_add_u32 s13, s13, 1
    s_waitcnt vmcnt(0)
    v_max_u32 v{t2}, v{ml}, v{ml+1}
    v_cmp_eq_u32 vcc, -1, v{t2}
    s_cmp_gt_u32 s13, {SPIN}
    s_cbranch_scc1 L_mlo
    s_cbranch_vccnz L_mlp
    L_mlo:
    ds_write_b64 v{vMS}, {vr(ml,2)} offset:{MLS}
    L_mlw:
    s_waitcnt lgkmcnt(0)
    s_barrier
    """)
    stamp(6)
    for u in range(4): a(f"global_load_dwordx4 {vr(PBR+4*u,4)}, v{vPB}, s[40:41] offset:{1024*u} sc1")
    a(f"""
    ds_read_b64 {vr(ml,2)}, v{vMS} offset:{MLS}
    s_waitcnt lgkmcnt(0)
    v_max_f32_dpp v{t0}, v{ml}, v{ml} quad_perm:[1,0,3,2] row_mask:0xf bank_mask:0xf
    v_max_f32_dpp v{t0}, v{t0}, v{t0} quad_perm:[2,3,0,1] row_mask:0xf bank_mask:0xf
    v_max_f32_dpp v{t0}, v{t0}, v{t0} row_ror:8 row_mask:0xf bank_mask:0xf
    v_mov_b32 v{t1}, v{t0}
    v_permlane16_swap_b32 v{t0}, v{t1}
    v_max_f32 v{t0}, v{t0}, v{t1}
    v_mov_b32 v{t1}, v{t0}
    v_permlane32_swap_b32 v{t0}, v{t1}
    v_max_f32 v{t0}, v{t0}, v{t1}
    v_sub_f32 v{t0}, v{ml}, v{t0}
    v_exp_f32 v{t0}, v{t0}
    v_cvt_pk_bf16_f32 v{t2}, v{t0}, v{t0}
    v_mul_f32 v{t0}, v{t0}, v{ml+1}
    """)
    for u in range(4):
        for r in range(4):
            a(f"v_and_b32_dpp v{YW+4*u+r}, v{t2}, v{msk+r} quad_perm:[{u},{u},{u},{u}] row_mask:0xf bank_mask:0xf")
    a(f"""
    v_add_f32_dpp v{t0}, v{t0}, v{t0} quad_perm:[1,0,3,2] row_mask:0xf bank_mask:0xf
    v_add_f32_dpp v{t0}, v{t0}, v{t0} quad_perm:[2,3,0,1] row_mask:0xf bank_mask:0xf
    v_add_f32_dpp v{t0}, v{t0}, v{t0} row_ror:8 row_mask:0xf bank_mask:0xf
    v_mov_b32 v{t1}, v{t0}
    v_permlane16_swap_b32 v{t0}, v{t1}
    v_add_f32 v{t0}, v{t0}, v{t1}
    v_mov_b32 v{t1}, v{t0}
    v_permlane32_swap_b32 v{t0}, v{t1}
    v_add_f32 v{t0}, v{t0}, v{t1}
    v_rcp_f32 v{t0}, v{t0}
    v_mul_f32 v{vScale}, v{vScale}, v{t0}
    s_mov_b32 s13, 0
    s_branch L_pbc
    L_pbp:
    """)
    for u in range(4): a(f"global_load_dwordx4 {vr(PBR+4*u,4)}, v{vPB}, s[40:41] offset:{1024*u} sc1")
    a("L_pbc:\ns_add_u32 s13, s13, 1\ns_waitcnt vmcnt(0)")
    maxtree(t2, range(PBR, PBR+16))
    a(f"""
    v_cmp_eq_u32 vcc, -1, v{t2}
    s_cmp_gt_u32 s13, {SPIN}
    s_cbranch_scc1 L_pbo
    s_cbranch_vccnz L_pbp
    L_pbo:
    """)
    stamp(7)
    for u in range(4):
        a(f"v_mfma_f32_16x16x32_bf16 {vr(Dq,4)}, {vr(YW+4*u,4)}, {vr(PBR+4*u,4)}, {'0' if u == 0 else vr(Dq,4)}")
    for r in range(4): a(f"v_mul_f32 v{Dq+r}, v{vScale}, v{Dq+r}")
    a(f"v_cvt_pk_bf16_f32 v{qp}, v{Dq}, v{Dq+1}\nv_cvt_pk_bf16_f32 v{qp+1}, v{Dq+2}, v{Dq+3}")
    setexec(0xFF00FF0000FF00FF)
    a(f"ds_write_b64 v{vCW}, {vr(qp,2)}")
    setexec(-1)
    a(f"""
    s_waitcnt lgkmcnt(0)
    ds_read_b128 {vr(qf,4)}, v{vCR}
    ds_read_b128 {vr(qf+4,4)}, v{vCR} offset:64
    s_waitcnt lgkmcnt(1)
    v_mfma_f32_16x16x32_bf16 {vr(Dq,4)}, {vr(AUV,4)}, {vr(qf,4)}, 0
    v_mfma_f32_16x16x32_bf16 {vr(acc,4)}, {vr(AUV+4,4)}, {vr(qf,4)}, 0
    s_waitcnt lgkmcnt(0)
    v_mfma_f32_16x16x32_bf16 {vr(Dq,4)}, {vr(AUV+8,4)}, {vr(qf+4,4)}, {vr(Dq,4)}
    v_mfma_f32_16x16x32_bf16 {vr(acc,4)}, {vr(AUV+12,4)}, {vr(qf+4,4)}, {vr(acc,4)}
    """)
    for r in range(4): a(f"v_cndmask_b32 v{Dq+r}, v{Dq+r}, v{acc+r}, s[68:69]")
    setexec(0x000F000F000F000F)
    for r in range(4): a(f"ds_add_f32 v{vCT}, v{Dq+r} offset:{CT+4*r}")
    setexec(-1)
    a(f"""
    v_lshlrev_b32 v{t0}, 4, v{vG}
    s_waitcnt lgkmcnt(0)
    s_barrier
    ds_read_b128 {vr(qf,4)}, v{t0} offset:{CT}
    ds_read_b128 {vr(qf+4,4)}, v{t0} offset:{CT+64}
    s_waitcnt lgkmcnt(0)
    """)
    for r in range(4): a(f"v_cvt_pk_bf16_f32 v{qp+r}, v{qf+2*r}, v{qf+2*r+1}")
    for T in range(5): a(f"v_mfma_f32_16x16x32_bf16 {vr(OUT+4*T,4)}, {vr(AO+4*T,4)}, {vr(qp,4)}, {vr(OUT+4*T,4)}")
    setexec(0x0001000100010001)
    for T in range(5): a(f"global_store_dwordx4 v{vPC}, {vr(OUT+4*T,4)}, s[40:41] offset:{64*T} sc1")
    setexec(-1)
    stamp(8)
    a("s_branch L_fin")
    po_v = V.n
    V = VA(5)
    t0, t1, t2, t3 = V(1, 2), V(), V(), V()
    ff = V(4, 2)
    CK = V(64, 2); CV = V(64, 2)
    QB = V(16, 2)
    DS = V(4, 2); SV = V(16, 2); U = V(8, 2); W = V(8, 2); DP = V(16, 2)
    ba = V(8); vPBs = V(); vMLs = V(); vq = V(2); vqw = V(2); vqr = V(2); vSa = V(); ml = V(2, 2)
    CKV, QAS, SL = 0, 131072, 147456
    a(f"""
    L_roleA:
    s_sub_u32 s6, s5, 16
    s_lshr_b32 s6, s6, 2
    s_lshl_b32 s6, s6, 3
    s_add_u32 s6, s6, s4              ; chunk
    s_and_b32 s7, s5, 3               ; grp
    v_mov_b32 v{ff}, -1
    v_mov_b32 v{ff+1}, -1
    v_mov_b32 v{ff+2}, -1
    v_mov_b32 v{ff+3}, -1
    s_lshl_b32 s8, s7, 3
    s_add_u32 s8, s8, s3
    s_lshl_b32 s8, s8, 15
    s_lshl_b32 s9, s6, 10
    s_add_u32 s8, s8, s9
    s_add_u32 s8, s8, {PB_OFF}
    v_lshl_add_u32 v{t0}, v{vL}, 4, s8
    s_sub_u32 s9, s2, 128
    s_mul_i32 s9, s9, 2560
    s_mul_i32 s10, s3, 320
    s_add_u32 s9, s9, s10
    s_add_u32 s9, s9, {PC_OFF}
    v_lshl_add_u32 v{t1}, v{vL}, 4, s9
    s_lshl_b32 s10, s7, 5
    s_add_u32 s10, s10, s6
    s_lshl_b32 s10, s10, 7
    s_add_u32 s10, s10, {ML_OFF}
    v_lshl_add_u32 v{t2}, v{vL}, 4, s10
    s_lshl_b32 s11, s7, 14
    s_lshl_b32 s12, s3, 11
    s_add_u32 s11, s11, s12
    v_lshl_add_u32 v{vq}, v{vL}, 4, s11
    s_waitcnt lgkmcnt(0)
    s_cmp_lg_u32 s6, s7
    s_cbranch_scc1 L_noqa
    global_store_dwordx4 v{vq}, {vr(ff,4)}, s[40:41] offset:{QA_OFF} sc1
    global_store_dwordx4 v{vq}, {vr(ff,4)}, s[40:41] offset:{QA_OFF+1024} sc1
    L_noqa:
    global_store_dwordx4 v{t0}, {vr(ff,4)}, s[40:41] sc1
    s_mov_b64 exec, 0xfffff
    global_store_dwordx4 v{t1}, {vr(ff,4)}, s[40:41] sc1
    s_mov_b64 exec, 0xf
    s_cmp_lg_u32 s3, 0
    s_cbranch_scc1 L_noml
    global_store_dwordx4 v{t2}, {vr(ff,4)}, s[40:41] sc1
    L_noml:
    s_mov_b64 exec, -1
    """)
    srd(44, 18, SZ['ckv'])
    a(f"""
    s_lshl_b32 s8, s6, 17
    s_lshl_b32 s9, s3, 14
    s_add_u32 s8, s8, s9
    v_lshlrev_b32 v{t3}, 4, v{vL}
    """)
    for k in range(8): a(f"v_xor_b32 v{ba+k}, {32*k}, v{t3}")
    a(f"""
    s_waitcnt vmcnt(0)
    s_barrier
    s_cmp_lg_u32 s3, 0
    s_cbranch_scc1 L_nosig
    s_mov_b64 exec, 1
    v_mov_b32 v{t0}, 1
    v_mov_b32 v{t1}, 128
    s_cmp_lg_u32 s6, s7
    s_cbranch_scc1 L_nosig2
    s_lshl_b32 s12, s7, 2
    v_mov_b32 v{t2}, s12
    global_store_dword v{t2}, v{t0}, s[38:39] sc1
    L_nosig2:
    global_atomic_add v{t1}, v{t0}, s[38:39] sc1
    s_mov_b64 exec, -1
    L_nosig:
    """)
    stamp(1)
    for k in range(16):
        a(f"s_mov_b32 m0, s9\ns_add_u32 s9, s9, 1024\nbuffer_load_dwordx4 v{ba+(k&7)}, s[44:47], s8 offen{nt} lds\ns_add_u32 s8, s8, 1024")
    a(f"""
    s_lshl_b32 s9, s3, 14
    v_lshl_add_u32 v{t0}, v{vN}, 10, s9
    v_lshlrev_b32 v{t1}, 1, v{vE}
    v_xor_b32 v{t1}, v{t1}, v{vG}             ; g ^ 2(i&7)
    """)
    for q in range(4):
        a(f"v_xor_b32 v{t2}, {4*q}, v{t1}\nv_lshl_add_u32 v{ba+q}, v{t2}, 4, v{t0}")
    a(f"""
    s_lshl_b32 s9, s3, 1
    v_xor_b32 v{t0}, s9, v{vE}
    v_lshlrev_b32 v{t1}, 8, v{vL}
    v_lshl_add_u32 v{vqw}, v{t0}, 4, v{t1}
    v_add_u32 v{vqw}, {QAS}, v{vqw}
    v_xor_b32 v{vqw+1}, 16, v{vqw}
    v_xor_b32 v{t0}, v{vN}, v{vG}
    v_lshlrev_b32 v{t1}, 8, v{vG}
    v_lshl_add_u32 v{vqr}, v{t0}, 4, v{t1}
    v_add_u32 v{vqr}, {QAS}, v{vqr}
    v_xor_b32 v{vqr+1}, 64, v{vqr}
    v_lshlrev_b32 v{vSa}, 4, v{vL}
    v_add_u32 v{vSa}, {SL}, v{vSa}
    v_lshrrev_b32 v{t0}, 1, v{vN}
    s_lshl_b32 s8, s7, 18
    s_lshl_b32 s9, s6, 10
    s_add_u32 s8, s8, s9
    s_lshl_b32 s9, s3, 7
    s_add_u32 s8, s8, s9
    s_add_u32 s8, s8, {PB_OFF}
    v_lshl_add_u32 v{vPBs}, v{t0}, 15, s8
    v_lshl_add_u32 v{vPBs}, v{vG}, 5, v{vPBs}
    v_and_b32 v{t1}, 1, v{vL}
    v_lshl_add_u32 v{vPBs}, v{t1}, 4, v{vPBs}
    v_lshl_add_u32 v{vMLs}, v{t0}, 3, s10
    v_cmp_eq_u32 s[68:69], 1, v{t1}
    s_waitcnt vmcnt(0)
    """)
    stamp(2)
    for t in range(16):
        a(f"ds_read_b128 {vr(CK+4*t,4)}, v{ba+(t&3)} offset:{256*(t>>2)}")
        if t == 11: a("s_waitcnt lgkmcnt(6)")
    a(f"""
    v_lshrrev_b32 v{t0}, 2, v{vL}             ; 4g+r
    v_and_b32 v{t1}, 7, v{t0}                 ; key&7
    v_lshlrev_b32 v{t0}, 10, v{t0}
    v_and_b32 v{t2}, 3, v{vL}
    v_lshl_add_u32 v{t0}, v{t2}, 3, v{t0}
    s_lshr_b32 s8, s3, 1
    s_lshl_b32 s8, s8, 8
    v_add_u32 v{t0}, s8, v{t0}
    s_and_b32 s8, s3, 1
    s_lshl_b32 s8, s8, 2
    v_xor_b32 v{t1}, s8, v{t1}
    s_waitcnt lgkmcnt(0)
    """)
    for T in range(4):
        a(f"v_xor_b32 v{t2}, {T}, v{t1}\nv_lshl_add_u32 v{ba+T}, v{t2}, 5, v{t0}\nv_add_u32 v{ba+4+T}, 0x10000, v{ba+T}")
    a("s_cmp_lg_u32 s3, 0\ns_cbranch_scc1 L_nofa\ns_lshl_b32 s14, s7, 2")
    sflag_wait("s14", 1)
    a("L_nofa:\ns_barrier")
    for T in range(4):
        for t in range(4):
            for aa in range(2):
                off = (32*t + 16*aa) * 1024
                a(f"ds_read_b64_tr_b16 {vr(CV+16*T+4*t+2*aa,2)}, v{ba+T+4*(off>>16)} offset:{off & 0xffff}")
            if t == 1 or t == 3: pass
        a("s_waitcnt lgkmcnt(4)")
    stamp(3)
    a(f"""
    s_mov_b32 s13, 0
    L_qap:
    global_load_dwordx4 {vr(QB,4)}, v{vq}, s[40:41] offset:{QA_OFF} sc1
    global_load_dwordx4 {vr(QB+4,4)}, v{vq}, s[40:41] offset:{QA_OFF+1024} sc1
    s_add_u32 s13, s13, 1
    s_waitcnt vmcnt(0)
    """)
    maxtree(t2, range(QB, QB+8))
    a(f"""
    v_cmp_eq_u32 vcc, -1, v{t2}
    s_cmp_gt_u32 s13, {SPIN}
    s_cbranch_scc1 L_qao
    s_cbranch_vccnz L_qap
    L_qao:
    ds_write_b128 v{vqw}, {vr(QB,4)}
    ds_write_b128 v{vqw+1}, {vr(QB+4,4)}
    s_waitcnt lgkmcnt(0)
    s_barrier
    """)
    stamp(4)
    if DEV: a("s_waitcnt lgkmcnt(0)")
    def qread(t): a(f"ds_read_b128 {vr(QB+4*(t&3),4)}, v{vqr+(t&1)} offset:{1024*t}")
    for t in range(4): qread(t)
    for t in range(16):
        a(f"s_waitcnt lgkmcnt({min(3, 15-t)})")
        a(f"v_mfma_f32_16x16x32_bf16 {vr(DS,4)}, {vr(CK+4*t,4)}, {vr(QB+4*(t&3),4)}, {'0' if t == 0 else vr(DS,4)}")
        if t + 4 < 16: qread(t + 4)
    a(f"""
    s_and_b32 s8, s3, 3
    s_lshl_b32 s8, s8, 10
    v_add_u32 v{t0}, s8, v{vSa}
    s_lshr_b32 s9, s3, 2
    s_lshl_b32 s8, 0x55555555, s9
    """)
    for r in range(4): a(f"v_add_f32_dpp v{DS+r}, v{DS+r}, v{DS+r} quad_perm:[1,0,3,2] row_mask:0xf bank_mask:0xf")
    a(f"""
    s_mov_b32 exec_lo, s8
    s_mov_b32 exec_hi, s8
    ds_write_b128 v{t0}, {vr(DS,4)}
    s_mov_b64 exec, -1
    s_waitcnt lgkmcnt(0)
    s_barrier
    """)
    for q in range(4): a(f"ds_read_b128 {vr(SV+4*q,4)}, v{vSa} offset:{1024*q}")
    stamp(5)
    a("s_waitcnt lgkmcnt(0)")
    a(f"v_max3_f32 v{t0}, v{SV}, v{SV+1}, v{SV+2}\nv_max3_f32 v{t1}, v{SV+3}, v{SV+4}, v{SV+5}")
    for i in range(6, 14, 4):
        a(f"v_max3_f32 v{t0}, v{t0}, v{SV+i}, v{SV+i+1}\nv_max3_f32 v{t1}, v{t1}, v{SV+i+2}, v{SV+i+3}")
    a(f"""
    v_max3_f32 v{t0}, v{t0}, v{SV+14}, v{SV+15}
    v_max_f32 v{t0}, v{t0}, v{t1}
    v_max_f32_dpp v{t0}, v{t0}, v{t0} quad_perm:[1,0,3,2] row_mask:0xf bank_mask:0xf
    v_mov_b32 v{t1}, v{t0}
    v_permlane16_swap_b32 v{t0}, v{t1}
    v_max_f32 v{t0}, v{t0}, v{t1}
    v_mov_b32 v{t1}, v{t0}
    v_permlane32_swap_b32 v{t0}, v{t1}
    v_max_f32 v{t0}, v{t0}, v{t1}
    v_ceil_f32 v{ml}, v{t0}
    """)
    for i in range(16): a(f"v_sub_f32 v{SV+i}, v{SV+i}, v{ml}")
    for i in range(16): a(f"v_exp_f32 v{SV+i}, v{SV+i}")
    a("s_cmp_lg_u32 s3, 0\ns_cbranch_scc1 L_nol")
    a(f"v_add_f32 v{t0}, v{SV}, v{SV+1}\nv_add_f32 v{t1}, v{SV+2}, v{SV+3}")
    for i in range(4, 16, 2): a(f"v_add_f32 v{t0}, v{t0}, v{SV+i}\nv_add_f32 v{t1}, v{t1}, v{SV+i+1}")
    a(f"""
    v_add_f32 v{t0}, v{t0}, v{t1}
    v_add_f32_dpp v{t0}, v{t0}, v{t0} quad_perm:[1,0,3,2] row_mask:0xf bank_mask:0xf
    v_mov_b32 v{t1}, v{t0}
    v_permlane16_swap_b32 v{t0}, v{t1}
    v_add_f32 v{t0}, v{t0}, v{t1}
    v_mov_b32 v{t1}, v{t0}
    v_permlane32_swap_b32 v{t0}, v{t1}
    v_add_f32 v{ml+1}, v{t0}, v{t1}
    s_mov_b64 exec, 0x5555
    global_store_dwordx2 v{vMLs}, {vr(ml,2)}, s[40:41] sc1
    s_mov_b64 exec, -1
    L_nol:
    """)
    for i in range(8): a(f"v_cvt_pk_bf16_f32 v{U+i}, v{SV+2*i}, v{SV+2*i+1}")
    for i in range(8): a(f"v_mov_b32_dpp v{W+i}, v{U+i} quad_perm:[1,0,3,2] row_mask:0xf bank_mask:0xf")
    order = []
    for j in range(2):
        for T in range(4): order.append((T, (0 if T < 2 else 2) + j, U + 4*j))
    for j in range(2):
        for T in range(4): order.append((T, (2 if T < 2 else 0) + j, W + 4*j))
    seen = set()
    for T, t, b in order:
        a(f"v_mfma_f32_16x16x32_bf16 {vr(DP+4*T,4)}, {vr(CV+16*T+4*t,4)}, {vr(b,4)}, {vr(DP+4*T,4) if T in seen else '0'}")
        seen.add(T)
    for i in range(8): a(f"v_cvt_pk_bf16_f32 v{U+i}, v{DP+2*i}, v{DP+2*i+1}")
    for i in range(4): a(f"v_cndmask_b32 v{U+i}, v{U+i}, v{U+4+i}, s[68:69]")
    a(f"global_store_dwordx4 v{vPBs}, {vr(U,4)}, s[40:41] sc1")
    stamp(6)
    a(f"""
    s_cmp_lg_u32 s3, 0
    s_cbranch_scc1 L_fin
    s_cmp_ge_u32 s6, 20
    s_cbranch_scc1 L_fin
    s_lshl_b32 s8, s6, 2
    s_add_u32 s8, s8, s7
    v_lshrrev_b32 v{t0}, 1, v{vL}
    v_mul_u32_u24 v{t0}, 2560, v{t0}
    v_and_b32 v{t1}, 1, v{vL}
    v_lshl_add_u32 v{t0}, v{t1}, 4, v{t0}
    s_lshl_b32 s9, s8, 5
    s_add_u32 s9, s9, {PC_OFF}
    v_add_u32 v{ba}, s9, v{t0}
    v_add_u32 v{ba+1}, {32*2560}, v{ba}
    v_add_u32 v{ba+2}, {64*2560}, v{ba}
    v_add_u32 v{ba+3}, {96*2560}, v{ba}
    s_lshl_b32 s9, s8, 4
    v_lshl_add_u32 v{ba+4}, v{t1}, 3, s9
    v_lshl_add_u32 v{ba+4}, v{vG}, 1, v{ba+4}
    """)
    sflag_wait("128", 128)
    a("s_mov_b32 s13, 0\nL_pcp:")
    for j in range(4): a(f"global_load_dwordx4 {vr(SV+4*j,4)}, v{ba+j}, s[40:41] sc1")
    a("s_add_u32 s13, s13, 1\ns_waitcnt vmcnt(0)")
    maxtree(t2, range(SV, SV+16))
    a(f"""
    v_cmp_eq_u32 vcc, -1, v{t2}
    s_cmp_gt_u32 s13, {SPIN}
    s_cbranch_scc1 L_pco
    s_cbranch_vccnz L_pcp
    L_pco:
    """)
    stamp(7)
    for r in range(4): a(f"v_add_f32 v{SV+r}, v{SV+r}, v{SV+4+r}\nv_add_f32 v{SV+8+r}, v{SV+8+r}, v{SV+12+r}")
    for r in range(4): a(f"v_add_f32 v{SV+r}, v{SV+r}, v{SV+8+r}")
    a(f"""
    v_permlane32_swap_b32 v{SV}, v{SV+2}
    v_permlane32_swap_b32 v{SV+1}, v{SV+3}
    v_add_f32 v{SV}, v{SV}, v{SV+2}
    v_add_f32 v{SV+1}, v{SV+1}, v{SV+3}
    v_permlane16_swap_b32 v{SV}, v{SV+1}
    v_add_f32 v{SV}, v{SV}, v{SV+1}
    v_add_f32_dpp v{SV}, v{SV}, v{SV} row_ror:8 row_mask:0xf bank_mask:0xf
    v_add_f32_dpp v{SV}, v{SV}, v{SV} row_ror:4 row_mask:0xf bank_mask:0xf
    v_add_f32_dpp v{SV}, v{SV}, v{SV} row_ror:2 row_mask:0xf bank_mask:0xf
    v_cvt_pk_bf16_f32 v{SV}, v{SV}, v{SV}
    """)
    setexec(0x0003000300030003)
    a(f"global_store_short v{ba+4}, v{SV}, s[36:37]")
    setexec(-1)
    stamp(8)
    a("L_fin:")
    if DEV:
        a(f"""
        s_waitcnt vmcnt(0)
        s_memrealtime s[{80+2*9}:{81+2*9}]
        s_waitcnt lgkmcnt(0)
        s_lshl_b32 s7, s2, 3
        s_add_u32 s7, s7, s3
        s_mul_i32 s7, s7, {NST*4}
        s_add_u32 s7, s7, {STAMP_OFF}
        s_mov_b64 exec, 1
        v_mov_b32 v3, s7
        """)
        for i in range(NST):
            a(f"v_mov_b32 v4, s{80+2*i}\nglobal_store_dword v3, v4, s[40:41] offset:{4*i}")
    a("L_end:\ns_endpgm")
    lines = hazard.fix(a.lines)
    nv = max(po_v, V.n)
    return single("\n".join(lines) + "\n", 256, 512, 152064, vgpr=256, sgpr=102, accum=256), nv

if __name__ == "__main__":
    out = sys.argv[1]
    DEV = "dev" in sys.argv[2:]
    NT = "nont" not in sys.argv[2:]
    txt, nv = build(DEV, NT)
    open(out, "w").write(txt)
    print("vgprs", nv)
```

```python
import sys, math, struct
from genlib import *
import hazard

def f2u(x): return struct.unpack("<I", struct.pack("<f", x))[0]

QA_OFF, ML_OFF, FL_OFF, EP_OFF, PC_OFF, PB_OFF = 0x0, 0x10000, 0x14000, 0x18000, 0x20000, 0x100000
SPIN = 200000
DPPM = "row_mask:0xf bank_mask:0xf"

def build(DEV=False, opts=None):
    o = dict(opts or {})
    a = Asm()
    def nt(k): return "" if (o.get("nont") or o.get("nont_" + k)) else " nt"
    NST = 10
    def stamp(i):
        if DEV: a(f"s_memrealtime s[{80+2*i}:{81+2*i}]")
    class VA:
        def __init__(s, start): s.n = start
        def __call__(s, k=1, al=1):
            s.n = (s.n + al - 1) // al * al
            r = s.n; s.n += k
            assert s.n <= 256
            return r
    def vr(b, k): return f"v[{b}:{b+k-1}]"
    def srd(dst, src, size):
        a(f"s_mov_b32 s{dst}, s{src}\ns_mov_b32 s{dst+1}, s{src+1}\ns_mov_b32 s{dst+2}, {size}\ns_mov_b32 s{dst+3}, 0x20000")
    def setexec(mask):
        if mask == -1: a("s_mov_b64 exec, -1")
        elif mask < (1 << 31): a(f"s_mov_b64 exec, {hex(mask)}")
        else: a(f"s_mov_b32 exec_lo, {hex(mask & 0xffffffff)}\ns_mov_b32 exec_hi, {hex(mask >> 32)}")
    def maxtree(dst, rs):
        rs = list(rs)
        a(f"v_max3_u32 v{dst}, v{rs[0]}, v{rs[1]}, v{rs[2]}")
        rs = rs[3:]
        while len(rs) >= 2:
            a(f"v_max3_u32 v{dst}, v{dst}, v{rs[0]}, v{rs[1]}"); rs = rs[2:]
        if rs: a(f"v_max_u32 v{dst}, v{dst}, v{rs[0]}")
    def spin_tail(Lp, Lo):
        a(f"s_cmp_gt_u32 s13, {SPIN}\ns_cbranch_scc1 {Lo}\ns_cbranch_vccnz {Lp}\n{Lo}:")
    def xrow(op, x, t):
        a(f"""
        v_mov_b32 v{t}, v{x}
        v_permlane16_swap_b32 v{x}, v{t}
        {op} v{x}, v{x}, v{t}
        v_mov_b32 v{t}, v{x}
        v_permlane32_swap_b32 v{x}, v{t}
        {op} v{x}, v{x}, v{t}
        """)
    TAG = "s[70:71]"
    def mktag():
        a("s_add_u32 s70, s70, 1\ns_add_u32 s71, s71, 0x9e3779b9")

    if DEV:
        for i in range(1, NST): a(f"s_mov_b32 s{80+2*i}, 0")
    stamp(0)
    a(f"""
    s_cmp_ge_u32 s2, 256
    s_cbranch_scc1 L_end
    s_load_dwordx16 s[16:31], s[0:1], 0
    s_load_dwordx8 s[32:39], s[0:1], 64
    s_load_dwordx2 s[40:41], s[0:1], 96
    v_lshrrev_b32 v1, 6, v0
    v_and_b32 v0, 63, v0
    v_readfirstlane_b32 s3, v1
    s_and_b32 s4, s2, 7
    s_lshr_b32 s5, s2, 3
    v_lshrrev_b32 v1, 3, v0
    v_and_b32 v2, 7, v0
    v_and_b32 v3, 15, v0
    v_lshrrev_b32 v4, 4, v0
    s_cmp_ge_u32 s5, 16
    s_cbranch_scc1 L_roleA
    """)
    vL, vS, vE, vN, vG = 0, 1, 2, 3, 4
    V = VA(5)
    vScale = V()
    t0, t1, t2, t3 = V(1, 2), V(), V(), V()
    vXo, vWo, vKo, vKo2 = V(), V(), V(), V()
    xd = V(5, 2)
    msk = V(4); selE = V(4); selO = V(4)
    Y = V(40, 2); WQ = V(40, 2); WK = V(16, 2)
    Dq = V(4, 2); qf = V(8, 2); qp = V(4, 2); acc = V(4, 2)
    o10 = V(5); xf = V(10, 2); gx = V(5, 2); gg = V(5, 2)
    OUT = V(20, 2)
    AUV = WQ + 8; AO = V(20, 2); ml = V(4, 2); YW = Y + 20; PBR = WQ + 24
    vPw, vPr, vQs = V(), V(2), V()
    ones = V(2, 2)
    PQ, HS, GT, MLS, CP, CC, WKL, W1L, W2L, WUVL, WOL = 0, 2048, 2560, 3072, 4096, 5120, 8192, 40960, 61440, 81920, 114688
    a(f"""
    s_lshr_b32 s6, s5, 2
    s_lshl_b32 s6, s6, 3
    s_add_u32 s6, s6, s4              ; h
    s_and_b32 s7, s5, 3               ; sub
    v_mul_u32_u24 v{vXo}, 20, v{vS}
    s_mul_i32 s8, s3, 160
    v_add_u32 v{vXo}, s8, v{vXo}
    v_mul_u32_u24 v{vWo}, 81920, v{vS}
    v_lshl_add_u32 v{vWo}, v{vE}, 4, v{vWo}
    v_xor_b32 v{t0}, v{vE}, v{vG}            ; pos ^ (s>>1)
    v_lshlrev_b32 v{vKo}, 13, v{vS}
    v_lshl_add_u32 v{vKo}, v{t0}, 4, v{vKo}
    v_xor_b32 v{vKo2}, 64, v{vKo}
    s_and_b32 s9, s7, 1
    s_lshl_b32 s9, s9, 7
    s_lshl_b32 s10, s6, 8
    s_add_u32 s9, s9, s10             ; h*256 + dh*128
    s_mul_i32 s8, s3, 655360
    s_add_u32 s8, s8, s9
    s_lshr_b32 s10, s7, 1
    s_lshl_b32 s10, s10, 21
    s_lshl_b32 s11, s3, 18
    s_add_u32 s10, s10, s11
    s_add_u32 s10, s10, s9
    s_lshl_b32 s11, s3, 12
    s_add_u32 s11, s11, {WKL}
    s_lshl_b32 s15, s6, 11
    s_and_b32 s13, s7, 1
    s_lshl_b32 s13, s13, 10
    s_add_u32 s15, s15, s13
    s_lshr_b32 s13, s7, 1
    s_lshl_b32 s13, s13, 9
    s_add_u32 s15, s15, s13
    s_mul_i32 s14, s2, 2560
    s_add_u32 s14, s14, {PC_OFF}
    s_cmp_lg_u32 s3, 0
    s_waitcnt lgkmcnt(0)
    s_cbranch_scc1 L_noclr
    s_load_dwordx2 {TAG}, s[40:41], {EP_OFF}
    v_mov_b32 v{Dq}, -1
    v_mov_b32 v{Dq+1}, -1
    v_mov_b32 v{Dq+2}, -1
    v_mov_b32 v{Dq+3}, -1
    v_lshl_add_u32 v{t0}, v{vL}, 4, s14
    v_lshl_add_u32 v{t1}, v{vL}, 4, s15
    global_store_dwordx4 v{t0}, {vr(Dq,4)}, s[40:41] sc1
    global_store_dwordx4 v{t0}, {vr(Dq,4)}, s[40:41] offset:1024 sc1
    s_mov_b32 exec_hi, 0
    global_store_dwordx4 v{t0}, {vr(Dq,4)}, s[40:41] offset:2048 sc1
    global_store_dwordx4 v{t1}, {vr(Dq,4)}, s[40:41] offset:{QA_OFF} sc1
    s_mov_b32 exec_hi, -1
    L_noclr:
    global_load_dwordx4 {vr(xd,4)}, v{vXo}, s[16:17]
    global_load_dword v{xd+4}, v{vXo}, s[16:17] offset:16
    """)
    srd(48, 22, SZ['wuk']); srd(44, 20, SZ['wq'])
    for j in range(4):
        a(f"s_mov_b32 m0, s11\ns_add_u32 s11, s11, 1024\nbuffer_load_dwordx4 v{vKo2 if j & 1 else vKo}, s[48:51], s10 offen{nt('wuk')} lds\ns_add_u32 s10, s10, 65536")
    NQ1 = 3
    for u in range(NQ1):
        a(f"buffer_load_dwordx4 {vr(WQ+4*u,4)}, v{vWo}, s[44:47], s8 offen{nt('wq')}\ns_add_u32 s8, s8, 8192")
    srd(52, 24, SZ['wuv']); srd(56, 26, SZ['wo']); srd(60, 30, SZ['w1']); srd(64, 32, SZ['w2'])
    a(f"""
    v_and_b32 v{t0}, 1, v{vL}
    v_lshlrev_b32 v{t0}, 4, v{t0}
    v_mov_b32 v{t1}, 0xffff
    v_lshlrev_b32 v{t0}, v{t0}, v{t1}
    v_lshrrev_b32 v{t1}, 1, v{vE}
    v_mov_b32 v{t2}, 0x0c0c0c0c
    s_mov_b32 s12, 0x01000100
    s_mov_b32 s13, 0x03020302
    """)
    for r in range(4):
        a(f"v_cmp_eq_u32 vcc, {r}, v{t1}\nv_cndmask_b32 v{msk+r}, 0, v{t0}, vcc")
    for r in range(4):
        a(f"v_bfi_b32 v{selE+r}, v{msk+r}, s12, v{t2}\nv_bfi_b32 v{selO+r}, v{msk+r}, s13, v{t2}")
    a(f"s_mov_b32 s12, 6554")
    for j in range(5):
        a(f"""
        v_add_u32 v{t0}, {64*j}, v{vL}
        v_mul_u32_u24 v{t1}, s12, v{t0}
        v_lshrrev_b32 v{t1}, 16, v{t1}
        v_mul_u32_u24 v{t2}, 1120, v{t1}
        v_lshl_add_u32 v{o10+j}, v{t0}, 4, v{t2}
        """)
    a(f"""
    v_lshrrev_b32 v{t0}, 1, v{vN}
    v_xor_b32 v{t0}, v{t0}, v{vG}
    v_lshlrev_b32 v{vPr}, 7, v{vN}
    v_lshl_add_u32 v{vPr}, v{t0}, 4, v{vPr}       ; i*128 + ((g ^ (i>>1))*16)
    v_xor_b32 v{vPr+1}, 64, v{vPr}
    v_xor_b32 v{t0}, s3, v{vE}
    v_lshrrev_b32 v{t1}, 1, v{vG}
    v_lshlrev_b32 v{t1}, 7, v{t1}
    v_lshl_add_u32 v{vPw}, v{t0}, 4, v{t1}
    v_and_b32 v{t1}, 1, v{vG}
    v_lshl_add_u32 v{vPw}, v{t1}, 3, v{vPw}
    s_lshl_b32 s12, s3, 8
    v_add_u32 v{vPw}, s12, v{vPw}
    s_lshl_b32 s12, s3, 6
    s_add_u32 s12, s12, s15
    v_lshrrev_b32 v{t1}, 5, v{vL}
    v_lshl_add_u32 v{vQs}, v{t1}, 5, s12
    v_lshl_add_u32 v{vQs}, v{vN}, 1, v{vQs}
    v_mov_b32 v{ones}, 0x3f803f80
    v_mov_b32 v{ones+1}, 0x3f803f80
    s_waitcnt vmcnt({4+NQ1})
    """)
    stamp(1)
    a(f"""
    s_cmp_lg_u32 s3, 0
    s_cbranch_scc1 L_nofl
    s_waitcnt lgkmcnt(0)
    """)
    mktag()
    a(f"""
    s_lshl_b32 s12, s2, 7
    s_add_u32 s12, s12, {FL_OFF}
    v_mov_b32 v{t0}, s70
    v_mov_b32 v{t1}, s71
    v_mov_b32 v{t2}, s12
    s_mov_b64 exec, 1
    global_store_dwordx2 v{t2}, v[{t0}:{t1}], s[40:41] sc1
    s_mov_b64 exec, -1
    L_nofl:
    """)
    for u in range(10):
        for r in range(4):
            a(f"v_perm_b32 v{Y+4*u+r}, v{xd+u//2}, v{xd+u//2}, v{(selO if u & 1 else selE)+r}")
    for u in range(NQ1, 10):
        a(f"buffer_load_dwordx4 {vr(WQ+4*u,4)}, v{vWo}, s[44:47], s8 offen{nt('wq')}\ns_add_u32 s8, s8, 8192")
    a(f"""
    s_lshl_b32 s12, s3, 12
    s_add_u32 s12, s12, {WKL}
    v_add_u32 v{t0}, s12, v{vPr}
    v_add_u32 v{t1}, s12, v{vPr+1}
    s_waitcnt vmcnt(10)
    """)
    for T in range(2):
        for ks in range(2):
            a(f"ds_read_b128 {vr(WK+8*T+4*ks,4)}, v{t1 if ks else t0} offset:{2048*T}")
    NM1 = 5
    for u in range(NM1):
        a(f"s_waitcnt vmcnt({9-u})")
        a(f"v_mfma_f32_16x16x32_bf16 {vr(Dq,4)}, {vr(Y+4*u,4)}, {vr(WQ+4*u,4)}, {'0' if u == 0 else vr(Dq,4)}")
    a("s_barrier")
    def p_tail(nb1):
        for u in range(NM1, 10):
            a(f"s_waitcnt vmcnt({9-u+nb1})")
            a(f"v_mfma_f32_16x16x32_bf16 {vr(Dq,4)}, {vr(Y+4*u,4)}, {vr(WQ+4*u,4)}, {vr(Dq,4)}")
    a(f"""
    s_cmp_ge_u32 s6, {0 if o.get("nob1") else 27}
    s_cbranch_scc1 L_nob1
    s_lshl_b32 s11, s6, 7
    s_lshl_b32 s12, s7, 5
    s_add_u32 s11, s11, s12           ; f0*2
    s_mul_i32 s12, s3, {80*3456}
    s_add_u32 s12, s12, s11           ; w1 soffset
    v_lshrrev_b32 v{t0}, 1, v{vL}
    v_mul_u32_u24 v{t0}, 3456, v{t0}
    v_and_b32 v{t1}, 1, v{vL}
    v_lshl_add_u32 v{t0}, v{t1}, 4, v{t0}
    s_mul_i32 s13, s3, 2560
    s_add_u32 s14, s13, {W1L}
    s_mov_b32 m0, s14
    s_add_u32 s14, s14, 1024
    buffer_load_dwordx4 v{t0}, s[60:63], s12 offen{nt('w1')} lds
    s_mov_b32 m0, s14
    s_add_u32 s12, s12, {32*3456}
    s_add_u32 s14, s14, 1024
    buffer_load_dwordx4 v{t0}, s[60:63], s12 offen{nt('w1')} lds
    s_mov_b32 m0, s14
    s_add_u32 s12, s12, {32*3456}
    s_mov_b32 exec_hi, 0
    buffer_load_dwordx4 v{t0}, s[60:63], s12 offen{nt('w1')} lds
    s_mov_b32 exec_hi, -1
    s_mul_i32 s12, s11, 640           ; f0*1280
    s_mul_i32 s15, s3, 160
    s_add_u32 s12, s12, s15
    s_add_u32 s14, s13, {W2L}
    s_mov_b32 m0, s14
    s_add_u32 s14, s14, 1024
    buffer_load_dwordx4 v{o10}, s[64:67], s12 offen{nt('w2')} lds
    s_mov_b32 m0, s14
    s_add_u32 s14, s14, 1024
    buffer_load_dwordx4 v{o10+1}, s[64:67], s12 offen{nt('w2')} lds
    s_mov_b32 m0, s14
    s_mov_b32 exec_hi, 0
    buffer_load_dwordx4 v{o10+2}, s[64:67], s12 offen{nt('w2')} lds
    s_mov_b32 exec_hi, -1
    """)
    p_tail(6)
    a("s_branch L_b1done\nL_nob1:")
    p_tail(0)
    a("L_b1done:")
    stamp(2)
    a(f"v_cvt_pk_bf16_f32 v{qp}, v{Dq}, v{Dq+1}\nv_cvt_pk_bf16_f32 v{qp+1}, v{Dq+2}, v{Dq+3}")
    setexec(0xFF00FF0000FF00FF)
    a(f"ds_write_b64 v{vPw}, {vr(qp,2)} offset:{PQ}")
    setexec(-1)
    a(f"""
    s_mov_b32 s12, {hex(f2u(128**-0.5 * math.log2(math.e)))}
    s_waitcnt lgkmcnt(0)
    s_barrier
    ds_read_b128 {vr(qf,4)}, v{vPr} offset:{PQ}
    ds_read_b128 {vr(qf+4,4)}, v{vPr+1} offset:{PQ}
    s_waitcnt lgkmcnt(1)
    v_mfma_f32_16x16x32_bf16 {vr(Dq,4)}, {vr(qf,4)}, {vr(WK,4)}, 0
    v_mfma_f32_16x16x32_bf16 {vr(acc,4)}, {vr(qf,4)}, {vr(WK+8,4)}, 0
    s_waitcnt lgkmcnt(0)
    v_mfma_f32_16x16x32_bf16 {vr(Dq,4)}, {vr(qf+4,4)}, {vr(WK+4,4)}, {vr(Dq,4)}
    v_mfma_f32_16x16x32_bf16 {vr(acc,4)}, {vr(qf+4,4)}, {vr(WK+12,4)}, {vr(acc,4)}
    v_add_f32 v{Dq}, v{Dq}, v{Dq+1}
    v_add_f32 v{Dq+2}, v{Dq+2}, v{Dq+3}
    v_add_f32 v{acc}, v{acc}, v{acc+1}
    v_add_f32 v{acc+2}, v{acc+2}, v{acc+3}
    v_add_f32 v{Dq}, v{Dq}, v{Dq+2}
    v_add_f32 v{acc}, v{acc}, v{acc+2}
    v_permlane32_swap_b32 v{Dq}, v{acc}
    v_add_f32 v{Dq}, v{Dq}, v{acc}
    v_mul_f32 v{Dq}, s12, v{Dq}
    v_mov_b32 v{acc}, v{Dq}
    v_permlane16_swap_b32 v{Dq}, v{acc}
    v_add_f32 v{Dq}, v{Dq}, v{acc}
    v_mov_b32_dpp v{acc}, v{Dq} quad_perm:[1,0,3,2] {DPPM}
    v_cvt_pk_bf16_f32 v{Dq}, v{Dq}, v{acc}
    """)
    setexec(0x0000555500005555)
    a(f"global_store_dword v{vQs}, v{Dq}, s[40:41] offset:{QA_OFF} sc1")
    setexec(-1)
    stamp(3)
    if o.get("po_exit"): a("s_branch L_fin")
    a(f"""
    v_mul_u32_u24 v{t0}, 40, v{vG}
    s_mul_i32 s12, s3, 160
    v_add_u32 v{t0}, s12, v{t0}
    v_mul_u32_u24 v{t1}, 20, v{vL}
    global_load_dwordx4 {vr(xf,4)}, v{t0}, s[16:17]
    global_load_dwordx4 {vr(xf+4,4)}, v{t0}, s[16:17] offset:16
    global_load_dwordx2 {vr(xf+8,2)}, v{t0}, s[16:17] offset:32
    s_cmp_lg_u32 s3, 7
    s_cbranch_scc1 L_nog1
    global_load_dwordx4 {vr(gx,4)}, v{t1}, s[16:17]
    global_load_dword v{gx+4}, v{t1}, s[16:17] offset:16
    global_load_dwordx4 {vr(gg,4)}, v{t1}, s[34:35]
    global_load_dword v{gg+4}, v{t1}, s[34:35] offset:16
    L_nog1:
    v_lshrrev_b32 v{t0}, 2, v{vL}
    v_lshlrev_b32 v{t0}, 13, v{t0}
    v_and_b32 v{t1}, 3, v{vL}
    v_lshl_add_u32 v{t0}, v{t1}, 4, v{t0}
    s_lshl_b32 s12, s3, 19
    s_lshl_b32 s13, s6, 8
    s_add_u32 s12, s12, s13
    s_lshl_b32 s13, s7, 6
    s_add_u32 s12, s12, s13
    s_lshl_b32 s14, s3, 12
    s_add_u32 s14, s14, {WUVL}
    """)
    for j in range(4):
        a(f"s_mov_b32 m0, s14\ns_add_u32 s14, s14, 1024\nbuffer_load_dwordx4 v{t0}, s[52:55], s12 offen{nt('wuv')} lds\ns_add_u32 s12, s12, {16*8192}")
    a(f"""
    s_lshl_b32 s12, s6, 2
    s_add_u32 s12, s12, s7
    s_mul_i32 s12, s12, {32*1280}
    s_mul_i32 s13, s3, 160
    s_add_u32 s12, s12, s13
    s_mul_i32 s14, s3, 5120
    s_add_u32 s14, s14, {WOL}
    """)
    for j in range(5):
        a(f"s_mov_b32 m0, s14\ns_add_u32 s14, s14, 1024\nbuffer_load_dwordx4 v{o10+j}, s[56:59], s12 offen{nt('wo')} lds")
    for i in range(20): a(f"v_mov_b32 v{OUT+i}, 0")
    a("s_waitcnt vmcnt(9)")
    a(f"s_cmp_lg_u32 s3, 7\ns_cbranch_scc1 L_nog2\nv_mov_b32 v{t3}, 0")
    for i in range(5):
        a(f"""
        v_lshlrev_b32 v{t0}, 16, v{gx+i}
        v_lshlrev_b32 v{t1}, 16, v{gg+i}
        v_mul_f32 v{t0}, v{t0}, v{t1}
        v_and_b32 v{t1}, 0xffff0000, v{gx+i}
        v_and_b32 v{t2}, 0xffff0000, v{gg+i}
        v_mul_f32 v{t1}, v{t1}, v{t2}
        v_cvt_pk_bf16_f32 v{t0}, v{t0}, v{t1}
        v_lshlrev_b32 v{t1}, 16, v{t0}
        v_and_b32 v{t0}, 0xffff0000, v{t0}
        v_add_f32 v{t3}, v{t3}, v{t1}
        v_add_f32 v{t3}, v{t3}, v{t0}
        """)
    for d in ("row_ror:1", "row_ror:2", "row_ror:4", "row_ror:8"):
        a(f"v_add_f32_dpp v{t3}, v{t3}, v{t3} {d} {DPPM}")
    xrow("v_add_f32", t3, t0)
    a(f"""
    v_cvt_pk_bf16_f32 v{t3}, v{t3}, v{t3}
    v_and_b32 v{t3}, 0xffff0000, v{t3}
    v_mul_f32 v{t3}, {hex(f2u(-math.log2(math.e)))}, v{t3}
    v_exp_f32 v{t3}, v{t3}
    v_add_f32 v{t3}, 1.0, v{t3}
    v_rcp_f32 v{t3}, v{t3}
    v_cvt_pk_bf16_f32 v{t0}, v{t3}, v{t3}
    v_and_b32 v{t0}, 0xffff0000, v{t0}
    v_sub_f32 v{t1}, 1.0, v{t0}
    v_cvt_pk_bf16_f32 v{t1}, v{t1}, v{t1}
    v_and_b32 v{t1}, 0xffff0000, v{t1}
    v_mov_b32 v{t2}, {GT}
    ds_write_b64 v{t2}, v[{t0}:{t1}]
    L_nog2:
    s_cmp_ge_u32 s6, 27
    s_cbranch_scc1 L_nof1
    """)
    A1 = Y; A2 = Y + 10; D1 = Dq
    a(f"""
    v_mul_u32_u24 v{t0}, 640, v{vG}
    v_lshl_add_u32 v{t0}, v{vN}, 3, v{t0}
    s_mul_i32 s13, s3, 2560
    v_add_u32 v{t0}, s13, v{t0}
    v_lshrrev_b32 v{t1}, 2, v{vL}
    v_mul_u32_u24 v{t1}, 160, v{t1}
    v_and_b32 v{t2}, 3, v{vL}
    v_lshl_add_u32 v{t1}, v{t2}, 3, v{t1}
    v_add_u32 v{t1}, s13, v{t1}
    """)
    for t in range(5): a(f"ds_read_b64_tr_b16 {vr(A1+2*t,2)}, v{t0} offset:{W1L+128*t}")
    for T in range(5): a(f"ds_read_b64_tr_b16 {vr(A2+2*T,2)}, v{t1} offset:{W2L+32*T}")
    a("s_waitcnt lgkmcnt(5)")
    for t in range(5):
        a(f"v_mfma_f32_16x16x16_bf16 {vr(D1,4)}, {vr(A1+2*t,2)}, {vr(xf+2*t,2)}, {'0' if t == 0 else vr(D1,4)}")
    a(f"s_lshl_b32 s12, s3, 6\nv_lshl_add_u32 v{t0}, v{vG}, 4, s12")
    setexec(0x0001000100010001)
    a(f"ds_write_b128 v{t0}, {vr(D1,4)} offset:{HS}")
    setexec(-1)
    HP = WQ + 8
    a(f"""
    L_nof1:
    s_waitcnt lgkmcnt(0)
    s_barrier
    v_mov_b32 v{t2}, {GT}
    ds_read_b64 {vr(ml,2)}, v{t2}
    v_lshlrev_b32 v{t0}, 4, v{vG}
    s_cmp_ge_u32 s6, 27
    s_cbranch_scc1 L_nof2
    """)
    for w in range(8): a(f"ds_read_b128 {vr(HP+4*w,4)}, v{t0} offset:{HS+64*w}")
    a("s_waitcnt lgkmcnt(0)")
    for w in range(1, 8):
        for r in range(4): a(f"v_add_f32 v{HP+r}, v{HP+r}, v{HP+4*w+r}")
    a(f"""
    v_cvt_pk_bf16_f32 v{qp}, v{HP}, v{HP+1}
    v_cvt_pk_bf16_f32 v{qp+1}, v{HP+2}, v{HP+3}
    v_lshlrev_b32 v{qf}, 16, v{qp}
    v_and_b32 v{qf+1}, 0xffff0000, v{qp}
    v_lshlrev_b32 v{qf+2}, 16, v{qp+1}
    v_and_b32 v{qf+3}, 0xffff0000, v{qp+1}
    """)
    for r in range(4): a(f"v_mul_f32 v{qf+4+r}, {hex(f2u(-math.log2(math.e)))}, v{qf+r}")
    for r in range(4): a(f"v_exp_f32 v{qf+4+r}, v{qf+4+r}")
    for r in range(4): a(f"v_add_f32 v{qf+4+r}, 1.0, v{qf+4+r}")
    for r in range(4): a(f"v_rcp_f32 v{qf+4+r}, v{qf+4+r}")
    for r in range(4): a(f"v_mul_f32 v{qf+r}, v{qf+r}, v{qf+4+r}")
    a(f"v_cvt_pk_bf16_f32 v{qp}, v{qf}, v{qf+1}\nv_cvt_pk_bf16_f32 v{qp+1}, v{qf+2}, v{qf+3}")
    for T in range(5): a(f"v_mfma_f32_16x16x16_bf16 {vr(OUT+4*T,4)}, {vr(A2+2*T,2)}, {vr(qp,2)}, 0")
    for i in range(20): a(f"v_mul_f32 v{OUT+i}, v{ml+1}, v{OUT+i}")
    a(f"L_nof2:\ns_waitcnt lgkmcnt(0)\nv_mov_b32 v{vScale}, v{ml}")
    stamp(4)
    a(f"""
    v_and_b32 v{t0}, 1, v{vG}
    v_lshlrev_b32 v{t0}, 11, v{t0}           ; 32*(g&1)*64
    v_lshrrev_b32 v{t1}, 1, v{vG}
    v_lshl_add_u32 v{t0}, v{t1}, 8, v{t0}    ; 4*(g>>1)*64
    v_bfe_u32 v{t1}, v{vL}, 2, 2
    v_lshl_add_u32 v{t0}, v{t1}, 6, v{t0}    ; r*64
    v_and_b32 v{t2}, 3, v{vL}
    v_lshl_add_u32 v{t0}, v{t2}, 3, v{t0}    ; cc*8
    s_lshl_b32 s13, s3, 12
    s_add_u32 s13, s13, {WUVL}
    v_add_u32 v{t0}, s13, v{t0}
    v_lshrrev_b32 v{t1}, 2, v{vL}
    v_mul_u32_u24 v{t1}, 160, v{t1}
    v_lshl_add_u32 v{t1}, v{t2}, 3, v{t1}
    s_mul_i32 s13, s3, 5120
    s_add_u32 s13, s13, {WOL}
    v_add_u32 v{t1}, s13, v{t1}
    """)
    vML, vPB, vCW, vCR, vCT, vPC, vMS = WQ, WQ+1, WQ+2, WQ+3, WQ+4, WQ+5, WQ+6
    a(f"""
    v_and_b32 v{t2}, 3, v{vL}
    v_lshl_add_u32 v{t2}, v{vS}, 2, v{t2}
    s_lshr_b32 s12, s6, 3
    s_lshl_b32 s12, s12, 12
    s_and_b32 s13, s6, 7
    s_lshl_b32 s13, s13, 4
    s_add_u32 s12, s12, s13
    s_add_u32 s12, s12, {ML_OFF}
    v_lshl_add_u32 v{vML}, v{t2}, 7, s12
    s_lshl_b32 s12, s6, 15
    s_lshl_b32 s13, s3, 7
    s_add_u32 s12, s12, s13
    s_add_u32 s12, s12, {PB_OFF}
    v_lshl_add_u32 v{vPB}, v{vS}, 12, s12
    v_lshl_add_u32 v{vPB}, v{vE}, 4, v{vPB}
    s_lshl_b32 s12, s3, 8
    s_add_u32 s12, s12, {CC}
    v_lshrrev_b32 v{t2}, 1, v{vG}
    v_lshl_add_u32 v{vCW}, v{t2}, 7, s12
    v_lshl_add_u32 v{vCW}, v{vE}, 4, v{vCW}
    v_and_b32 v{t2}, 1, v{vG}
    v_lshl_add_u32 v{vCW}, v{t2}, 3, v{vCW}
    v_and_b32 v{t2}, 1, v{vL}
    v_lshl_add_u32 v{vCR}, v{t2}, 7, s12
    v_lshl_add_u32 v{vCR}, v{vG}, 4, v{vCR}
    s_lshl_b32 s12, s3, 6
    v_lshl_add_u32 v{vCT}, v{t2}, 5, s12          ; p*32
    v_lshl_add_u32 v{vCT}, v{vG}, 3, v{vCT}
    v_bfe_u32 v{t2}, v{vL}, 1, 1
    v_lshl_add_u32 v{vCT}, v{t2}, 9, v{vCT}
    v_cmp_eq_u32 s[68:69], 1, v{t2}
    s_mul_i32 s12, s2, 2560
    s_mul_i32 s13, s3, 320
    s_add_u32 s12, s12, s13
    s_add_u32 s12, s12, {PC_OFF}
    v_lshl_add_u32 v{vPC}, v{vG}, 4, s12
    v_lshlrev_b32 v{vMS}, 3, v{vL}
    s_waitcnt vmcnt(0)
    """)
    stamp(5)
    for ks in range(2):
        for Td in range(2):
            for aa in range(2):
                a(f"ds_read_b64_tr_b16 {vr(AUV+8*ks+4*Td+2*aa,2)}, v{t0} offset:{aa*1024+ks*512+Td*32}")
    a("s_waitcnt lgkmcnt(4)")
    for T in range(5):
        for aa in range(2):
            a(f"ds_read_b64_tr_b16 {vr(AO+4*T+2*aa,2)}, v{t1} offset:{aa*2560+T*32}")
    a(f"""
    s_cmp_lg_u32 s3, 0
    s_cbranch_scc1 L_mlw
    s_mov_b32 s13, 0
    L_mlp:
    global_load_dwordx4 {vr(ml,4)}, v{vML}, s[40:41] sc1
    s_add_u32 s13, s13, 1
    s_waitcnt vmcnt(0)
    v_cmp_ne_u64 vcc, {TAG}, {vr(ml+2,2)}
    """)
    spin_tail("L_mlp", "L_mlo")
    a(f"""
    ds_write_b64 v{vMS}, {vr(ml,2)} offset:{MLS}
    L_mlw:
    s_waitcnt lgkmcnt(0)
    s_barrier
    """)
    stamp(6)
    for u in range(4): a(f"global_load_dwordx4 {vr(PBR+4*u,4)}, v{vPB}, s[40:41] offset:{1024*u} sc1")
    a(f"""
    ds_read_b64 {vr(ml,2)}, v{vMS} offset:{MLS}
    s_waitcnt lgkmcnt(0)
    v_max_f32_dpp v{t0}, v{ml}, v{ml} quad_perm:[1,0,3,2] {DPPM}
    v_max_f32_dpp v{t0}, v{t0}, v{t0} quad_perm:[2,3,0,1] {DPPM}
    v_max_f32_dpp v{t0}, v{t0}, v{t0} row_ror:8 {DPPM}
    """)
    xrow("v_max_f32", t0, t1)
    a(f"""
    v_sub_f32 v{t0}, v{ml}, v{t0}
    v_exp_f32 v{t0}, v{t0}
    v_cvt_pk_bf16_f32 v{t2}, v{t0}, v{t0}
    v_mul_f32 v{t0}, v{t0}, v{ml+1}
    """)
    for u in range(4):
        for r in range(4):
            a(f"v_and_b32_dpp v{YW+4*u+r}, v{t2}, v{msk+r} quad_perm:[{u},{u},{u},{u}] {DPPM}")
    a(f"""
    v_add_f32_dpp v{t0}, v{t0}, v{t0} quad_perm:[1,0,3,2] {DPPM}
    v_add_f32_dpp v{t0}, v{t0}, v{t0} quad_perm:[2,3,0,1] {DPPM}
    v_add_f32_dpp v{t0}, v{t0}, v{t0} row_ror:8 {DPPM}
    """)
    xrow("v_add_f32", t0, t1)
    a(f"""
    v_rcp_f32 v{t0}, v{t0}
    v_mul_f32 v{vScale}, v{vScale}, v{t0}
    s_mov_b32 s13, 0
    s_branch L_pbc
    L_pbp:
    """)
    for u in range(4): a(f"global_load_dwordx4 {vr(PBR+4*u,4)}, v{vPB}, s[40:41] offset:{1024*u} sc1")
    a("L_pbc:\ns_add_u32 s13, s13, 1\ns_waitcnt vmcnt(0)")
    maxtree(t2, range(PBR, PBR+16))
    a(f"v_cmp_eq_u32 vcc, -1, v{t2}")
    spin_tail("L_pbp", "L_pbo")
    stamp(7)
    for u in range(4):
        a(f"v_mfma_f32_16x16x32_bf16 {vr(Dq,4)}, {vr(YW+4*u,4)}, {vr(PBR+4*u,4)}, {'0' if u == 0 else vr(Dq,4)}")
    for r in range(4): a(f"v_mul_f32 v{Dq+r}, v{vScale}, v{Dq+r}")
    a(f"v_cvt_pk_bf16_f32 v{qp}, v{Dq}, v{Dq+1}\nv_cvt_pk_bf16_f32 v{qp+1}, v{Dq+2}, v{Dq+3}")
    setexec(0xFF00FF0000FF00FF)
    a(f"ds_write_b64 v{vCW}, {vr(qp,2)}")
    setexec(-1)
    a(f"""
    s_waitcnt lgkmcnt(0)
    ds_read_b128 {vr(qf,4)}, v{vCR}
    ds_read_b128 {vr(qf+4,4)}, v{vCR} offset:64
    s_waitcnt lgkmcnt(1)
    v_mfma_f32_16x16x32_bf16 {vr(Dq,4)}, {vr(AUV,4)}, {vr(qf,4)}, 0
    v_mfma_f32_16x16x32_bf16 {vr(acc,4)}, {vr(AUV+4,4)}, {vr(qf,4)}, 0
    s_waitcnt lgkmcnt(0)
    v_mfma_f32_16x16x32_bf16 {vr(Dq,4)}, {vr(AUV+8,4)}, {vr(qf+4,4)}, {vr(Dq,4)}
    v_mfma_f32_16x16x32_bf16 {vr(acc,4)}, {vr(AUV+12,4)}, {vr(qf+4,4)}, {vr(acc,4)}
    v_cvt_pk_bf16_f32 v{qp}, v{Dq}, v{Dq+1}
    v_cvt_pk_bf16_f32 v{qp+1}, v{Dq+2}, v{Dq+3}
    v_cvt_pk_bf16_f32 v{qp+2}, v{acc}, v{acc+1}
    v_cvt_pk_bf16_f32 v{qp+3}, v{acc+2}, v{acc+3}
    v_cndmask_b32 v{qp}, v{qp}, v{qp+2}, s[68:69]
    v_cndmask_b32 v{qp+1}, v{qp+1}, v{qp+3}, s[68:69]
    """)
    setexec(0x000F000F000F000F)
    a(f"ds_write_b64 v{vCT}, {vr(qp,2)} offset:{CP}")
    setexec(-1)
    a(f"""
    s_waitcnt lgkmcnt(0)
    s_barrier
    ds_read_b64_tr_b16 {vr(qf,2)}, v{vMS} offset:{CP}
    ds_read_b64_tr_b16 {vr(qf+2,2)}, v{vMS} offset:{CP+512}
    s_waitcnt lgkmcnt(1)
    v_mfma_f32_16x16x16_bf16 {vr(Dq,4)}, {vr(qf,2)}, {vr(ones,2)}, 0
    s_waitcnt lgkmcnt(0)
    v_mfma_f32_16x16x16_bf16 {vr(acc,4)}, {vr(qf+2,2)}, {vr(ones,2)}, 0
    v_cvt_pk_bf16_f32 v{qp}, v{Dq}, v{Dq+1}
    v_cvt_pk_bf16_f32 v{qp+1}, v{Dq+2}, v{Dq+3}
    v_cvt_pk_bf16_f32 v{qp+2}, v{acc}, v{acc+1}
    v_cvt_pk_bf16_f32 v{qp+3}, v{acc+2}, v{acc+3}
    """)
    for T in range(5): a(f"v_mfma_f32_16x16x32_bf16 {vr(OUT+4*T,4)}, {vr(AO+4*T,4)}, {vr(qp,4)}, {vr(OUT+4*T,4)}")
    setexec(0x0001000100010001)
    for T in range(5): a(f"global_store_dwordx4 v{vPC}, {vr(OUT+4*T,4)}, s[40:41] offset:{64*T} sc1")
    setexec(-1)
    stamp(8)
    a("s_branch L_fin")
    po_v = V.n
    V = VA(5)
    vFL = V()
    t0, t1, t2, t3 = V(1, 2), V(), V(), V()
    CK = V(64, 2); CV = V(64, 2)
    QB = V(64, 2)
    SV = QB; U = QB + 16; W = QB + 24; DP = QB + 32
    ff = QB
    DS = V(4, 2)
    ba = V(8); vPBs = V(); vMLs = V(); vq = V(); vqw = V(2); vqr = V(2); vSa = V(); ml = V(4, 2)
    CKV, QAS, SL = 0, 131072, 147456
    a(f"""
    L_roleA:
    s_sub_u32 s6, s5, 16
    s_lshr_b32 s6, s6, 2
    s_lshl_b32 s6, s6, 3
    s_add_u32 s6, s6, s4              ; chunk
    s_and_b32 s7, s5, 3               ; grp
    v_mov_b32 v{ff}, -1
    v_mov_b32 v{ff+1}, -1
    v_mov_b32 v{ff+2}, -1
    v_mov_b32 v{ff+3}, -1
    s_lshl_b32 s8, s7, 3
    s_add_u32 s8, s8, s3
    s_lshl_b32 s8, s8, 15
    s_lshl_b32 s9, s6, 10
    s_add_u32 s8, s8, s9
    s_add_u32 s8, s8, {PB_OFF}
    v_lshl_add_u32 v{t0}, v{vL}, 4, s8
    s_lshl_b32 s8, s6, 17
    s_lshl_b32 s9, s3, 14
    s_add_u32 s8, s8, s9
    v_lshlrev_b32 v{t3}, 4, v{vL}
    """)
    for k in range(8): a(f"v_xor_b32 v{ba+k}, {32*k}, v{t3}")
    a(f"""
    s_waitcnt lgkmcnt(0)
    s_load_dwordx2 {TAG}, s[40:41], {EP_OFF}
    global_store_dwordx4 v{t0}, {vr(ff,4)}, s[40:41] sc1
    """)
    srd(44, 18, SZ['ckv'])
    if o.get("ckv_late"): a("s_waitcnt vmcnt(0)")
    stamp(1)
    if o.get("a_exit1"): a("s_branch L_fin")
    for k in range(16):
        a(f"s_mov_b32 m0, s9\ns_add_u32 s9, s9, 1024\nbuffer_load_dwordx4 v{ba+(k&7)}, s[44:47], s8 offen{nt('ckv')} lds\ns_add_u32 s8, s8, 1024")
    a(f"""
    s_lshl_b32 s10, s7, 5
    s_add_u32 s10, s10, s6
    s_lshl_b32 s10, s10, 7
    s_add_u32 s10, s10, {ML_OFF}
    s_lshl_b32 s11, s7, 14
    s_lshl_b32 s12, s3, 11
    s_add_u32 s11, s11, s12
    v_lshl_add_u32 v{vq}, v{vL}, 4, s11
    s_lshl_b32 s11, s7, 12
    s_add_u32 s11, s11, {FL_OFF}
    v_and_b32 v{t0}, 31, v{vL}
    v_lshl_add_u32 v{vFL}, v{t0}, 7, s11
    s_lshl_b32 s9, s3, 14
    v_lshl_add_u32 v{t0}, v{vN}, 10, s9
    v_lshlrev_b32 v{t1}, 1, v{vE}
    v_xor_b32 v{t1}, v{t1}, v{vG}             ; g ^ 2(i&7)
    """)
    for q in range(4):
        a(f"v_xor_b32 v{t2}, {4*q}, v{t1}\nv_lshl_add_u32 v{ba+q}, v{t2}, 4, v{t0}")
    a(f"""
    s_lshl_b32 s9, s3, 1
    v_xor_b32 v{t0}, s9, v{vE}
    v_lshlrev_b32 v{t1}, 8, v{vL}
    v_lshl_add_u32 v{vqw}, v{t0}, 4, v{t1}
    v_add_u32 v{vqw}, {QAS}, v{vqw}
    v_xor_b32 v{vqw+1}, 16, v{vqw}
    v_xor_b32 v{t0}, v{vN}, v{vG}
    v_lshlrev_b32 v{t1}, 8, v{vG}
    v_lshl_add_u32 v{vqr}, v{t0}, 4, v{t1}
    v_add_u32 v{vqr}, {QAS}, v{vqr}
    v_xor_b32 v{vqr+1}, 64, v{vqr}
    v_lshlrev_b32 v{vSa}, 4, v{vL}
    v_add_u32 v{vSa}, {SL}, v{vSa}
    v_lshrrev_b32 v{t0}, 1, v{vN}
    s_lshl_b32 s8, s7, 18
    s_lshl_b32 s9, s6, 10
    s_add_u32 s8, s8, s9
    s_lshl_b32 s9, s3, 7
    s_add_u32 s8, s8, s9
    s_add_u32 s8, s8, {PB_OFF}
    v_lshl_add_u32 v{vPBs}, v{t0}, 15, s8
    v_lshl_add_u32 v{vPBs}, v{vG}, 5, v{vPBs}
    v_and_b32 v{t1}, 1, v{vL}
    v_lshl_add_u32 v{vPBs}, v{t1}, 4, v{vPBs}
    v_lshl_add_u32 v{vMLs}, v{t0}, 4, s10
    v_cmp_eq_u32 s[68:69], 1, v{t1}
    s_waitcnt lgkmcnt(0)
    """)
    mktag()
    a(f"""
    v_mov_b32 v{ml+2}, s70
    v_mov_b32 v{ml+3}, s71
    s_cmp_lg_u32 s3, 0
    s_cbranch_scc1 L_nofa
    s_mov_b32 s13, 0
    L_fap:
    global_load_dwordx2 {vr(ml,2)}, v{vFL}, s[40:41] sc1
    s_add_u32 s13, s13, 1
    s_waitcnt vmcnt(0)
    v_cmp_ne_u64 vcc, {TAG}, {vr(ml,2)}
    """)
    spin_tail("L_fap", "L_nofa")
    a("s_waitcnt vmcnt(0)")
    stamp(2)
    for t in range(16):
        a(f"ds_read_b128 {vr(CK+4*t,4)}, v{ba+(t&3)} offset:{256*(t>>2)}")
        if t == 11: a("s_waitcnt lgkmcnt(6)")
    a(f"""
    v_lshrrev_b32 v{t0}, 2, v{vL}             ; 4g+r
    v_and_b32 v{t1}, 7, v{t0}                 ; key&7
    v_lshlrev_b32 v{t0}, 10, v{t0}
    v_and_b32 v{t2}, 3, v{vL}
    v_lshl_add_u32 v{t0}, v{t2}, 3, v{t0}
    s_lshr_b32 s8, s3, 1
    s_lshl_b32 s8, s8, 8
    v_add_u32 v{t0}, s8, v{t0}
    s_and_b32 s8, s3, 1
    s_lshl_b32 s8, s8, 2
    v_xor_b32 v{t1}, s8, v{t1}
    """)
    for T in range(4):
        a(f"v_xor_b32 v{t2}, {T}, v{t1}\nv_lshl_add_u32 v{ba+T}, v{t2}, 5, v{t0}\nv_add_u32 v{ba+4+T}, 0x10000, v{ba+T}")
    a("s_barrier")
    def qa_loads():
        a(f"global_load_dwordx4 {vr(QB,4)}, v{vq}, s[40:41] offset:{QA_OFF} sc1")
        a(f"global_load_dwordx4 {vr(QB+4,4)}, v{vq}, s[40:41] offset:{QA_OFF+1024} sc1")
    qa_loads()
    for T in range(4):
        a("s_waitcnt lgkmcnt(4)")
        for t in range(4):
            for aa in range(2):
                off = (32*t + 16*aa) * 1024
                a(f"ds_read_b64_tr_b16 {vr(CV+16*T+4*t+2*aa,2)}, v{ba+T+4*(off>>16)} offset:{off & 0xffff}")
    stamp(3)
    if o.get("a_exit2"): a("s_branch L_fin")
    a("s_mov_b32 s13, 0\ns_branch L_qac\nL_qap:")
    qa_loads()
    a("L_qac:\ns_add_u32 s13, s13, 1\ns_waitcnt vmcnt(0)")
    maxtree(t2, range(QB, QB+8))
    a(f"v_cmp_eq_u32 vcc, -1, v{t2}")
    spin_tail("L_qap", "L_qao")
    a(f"""
    ds_write_b128 v{vqw}, {vr(QB,4)}
    ds_write_b128 v{vqw+1}, {vr(QB+4,4)}
    s_waitcnt lgkmcnt(0)
    s_barrier
    """)
    stamp(4)
    if DEV: a("s_waitcnt lgkmcnt(0)")
    def qread(t): a(f"ds_read_b128 {vr(QB+4*t,4)}, v{vqr+(t&1)} offset:{1024*t}")
    PRE = 12
    for t in range(PRE): qread(t)
    for t in range(16):
        issued = min(16, PRE + t)
        a(f"s_waitcnt lgkmcnt({issued - t - 1})")
        a(f"v_mfma_f32_16x16x32_bf16 {vr(DS,4)}, {vr(CK+4*t,4)}, {vr(QB+4*t,4)}, {'0' if t == 0 else vr(DS,4)}")
        if t + PRE < 16: qread(t + PRE)
    a(f"""
    s_and_b32 s8, s3, 3
    s_lshl_b32 s8, s8, 10
    v_add_u32 v{t0}, s8, v{vSa}
    s_lshr_b32 s9, s3, 2
    s_lshl_b32 s8, 0x55555555, s9
    """)
    for r in range(4): a(f"v_add_f32_dpp v{DS+r}, v{DS+r}, v{DS+r} quad_perm:[1,0,3,2] {DPPM}")
    a(f"""
    s_mov_b32 exec_lo, s8
    s_mov_b32 exec_hi, s8
    ds_write_b128 v{t0}, {vr(DS,4)}
    s_mov_b64 exec, -1
    s_waitcnt lgkmcnt(0)
    s_barrier
    """)
    for q in range(4): a(f"ds_read_b128 {vr(SV+4*q,4)}, v{vSa} offset:{1024*q}")
    stamp(5)
    a("s_waitcnt lgkmcnt(0)")
    a(f"v_max3_f32 v{t0}, v{SV}, v{SV+1}, v{SV+2}\nv_max3_f32 v{t1}, v{SV+3}, v{SV+4}, v{SV+5}")
    for i in range(6, 14, 4):
        a(f"v_max3_f32 v{t0}, v{t0}, v{SV+i}, v{SV+i+1}\nv_max3_f32 v{t1}, v{t1}, v{SV+i+2}, v{SV+i+3}")
    a(f"""
    v_max3_f32 v{t0}, v{t0}, v{SV+14}, v{SV+15}
    v_max_f32 v{t0}, v{t0}, v{t1}
    v_max_f32_dpp v{t0}, v{t0}, v{t0} quad_perm:[1,0,3,2] {DPPM}
    """)
    xrow("v_max_f32", t0, t1)
    a(f"v_ceil_f32 v{ml}, v{t0}")
    for i in range(16): a(f"v_sub_f32 v{SV+i}, v{SV+i}, v{ml}")
    for i in range(16): a(f"v_exp_f32 v{SV+i}, v{SV+i}")
    a("s_cmp_lg_u32 s3, 0\ns_cbranch_scc1 L_nol")
    a(f"v_add_f32 v{t0}, v{SV}, v{SV+1}\nv_add_f32 v{t1}, v{SV+2}, v{SV+3}")
    for i in range(4, 16, 2): a(f"v_add_f32 v{t0}, v{t0}, v{SV+i}\nv_add_f32 v{t1}, v{t1}, v{SV+i+1}")
    a(f"""
    v_add_f32 v{ml+1}, v{t0}, v{t1}
    v_add_f32_dpp v{ml+1}, v{ml+1}, v{ml+1} quad_perm:[1,0,3,2] {DPPM}
    """)
    xrow("v_add_f32", ml+1, t1)
    a(f"""
    s_mov_b64 exec, 0x5555
    global_store_dwordx4 v{vMLs}, {vr(ml,4)}, s[40:41] sc1
    s_mov_b64 exec, -1
    L_nol:
    """)
    for i in range(8): a(f"v_cvt_pk_bf16_f32 v{U+i}, v{SV+2*i}, v{SV+2*i+1}")
    for i in range(8): a(f"v_mov_b32_dpp v{W+i}, v{U+i} quad_perm:[1,0,3,2] {DPPM}")
    order = []
    for j in range(2):
        for T in range(4): order.append((T, (0 if T < 2 else 2) + j, U + 4*j))
    for j in range(2):
        for T in range(4): order.append((T, (2 if T < 2 else 0) + j, W + 4*j))
    seen = set()
    for T, t, b in order:
        a(f"v_mfma_f32_16x16x32_bf16 {vr(DP+4*T,4)}, {vr(CV+16*T+4*t,4)}, {vr(b,4)}, {vr(DP+4*T,4) if T in seen else '0'}")
        seen.add(T)
    for i in range(8): a(f"v_cvt_pk_bf16_f32 v{U+i}, v{DP+2*i}, v{DP+2*i+1}")
    for i in range(4): a(f"v_cndmask_b32 v{U+i}, v{U+i}, v{U+4+i}, s[68:69]")
    a(f"global_store_dwordx4 v{vPBs}, {vr(U,4)}, s[40:41] sc1")
    stamp(6)
    a(f"""
    s_cmp_lg_u32 s3, 0
    s_cbranch_scc1 L_fin
    s_cmp_ge_u32 s6, 20
    s_cbranch_scc1 L_fin
    s_lshl_b32 s8, s6, 2
    s_add_u32 s8, s8, s7
    v_lshrrev_b32 v{t0}, 1, v{vL}
    v_mul_u32_u24 v{t0}, 2560, v{t0}
    v_and_b32 v{t1}, 1, v{vL}
    v_lshl_add_u32 v{t0}, v{t1}, 4, v{t0}
    s_lshl_b32 s9, s8, 5
    s_add_u32 s9, s9, {PC_OFF}
    v_add_u32 v{ba}, s9, v{t0}
    v_add_u32 v{ba+1}, {32*2560}, v{ba}
    v_add_u32 v{ba+2}, {64*2560}, v{ba}
    v_add_u32 v{ba+3}, {96*2560}, v{ba}
    s_lshl_b32 s9, s8, 4
    v_lshl_add_u32 v{ba+4}, v{t1}, 3, s9
    v_lshl_add_u32 v{ba+4}, v{vG}, 1, v{ba+4}
    v_lshlrev_b32 v{t0}, 7, v{vL}
    v_add_u32 v{t0}, {FL_OFF}, v{t0}
    v_add_u32 v{t1}, 8192, v{t0}
    s_mov_b32 s13, 0
    L_frp:
    global_load_dwordx2 {vr(SV,2)}, v{t0}, s[40:41] sc1
    global_load_dwordx2 {vr(SV+2,2)}, v{t1}, s[40:41] sc1
    s_add_u32 s13, s13, 1
    s_waitcnt vmcnt(0)
    v_cmp_ne_u64 vcc, {TAG}, {vr(SV,2)}
    v_cmp_ne_u64 s[72:73], {TAG}, {vr(SV+2,2)}
    s_nop 1
    s_or_b64 vcc, vcc, s[72:73]
    """)
    spin_tail("L_frp", "L_fro")
    a("s_mov_b32 s13, 0\nL_pcp:")
    for j in range(4): a(f"global_load_dwordx4 {vr(SV+4*j,4)}, v{ba+j}, s[40:41] sc1")
    a("s_add_u32 s13, s13, 1\ns_waitcnt vmcnt(0)")
    maxtree(t2, range(SV, SV+16))
    a(f"v_cmp_eq_u32 vcc, -1, v{t2}")
    spin_tail("L_pcp", "L_pco")
    stamp(7)
    for r in range(4): a(f"v_add_f32 v{SV+r}, v{SV+r}, v{SV+4+r}\nv_add_f32 v{SV+8+r}, v{SV+8+r}, v{SV+12+r}")
    for r in range(4): a(f"v_add_f32 v{SV+r}, v{SV+r}, v{SV+8+r}")
    a(f"""
    v_permlane32_swap_b32 v{SV}, v{SV+2}
    v_permlane32_swap_b32 v{SV+1}, v{SV+3}
    v_add_f32 v{SV}, v{SV}, v{SV+2}
    v_add_f32 v{SV+1}, v{SV+1}, v{SV+3}
    v_permlane16_swap_b32 v{SV}, v{SV+1}
    v_add_f32 v{SV}, v{SV}, v{SV+1}
    v_add_f32_dpp v{SV}, v{SV}, v{SV} row_ror:8 {DPPM}
    v_add_f32_dpp v{SV}, v{SV}, v{SV} row_ror:4 {DPPM}
    v_add_f32_dpp v{SV}, v{SV}, v{SV} row_ror:2 {DPPM}
    v_cvt_pk_bf16_f32 v{SV}, v{SV}, v{SV}
    """)
    setexec(0x0003000300030003)
    a(f"global_store_short v{ba+4}, v{SV}, s[36:37]")
    a(f"""
    s_cmp_lg_u32 s8, 0
    s_cbranch_scc1 L_noep
    s_mov_b64 exec, 1
    v_mov_b32 v{t0}, {EP_OFF}
    global_store_dwordx2 v{t0}, {vr(ml+2,2)}, s[40:41]
    L_noep:
    """)
    setexec(-1)
    stamp(8)
    a("L_fin:")
    if DEV:
        a(f"""
        s_waitcnt vmcnt(0)
        s_memrealtime s[{80+2*9}:{81+2*9}]
        s_waitcnt lgkmcnt(0)
        s_lshl_b32 s7, s2, 3
        s_add_u32 s7, s7, s3
        s_mul_i32 s7, s7, {NST*4}
        s_add_u32 s7, s7, {STAMP_OFF}
        s_mov_b64 exec, 1
        v_mov_b32 v3, s7
        """)
        for i in range(NST):
            a(f"v_mov_b32 v4, s{80+2*i}\nglobal_store_dword v3, v4, s[40:41] offset:{4*i}")
    a("L_end:\ns_endpgm")
    lines = hazard.fix(a.lines)
    nv = max(po_v, V.n)
    return single("\n".join(lines) + "\n", 256, 512, 155648, vgpr=256, sgpr=102, accum=256), nv

if __name__ == "__main__":
    out = sys.argv[1]
    DEV = "dev" in sys.argv[2:]
    txt, nv = build(DEV, {k: True for k in sys.argv[2:]})
    open(out, "w").write(txt)
    print("vgprs", nv)
```

```python
import sys, math, struct
from genlib import *
import hazard

def f2u(x): return struct.unpack("<I", struct.pack("<f", x))[0]

QA_OFF, ML_OFF, FL_OFF, EP_OFF, PC_OFF, PB_OFF = 0x0, 0x10000, 0x14000, 0x18000, 0x20000, 0x100000
SPIN = 200000
DPPM = "row_mask:0xf bank_mask:0xf"

def build(DEV=False, opts=None):
    o = dict(opts or {})
    a = Asm()
    def nt(k): return "" if (o.get("nont") or o.get("nont_" + k)) else " nt"
    NST = 10
    probe = None
    for k in o:
        if k.startswith("probe"):
            _, role, idx, amp = k.split("_"); probe = (role, int(idx), int(amp))
    def stamp(i):
        if DEV or (probe and i in (0, probe[1])): a(f"s_memrealtime s[{80+2*i}:{81+2*i}]")
    class VA:
        def __init__(s, start): s.n = start
        def __call__(s, k=1, al=1):
            s.n = (s.n + al - 1) // al * al
            r = s.n; s.n += k
            assert s.n <= 256
            return r
    def vr(b, k): return f"v[{b}:{b+k-1}]"
    def srd(dst, src, size):
        a(f"s_mov_b32 s{dst}, s{src}\ns_mov_b32 s{dst+1}, s{src+1}\ns_mov_b32 s{dst+2}, {size}\ns_mov_b32 s{dst+3}, 0x20000")
    def setexec(mask):
        if mask == -1: a("s_mov_b64 exec, -1")
        elif mask < (1 << 31): a(f"s_mov_b64 exec, {hex(mask)}")
        else: a(f"s_mov_b32 exec_lo, {hex(mask & 0xffffffff)}\ns_mov_b32 exec_hi, {hex(mask >> 32)}")
    def maxtree(dst, rs):
        rs = list(rs)
        a(f"v_max3_u32 v{dst}, v{rs[0]}, v{rs[1]}, v{rs[2]}")
        rs = rs[3:]
        while len(rs) >= 2:
            a(f"v_max3_u32 v{dst}, v{dst}, v{rs[0]}, v{rs[1]}"); rs = rs[2:]
        if rs: a(f"v_max_u32 v{dst}, v{dst}, v{rs[0]}")
    def spin_tail(Lp, Lo):
        a(f"s_cmp_gt_u32 s13, {SPIN}\ns_cbranch_scc1 {Lo}\ns_cbranch_vccnz {Lp}\n{Lo}:")
    def xrow(op, x, t):
        a(f"""
        v_mov_b32 v{t}, v{x}
        v_permlane16_swap_b32 v{x}, v{t}
        {op} v{x}, v{x}, v{t}
        v_mov_b32 v{t}, v{x}
        v_permlane32_swap_b32 v{x}, v{t}
        {op} v{x}, v{x}, v{t}
        """)
    TAG = "s[70:71]"
    def mktag():
        a("s_add_u32 s70, s70, 1\ns_add_u32 s71, s71, 0x9e3779b9")

    if DEV or probe:
        for i in range(1, NST): a(f"s_mov_b32 s{80+2*i}, 0")
    stamp(0)
    a(f"""
    s_cmp_ge_u32 s2, 256
    s_cbranch_scc1 L_end
    s_load_dwordx16 s[16:31], s[0:1], 0
    s_load_dwordx8 s[32:39], s[0:1], 64
    s_load_dwordx2 s[40:41], s[0:1], 96
    v_lshrrev_b32 v1, 6, v0
    v_and_b32 v0, 63, v0
    v_readfirstlane_b32 s3, v1
    s_and_b32 s4, s2, 7
    s_lshr_b32 s5, s2, 3
    v_lshrrev_b32 v1, 3, v0
    v_and_b32 v2, 7, v0
    v_and_b32 v3, 15, v0
    v_lshrrev_b32 v4, 4, v0
    s_cmp_ge_u32 s5, 16
    s_cbranch_scc1 L_roleA
    """)
    vL, vS, vE, vN, vG = 0, 1, 2, 3, 4
    V = VA(5)
    vScale = V()
    t0, t1, t2, t3 = V(1, 2), V(), V(), V()
    vXo, vWo, vKo, vKo2 = V(), V(), V(), V()
    xd = V(5, 2)
    msk = V(4); selE = V(4); selO = V(4)
    Y = V(40, 2); WQ = V(40, 2); WK = V(16, 2)
    Dq = V(4, 2); qf = V(8, 2); qp = V(4, 2); acc = V(4, 2)
    o10 = V(5); xf = V(10, 2); gx = V(5, 2); gg = V(5, 2)
    OUT = V(20, 2)
    AUV = WQ + 8; AO = V(20, 2); ml = V(4, 2); YW = Y + 20; PBR = WQ + 24
    vPw, vPr, vQs = V(), V(2), V()
    ones = V(2, 2)
    PQ, HS, GT, MLS, CP, CC, WKL, W1L, W2L, WUVL, WOL = 0, 2048, 2560, 3072, 4096, 5120, 8192, 40960, 61440, 81920, 114688
    a(f"""
    s_lshr_b32 s6, s5, 2
    s_lshl_b32 s6, s6, 3
    s_add_u32 s6, s6, s4              ; h
    s_and_b32 s7, s5, 3               ; sub
    v_mul_u32_u24 v{vXo}, 20, v{vS}
    s_mul_i32 s8, s3, 160
    v_add_u32 v{vXo}, s8, v{vXo}
    v_mul_u32_u24 v{vWo}, 81920, v{vS}
    v_lshl_add_u32 v{vWo}, v{vE}, 4, v{vWo}
    v_xor_b32 v{t0}, v{vE}, v{vG}            ; pos ^ (s>>1)
    v_lshlrev_b32 v{vKo}, 13, v{vS}
    v_lshl_add_u32 v{vKo}, v{t0}, 4, v{vKo}
    v_xor_b32 v{vKo2}, 64, v{vKo}
    s_and_b32 s9, s7, 1
    s_lshl_b32 s9, s9, 7
    s_lshl_b32 s10, s6, 8
    s_add_u32 s9, s9, s10             ; h*256 + dh*128
    s_mul_i32 s8, s3, 655360
    s_add_u32 s8, s8, s9
    s_lshr_b32 s10, s7, 1
    s_lshl_b32 s10, s10, 21
    s_lshl_b32 s11, s3, 18
    s_add_u32 s10, s10, s11
    s_add_u32 s10, s10, s9
    s_lshl_b32 s11, s3, 12
    s_add_u32 s11, s11, {WKL}
    s_lshl_b32 s15, s6, 11
    s_and_b32 s13, s7, 1
    s_lshl_b32 s13, s13, 10
    s_add_u32 s15, s15, s13
    s_lshr_b32 s13, s7, 1
    s_lshl_b32 s13, s13, 9
    s_add_u32 s15, s15, s13
    s_mul_i32 s14, s2, 2560
    s_add_u32 s14, s14, {PC_OFF}
    s_cmp_lg_u32 s3, 0
    s_waitcnt lgkmcnt(0)
    s_cbranch_scc1 L_noclr
    s_load_dwordx2 {TAG}, s[40:41], {EP_OFF}
    v_mov_b32 v{Dq}, -1
    v_mov_b32 v{Dq+1}, -1
    v_mov_b32 v{Dq+2}, -1
    v_mov_b32 v{Dq+3}, -1
    v_lshl_add_u32 v{t0}, v{vL}, 4, s14
    v_lshl_add_u32 v{t1}, v{vL}, 4, s15
    global_store_dwordx4 v{t0}, {vr(Dq,4)}, s[40:41] sc1
    global_store_dwordx4 v{t0}, {vr(Dq,4)}, s[40:41] offset:1024 sc1
    s_mov_b32 exec_hi, 0
    global_store_dwordx4 v{t0}, {vr(Dq,4)}, s[40:41] offset:2048 sc1
    global_store_dwordx4 v{t1}, {vr(Dq,4)}, s[40:41] offset:{QA_OFF} sc1
    s_mov_b32 exec_hi, -1
    L_noclr:
    global_load_dwordx4 {vr(xd,4)}, v{vXo}, s[16:17]
    global_load_dword v{xd+4}, v{vXo}, s[16:17] offset:16
    """)
    srd(48, 22, SZ['wuk']); srd(44, 20, SZ['wq'])
    for j in range(4):
        a(f"s_mov_b32 m0, s11\ns_add_u32 s11, s11, 1024\nbuffer_load_dwordx4 v{vKo2 if j & 1 else vKo}, s[48:51], s10 offen{nt('wuk')} lds\ns_add_u32 s10, s10, 65536")
    NQ1 = 3
    for u in range(NQ1):
        a(f"buffer_load_dwordx4 {vr(WQ+4*u,4)}, v{vWo}, s[44:47], s8 offen{nt('wq')}\ns_add_u32 s8, s8, 8192")
    srd(52, 24, SZ['wuv']); srd(56, 26, SZ['wo']); srd(60, 30, SZ['w1']); srd(64, 32, SZ['w2'])
    a(f"""
    v_and_b32 v{t0}, 1, v{vL}
    v_lshlrev_b32 v{t0}, 4, v{t0}
    v_mov_b32 v{t1}, 0xffff
    v_lshlrev_b32 v{t0}, v{t0}, v{t1}
    v_lshrrev_b32 v{t1}, 1, v{vE}
    v_mov_b32 v{t2}, 0x0c0c0c0c
    s_mov_b32 s12, 0x01000100
    s_mov_b32 s13, 0x03020302
    """)
    for r in range(4):
        a(f"v_cmp_eq_u32 vcc, {r}, v{t1}\nv_cndmask_b32 v{msk+r}, 0, v{t0}, vcc")
    for r in range(4):
        a(f"v_bfi_b32 v{selE+r}, v{msk+r}, s12, v{t2}\nv_bfi_b32 v{selO+r}, v{msk+r}, s13, v{t2}")
    a(f"s_mov_b32 s12, 6554")
    for j in range(5):
        a(f"""
        v_add_u32 v{t0}, {64*j}, v{vL}
        v_mul_u32_u24 v{t1}, s12, v{t0}
        v_lshrrev_b32 v{t1}, 16, v{t1}
        v_mul_u32_u24 v{t2}, 1120, v{t1}
        v_lshl_add_u32 v{o10+j}, v{t0}, 4, v{t2}
        """)
    a(f"""
    v_lshrrev_b32 v{t0}, 1, v{vN}
    v_xor_b32 v{t0}, v{t0}, v{vG}
    v_lshlrev_b32 v{vPr}, 7, v{vN}
    v_lshl_add_u32 v{vPr}, v{t0}, 4, v{vPr}       ; i*128 + ((g ^ (i>>1))*16)
    v_xor_b32 v{vPr+1}, 64, v{vPr}
    v_xor_b32 v{t0}, s3, v{vE}
    v_lshrrev_b32 v{t1}, 1, v{vG}
    v_lshlrev_b32 v{t1}, 7, v{t1}
    v_lshl_add_u32 v{vPw}, v{t0}, 4, v{t1}
    v_and_b32 v{t1}, 1, v{vG}
    v_lshl_add_u32 v{vPw}, v{t1}, 3, v{vPw}
    s_lshl_b32 s12, s3, 8
    v_add_u32 v{vPw}, s12, v{vPw}
    s_lshl_b32 s12, s3, 6
    s_add_u32 s12, s12, s15
    v_lshrrev_b32 v{t1}, 5, v{vL}
    v_lshl_add_u32 v{vQs}, v{t1}, 5, s12
    v_lshl_add_u32 v{vQs}, v{vN}, 1, v{vQs}
    v_mov_b32 v{ones}, 0x3f803f80
    v_mov_b32 v{ones+1}, 0x3f803f80
    s_waitcnt vmcnt({4+NQ1})
    """)
    stamp(1)
    a(f"""
    s_cmp_lg_u32 s3, 0
    s_cbranch_scc1 L_nofl
    s_waitcnt lgkmcnt(0)
    """)
    mktag()
    a(f"""
    s_lshl_b32 s12, s2, 7
    s_add_u32 s12, s12, {FL_OFF}
    v_mov_b32 v{t0}, s70
    v_mov_b32 v{t1}, s71
    v_mov_b32 v{t2}, s12
    s_mov_b64 exec, 1
    global_store_dwordx2 v{t2}, v[{t0}:{t1}], s[40:41] sc1
    s_mov_b64 exec, -1
    L_nofl:
    """)
    for u in range(10):
        for r in range(4):
            a(f"v_perm_b32 v{Y+4*u+r}, v{xd+u//2}, v{xd+u//2}, v{(selO if u & 1 else selE)+r}")
    for u in range(NQ1, 10):
        a(f"buffer_load_dwordx4 {vr(WQ+4*u,4)}, v{vWo}, s[44:47], s8 offen{nt('wq')}\ns_add_u32 s8, s8, 8192")
    a(f"""
    s_lshl_b32 s12, s3, 12
    s_add_u32 s12, s12, {WKL}
    v_add_u32 v{t0}, s12, v{vPr}
    v_add_u32 v{t1}, s12, v{vPr+1}
    s_waitcnt vmcnt(10)
    """)
    for T in range(2):
        for ks in range(2):
            a(f"ds_read_b128 {vr(WK+8*T+4*ks,4)}, v{t1 if ks else t0} offset:{2048*T}")
    NM1 = 5
    for u in range(NM1):
        a(f"s_waitcnt vmcnt({9-u})")
        a(f"v_mfma_f32_16x16x32_bf16 {vr(Dq,4)}, {vr(Y+4*u,4)}, {vr(WQ+4*u,4)}, {'0' if u == 0 else vr(Dq,4)}")
    a("s_barrier")
    def p_tail(nb1):
        for u in range(NM1, 10):
            a(f"s_waitcnt vmcnt({9-u+nb1})")
            a(f"v_mfma_f32_16x16x32_bf16 {vr(Dq,4)}, {vr(Y+4*u,4)}, {vr(WQ+4*u,4)}, {vr(Dq,4)}")
    a(f"""
    s_cmp_ge_u32 s6, {0 if o.get("nob1") else 27}
    s_cbranch_scc1 L_nob1
    s_lshl_b32 s11, s6, 7
    s_lshl_b32 s12, s7, 5
    s_add_u32 s11, s11, s12           ; f0*2
    s_mul_i32 s12, s3, {80*3456}
    s_add_u32 s12, s12, s11           ; w1 soffset
    v_lshrrev_b32 v{t0}, 1, v{vL}
    v_mul_u32_u24 v{t0}, 3456, v{t0}
    v_and_b32 v{t1}, 1, v{vL}
    v_lshl_add_u32 v{t0}, v{t1}, 4, v{t0}
    s_mul_i32 s13, s3, 2560
    s_add_u32 s14, s13, {W1L}
    s_mov_b32 m0, s14
    s_add_u32 s14, s14, 1024
    buffer_load_dwordx4 v{t0}, s[60:63], s12 offen{nt('w1')} lds
    s_mov_b32 m0, s14
    s_add_u32 s12, s12, {32*3456}
    s_add_u32 s14, s14, 1024
    buffer_load_dwordx4 v{t0}, s[60:63], s12 offen{nt('w1')} lds
    s_mov_b32 m0, s14
    s_add_u32 s12, s12, {32*3456}
    s_mov_b32 exec_hi, 0
    buffer_load_dwordx4 v{t0}, s[60:63], s12 offen{nt('w1')} lds
    s_mov_b32 exec_hi, -1
    s_mul_i32 s12, s11, 640           ; f0*1280
    s_mul_i32 s15, s3, 160
    s_add_u32 s12, s12, s15
    s_add_u32 s14, s13, {W2L}
    s_mov_b32 m0, s14
    s_add_u32 s14, s14, 1024
    buffer_load_dwordx4 v{o10}, s[64:67], s12 offen{nt('w2')} lds
    s_mov_b32 m0, s14
    s_add_u32 s14, s14, 1024
    buffer_load_dwordx4 v{o10+1}, s[64:67], s12 offen{nt('w2')} lds
    s_mov_b32 m0, s14
    s_mov_b32 exec_hi, 0
    buffer_load_dwordx4 v{o10+2}, s[64:67], s12 offen{nt('w2')} lds
    s_mov_b32 exec_hi, -1
    """)
    p_tail(6)
    a("s_branch L_b1done\nL_nob1:")
    p_tail(0)
    a("L_b1done:")
    stamp(2)
    a(f"v_cvt_pk_bf16_f32 v{qp}, v{Dq}, v{Dq+1}\nv_cvt_pk_bf16_f32 v{qp+1}, v{Dq+2}, v{Dq+3}")
    setexec(0xFF00FF0000FF00FF)
    a(f"ds_write_b64 v{vPw}, {vr(qp,2)} offset:{PQ}")
    setexec(-1)
    a(f"""
    s_mov_b32 s12, {hex(f2u(128**-0.5 * math.log2(math.e)))}
    s_waitcnt lgkmcnt(0)
    s_barrier
    ds_read_b128 {vr(qf,4)}, v{vPr} offset:{PQ}
    ds_read_b128 {vr(qf+4,4)}, v{vPr+1} offset:{PQ}
    s_waitcnt lgkmcnt(1)
    v_mfma_f32_16x16x32_bf16 {vr(Dq,4)}, {vr(qf,4)}, {vr(WK,4)}, 0
    v_mfma_f32_16x16x32_bf16 {vr(acc,4)}, {vr(qf,4)}, {vr(WK+8,4)}, 0
    s_waitcnt lgkmcnt(0)
    v_mfma_f32_16x16x32_bf16 {vr(Dq,4)}, {vr(qf+4,4)}, {vr(WK+4,4)}, {vr(Dq,4)}
    v_mfma_f32_16x16x32_bf16 {vr(acc,4)}, {vr(qf+4,4)}, {vr(WK+12,4)}, {vr(acc,4)}
    v_add_f32 v{Dq}, v{Dq}, v{Dq+1}
    v_add_f32 v{Dq+2}, v{Dq+2}, v{Dq+3}
    v_add_f32 v{acc}, v{acc}, v{acc+1}
    v_add_f32 v{acc+2}, v{acc+2}, v{acc+3}
    v_add_f32 v{Dq}, v{Dq}, v{Dq+2}
    v_add_f32 v{acc}, v{acc}, v{acc+2}
    v_permlane32_swap_b32 v{Dq}, v{acc}
    v_add_f32 v{Dq}, v{Dq}, v{acc}
    v_mul_f32 v{Dq}, s12, v{Dq}
    v_mov_b32 v{acc}, v{Dq}
    v_permlane16_swap_b32 v{Dq}, v{acc}
    v_add_f32 v{Dq}, v{Dq}, v{acc}
    v_mov_b32_dpp v{acc}, v{Dq} quad_perm:[1,0,3,2] {DPPM}
    v_cvt_pk_bf16_f32 v{Dq}, v{Dq}, v{acc}
    """)
    setexec(0x0000555500005555)
    a(f"global_store_dword v{vQs}, v{Dq}, s[40:41] offset:{QA_OFF} sc1")
    setexec(-1)
    stamp(3)
    if o.get("po_exit"): a("s_branch L_fin")
    a(f"""
    v_mul_u32_u24 v{t0}, 40, v{vG}
    s_mul_i32 s12, s3, 160
    v_add_u32 v{t0}, s12, v{t0}
    v_mul_u32_u24 v{t1}, 20, v{vL}
    global_load_dwordx4 {vr(xf,4)}, v{t0}, s[16:17]
    global_load_dwordx4 {vr(xf+4,4)}, v{t0}, s[16:17] offset:16
    global_load_dwordx2 {vr(xf+8,2)}, v{t0}, s[16:17] offset:32
    s_cmp_lg_u32 s3, 7
    s_cbranch_scc1 L_nog1
    global_load_dwordx4 {vr(gx,4)}, v{t1}, s[16:17]
    global_load_dword v{gx+4}, v{t1}, s[16:17] offset:16
    global_load_dwordx4 {vr(gg,4)}, v{t1}, s[34:35]
    global_load_dword v{gg+4}, v{t1}, s[34:35] offset:16
    L_nog1:
    v_lshrrev_b32 v{t0}, 2, v{vL}
    v_lshlrev_b32 v{t0}, 13, v{t0}
    v_and_b32 v{t1}, 3, v{vL}
    v_lshl_add_u32 v{t0}, v{t1}, 4, v{t0}
    s_lshl_b32 s12, s3, 19
    s_lshl_b32 s13, s6, 8
    s_add_u32 s12, s12, s13
    s_lshl_b32 s13, s7, 6
    s_add_u32 s12, s12, s13
    s_lshl_b32 s14, s3, 12
    s_add_u32 s14, s14, {WUVL}
    """)
    for j in range(4):
        a(f"s_mov_b32 m0, s14\ns_add_u32 s14, s14, 1024\nbuffer_load_dwordx4 v{t0}, s[52:55], s12 offen{nt('wuv')} lds\ns_add_u32 s12, s12, {16*8192}")
    a(f"""
    s_lshl_b32 s12, s6, 2
    s_add_u32 s12, s12, s7
    s_mul_i32 s12, s12, {32*1280}
    s_mul_i32 s13, s3, 160
    s_add_u32 s12, s12, s13
    s_mul_i32 s14, s3, 5120
    s_add_u32 s14, s14, {WOL}
    """)
    for j in range(5):
        a(f"s_mov_b32 m0, s14\ns_add_u32 s14, s14, 1024\nbuffer_load_dwordx4 v{o10+j}, s[56:59], s12 offen{nt('wo')} lds")
    for i in range(20): a(f"v_mov_b32 v{OUT+i}, 0")
    a("s_waitcnt vmcnt(9)")
    a(f"s_cmp_lg_u32 s3, 7\ns_cbranch_scc1 L_nog2\nv_mov_b32 v{t3}, 0")
    for i in range(5):
        a(f"""
        v_lshlrev_b32 v{t0}, 16, v{gx+i}
        v_lshlrev_b32 v{t1}, 16, v{gg+i}
        v_mul_f32 v{t0}, v{t0}, v{t1}
        v_and_b32 v{t1}, 0xffff0000, v{gx+i}
        v_and_b32 v{t2}, 0xffff0000, v{gg+i}
        v_mul_f32 v{t1}, v{t1}, v{t2}
        v_cvt_pk_bf16_f32 v{t0}, v{t0}, v{t1}
        v_lshlrev_b32 v{t1}, 16, v{t0}
        v_and_b32 v{t0}, 0xffff0000, v{t0}
        v_add_f32 v{t3}, v{t3}, v{t1}
        v_add_f32 v{t3}, v{t3}, v{t0}
        """)
    for d in ("row_ror:1", "row_ror:2", "row_ror:4", "row_ror:8"):
        a(f"v_add_f32_dpp v{t3}, v{t3}, v{t3} {d} {DPPM}")
    xrow("v_add_f32", t3, t0)
    a(f"""
    v_cvt_pk_bf16_f32 v{t3}, v{t3}, v{t3}
    v_and_b32 v{t3}, 0xffff0000, v{t3}
    v_mul_f32 v{t3}, {hex(f2u(-math.log2(math.e)))}, v{t3}
    v_exp_f32 v{t3}, v{t3}
    v_add_f32 v{t3}, 1.0, v{t3}
    v_rcp_f32 v{t3}, v{t3}
    v_cvt_pk_bf16_f32 v{t0}, v{t3}, v{t3}
    v_and_b32 v{t0}, 0xffff0000, v{t0}
    v_sub_f32 v{t1}, 1.0, v{t0}
    v_cvt_pk_bf16_f32 v{t1}, v{t1}, v{t1}
    v_and_b32 v{t1}, 0xffff0000, v{t1}
    v_mov_b32 v{t2}, {GT}
    ds_write_b64 v{t2}, v[{t0}:{t1}]
    L_nog2:
    s_cmp_ge_u32 s6, 27
    s_cbranch_scc1 L_nof1
    """)
    A1 = Y; A2 = Y + 10; D1 = Dq
    a(f"""
    v_mul_u32_u24 v{t0}, 640, v{vG}
    v_lshl_add_u32 v{t0}, v{vN}, 3, v{t0}
    s_mul_i32 s13, s3, 2560
    v_add_u32 v{t0}, s13, v{t0}
    v_lshrrev_b32 v{t1}, 2, v{vL}
    v_mul_u32_u24 v{t1}, 160, v{t1}
    v_and_b32 v{t2}, 3, v{vL}
    v_lshl_add_u32 v{t1}, v{t2}, 3, v{t1}
    v_add_u32 v{t1}, s13, v{t1}
    """)
    for t in range(5): a(f"ds_read_b64_tr_b16 {vr(A1+2*t,2)}, v{t0} offset:{W1L+128*t}")
    for T in range(5): a(f"ds_read_b64_tr_b16 {vr(A2+2*T,2)}, v{t1} offset:{W2L+32*T}")
    a("s_waitcnt lgkmcnt(5)")
    for t in range(5):
        a(f"v_mfma_f32_16x16x16_bf16 {vr(D1,4)}, {vr(A1+2*t,2)}, {vr(xf+2*t,2)}, {'0' if t == 0 else vr(D1,4)}")
    a(f"s_lshl_b32 s12, s3, 6\nv_lshl_add_u32 v{t0}, v{vG}, 4, s12")
    setexec(0x0001000100010001)
    a(f"ds_write_b128 v{t0}, {vr(D1,4)} offset:{HS}")
    setexec(-1)
    HP = WQ + 8
    a(f"""
    L_nof1:
    s_waitcnt lgkmcnt(0)
    s_barrier
    v_mov_b32 v{t2}, {GT}
    ds_read_b64 {vr(ml,2)}, v{t2}
    v_lshlrev_b32 v{t0}, 4, v{vG}
    s_cmp_ge_u32 s6, 27
    s_cbranch_scc1 L_nof2
    """)
    for w in range(8): a(f"ds_read_b128 {vr(HP+4*w,4)}, v{t0} offset:{HS+64*w}")
    a("s_waitcnt lgkmcnt(0)")
    for w in range(1, 8):
        for r in range(4): a(f"v_add_f32 v{HP+r}, v{HP+r}, v{HP+4*w+r}")
    a(f"""
    v_cvt_pk_bf16_f32 v{qp}, v{HP}, v{HP+1}
    v_cvt_pk_bf16_f32 v{qp+1}, v{HP+2}, v{HP+3}
    v_lshlrev_b32 v{qf}, 16, v{qp}
    v_and_b32 v{qf+1}, 0xffff0000, v{qp}
    v_lshlrev_b32 v{qf+2}, 16, v{qp+1}
    v_and_b32 v{qf+3}, 0xffff0000, v{qp+1}
    """)
    for r in range(4): a(f"v_mul_f32 v{qf+4+r}, {hex(f2u(-math.log2(math.e)))}, v{qf+r}")
    for r in range(4): a(f"v_exp_f32 v{qf+4+r}, v{qf+4+r}")
    for r in range(4): a(f"v_add_f32 v{qf+4+r}, 1.0, v{qf+4+r}")
    for r in range(4): a(f"v_rcp_f32 v{qf+4+r}, v{qf+4+r}")
    for r in range(4): a(f"v_mul_f32 v{qf+r}, v{qf+r}, v{qf+4+r}")
    a(f"v_cvt_pk_bf16_f32 v{qp}, v{qf}, v{qf+1}\nv_cvt_pk_bf16_f32 v{qp+1}, v{qf+2}, v{qf+3}")
    for T in range(5): a(f"v_mfma_f32_16x16x16_bf16 {vr(OUT+4*T,4)}, {vr(A2+2*T,2)}, {vr(qp,2)}, 0")
    for i in range(20): a(f"v_mul_f32 v{OUT+i}, v{ml+1}, v{OUT+i}")
    a(f"L_nof2:\ns_waitcnt lgkmcnt(0)\nv_mov_b32 v{vScale}, v{ml}")
    stamp(4)
    a(f"""
    v_and_b32 v{t0}, 1, v{vG}
    v_lshlrev_b32 v{t0}, 11, v{t0}           ; 32*(g&1)*64
    v_lshrrev_b32 v{t1}, 1, v{vG}
    v_lshl_add_u32 v{t0}, v{t1}, 8, v{t0}    ; 4*(g>>1)*64
    v_bfe_u32 v{t1}, v{vL}, 2, 2
    v_lshl_add_u32 v{t0}, v{t1}, 6, v{t0}    ; r*64
    v_and_b32 v{t2}, 3, v{vL}
    v_lshl_add_u32 v{t0}, v{t2}, 3, v{t0}    ; cc*8
    s_lshl_b32 s13, s3, 12
    s_add_u32 s13, s13, {WUVL}
    v_add_u32 v{t0}, s13, v{t0}
    v_lshrrev_b32 v{t1}, 2, v{vL}
    v_mul_u32_u24 v{t1}, 160, v{t1}
    v_lshl_add_u32 v{t1}, v{t2}, 3, v{t1}
    s_mul_i32 s13, s3, 5120
    s_add_u32 s13, s13, {WOL}
    v_add_u32 v{t1}, s13, v{t1}
    """)
    vML, vPB, vCW, vCR, vCT, vPC, vMS = WQ, WQ+1, WQ+2, WQ+3, WQ+4, WQ+5, WQ+6
    a(f"""
    v_and_b32 v{t2}, 3, v{vL}
    v_lshl_add_u32 v{t2}, v{vS}, 2, v{t2}
    s_lshr_b32 s12, s6, 3
    s_lshl_b32 s12, s12, 12
    s_and_b32 s13, s6, 7
    s_lshl_b32 s13, s13, 4
    s_add_u32 s12, s12, s13
    s_add_u32 s12, s12, {ML_OFF}
    v_lshl_add_u32 v{vML}, v{t2}, 7, s12
    s_lshl_b32 s12, s6, 15
    s_lshl_b32 s13, s3, 7
    s_add_u32 s12, s12, s13
    s_add_u32 s12, s12, {PB_OFF}
    v_lshl_add_u32 v{vPB}, v{vS}, 12, s12
    v_lshl_add_u32 v{vPB}, v{vE}, 4, v{vPB}
    s_lshl_b32 s12, s3, 8
    s_add_u32 s12, s12, {CC}
    v_lshrrev_b32 v{t2}, 1, v{vG}
    v_lshl_add_u32 v{vCW}, v{t2}, 7, s12
    v_lshl_add_u32 v{vCW}, v{vE}, 4, v{vCW}
    v_and_b32 v{t2}, 1, v{vG}
    v_lshl_add_u32 v{vCW}, v{t2}, 3, v{vCW}
    v_and_b32 v{t2}, 1, v{vL}
    v_lshl_add_u32 v{vCR}, v{t2}, 7, s12
    v_lshl_add_u32 v{vCR}, v{vG}, 4, v{vCR}
    s_lshl_b32 s12, s3, 6
    v_lshl_add_u32 v{vCT}, v{t2}, 5, s12          ; p*32
    v_lshl_add_u32 v{vCT}, v{vG}, 3, v{vCT}
    v_bfe_u32 v{t2}, v{vL}, 1, 1
    v_lshl_add_u32 v{vCT}, v{t2}, 9, v{vCT}
    v_cmp_eq_u32 s[68:69], 1, v{t2}
    s_mul_i32 s12, s2, 2560
    s_mul_i32 s13, s3, 320
    s_add_u32 s12, s12, s13
    s_add_u32 s12, s12, {PC_OFF}
    v_lshl_add_u32 v{vPC}, v{vG}, 4, s12
    v_lshlrev_b32 v{vMS}, 3, v{vL}
    s_waitcnt vmcnt(0)
    """)
    stamp(5)
    for ks in range(2):
        for Td in range(2):
            for aa in range(2):
                a(f"ds_read_b64_tr_b16 {vr(AUV+8*ks+4*Td+2*aa,2)}, v{t0} offset:{aa*1024+ks*512+Td*32}")
    a("s_waitcnt lgkmcnt(4)")
    for T in range(5):
        for aa in range(2):
            a(f"ds_read_b64_tr_b16 {vr(AO+4*T+2*aa,2)}, v{t1} offset:{aa*2560+T*32}")
    a(f"""
    s_cmp_lg_u32 s3, 0
    s_cbranch_scc1 L_mlw
    s_mov_b32 s13, 0
    L_mlp:
    global_load_dwordx4 {vr(ml,4)}, v{vML}, s[40:41] sc1
    s_add_u32 s13, s13, 1
    s_waitcnt vmcnt(0)
    v_cmp_ne_u64 vcc, {TAG}, {vr(ml+2,2)}
    """)
    spin_tail("L_mlp", "L_mlo")
    a(f"""
    ds_write_b64 v{vMS}, {vr(ml,2)} offset:{MLS}
    L_mlw:
    s_waitcnt lgkmcnt(0)
    s_barrier
    """)
    stamp(6)
    for u in range(4): a(f"global_load_dwordx4 {vr(PBR+4*u,4)}, v{vPB}, s[40:41] offset:{1024*u} sc1")
    a(f"""
    ds_read_b64 {vr(ml,2)}, v{vMS} offset:{MLS}
    s_waitcnt lgkmcnt(0)
    v_max_f32_dpp v{t0}, v{ml}, v{ml} quad_perm:[1,0,3,2] {DPPM}
    v_max_f32_dpp v{t0}, v{t0}, v{t0} quad_perm:[2,3,0,1] {DPPM}
    v_max_f32_dpp v{t0}, v{t0}, v{t0} row_ror:8 {DPPM}
    """)
    xrow("v_max_f32", t0, t1)
    a(f"""
    v_sub_f32 v{t0}, v{ml}, v{t0}
    v_exp_f32 v{t0}, v{t0}
    v_cvt_pk_bf16_f32 v{t2}, v{t0}, v{t0}
    v_mul_f32 v{t0}, v{t0}, v{ml+1}
    """)
    for u in range(4):
        for r in range(4):
            a(f"v_and_b32_dpp v{YW+4*u+r}, v{t2}, v{msk+r} quad_perm:[{u},{u},{u},{u}] {DPPM}")
    a(f"""
    v_add_f32_dpp v{t0}, v{t0}, v{t0} quad_perm:[1,0,3,2] {DPPM}
    v_add_f32_dpp v{t0}, v{t0}, v{t0} quad_perm:[2,3,0,1] {DPPM}
    v_add_f32_dpp v{t0}, v{t0}, v{t0} row_ror:8 {DPPM}
    """)
    xrow("v_add_f32", t0, t1)
    a(f"""
    v_rcp_f32 v{t0}, v{t0}
    v_mul_f32 v{vScale}, v{vScale}, v{t0}
    s_mov_b32 s13, 0
    s_branch L_pbc
    L_pbp:
    """)
    for u in range(4): a(f"global_load_dwordx4 {vr(PBR+4*u,4)}, v{vPB}, s[40:41] offset:{1024*u} sc1")
    a("L_pbc:\ns_add_u32 s13, s13, 1\ns_waitcnt vmcnt(0)")
    maxtree(t2, range(PBR, PBR+16))
    a(f"v_cmp_eq_u32 vcc, -1, v{t2}")
    spin_tail("L_pbp", "L_pbo")
    stamp(7)
    for u in range(4):
        a(f"v_mfma_f32_16x16x32_bf16 {vr(Dq,4)}, {vr(YW+4*u,4)}, {vr(PBR+4*u,4)}, {'0' if u == 0 else vr(Dq,4)}")
    for r in range(4): a(f"v_mul_f32 v{Dq+r}, v{vScale}, v{Dq+r}")
    a(f"v_cvt_pk_bf16_f32 v{qp}, v{Dq}, v{Dq+1}\nv_cvt_pk_bf16_f32 v{qp+1}, v{Dq+2}, v{Dq+3}")
    setexec(0xFF00FF0000FF00FF)
    a(f"ds_write_b64 v{vCW}, {vr(qp,2)}")
    setexec(-1)
    a(f"""
    s_waitcnt lgkmcnt(0)
    ds_read_b128 {vr(qf,4)}, v{vCR}
    ds_read_b128 {vr(qf+4,4)}, v{vCR} offset:64
    s_waitcnt lgkmcnt(1)
    v_mfma_f32_16x16x32_bf16 {vr(Dq,4)}, {vr(AUV,4)}, {vr(qf,4)}, 0
    v_mfma_f32_16x16x32_bf16 {vr(acc,4)}, {vr(AUV+4,4)}, {vr(qf,4)}, 0
    s_waitcnt lgkmcnt(0)
    v_mfma_f32_16x16x32_bf16 {vr(Dq,4)}, {vr(AUV+8,4)}, {vr(qf+4,4)}, {vr(Dq,4)}
    v_mfma_f32_16x16x32_bf16 {vr(acc,4)}, {vr(AUV+12,4)}, {vr(qf+4,4)}, {vr(acc,4)}
    v_cvt_pk_bf16_f32 v{qp}, v{Dq}, v{Dq+1}
    v_cvt_pk_bf16_f32 v{qp+1}, v{Dq+2}, v{Dq+3}
    v_cvt_pk_bf16_f32 v{qp+2}, v{acc}, v{acc+1}
    v_cvt_pk_bf16_f32 v{qp+3}, v{acc+2}, v{acc+3}
    v_cndmask_b32 v{qp}, v{qp}, v{qp+2}, s[68:69]
    v_cndmask_b32 v{qp+1}, v{qp+1}, v{qp+3}, s[68:69]
    """)
    setexec(0x000F000F000F000F)
    a(f"ds_write_b64 v{vCT}, {vr(qp,2)} offset:{CP}")
    setexec(-1)
    a(f"""
    s_waitcnt lgkmcnt(0)
    s_barrier
    ds_read_b64_tr_b16 {vr(qf,2)}, v{vMS} offset:{CP}
    ds_read_b64_tr_b16 {vr(qf+2,2)}, v{vMS} offset:{CP+512}
    s_waitcnt lgkmcnt(1)
    v_mfma_f32_16x16x16_bf16 {vr(Dq,4)}, {vr(qf,2)}, {vr(ones,2)}, 0
    s_waitcnt lgkmcnt(0)
    v_mfma_f32_16x16x16_bf16 {vr(acc,4)}, {vr(qf+2,2)}, {vr(ones,2)}, 0
    v_cvt_pk_bf16_f32 v{qp}, v{Dq}, v{Dq+1}
    v_cvt_pk_bf16_f32 v{qp+1}, v{Dq+2}, v{Dq+3}
    v_cvt_pk_bf16_f32 v{qp+2}, v{acc}, v{acc+1}
    v_cvt_pk_bf16_f32 v{qp+3}, v{acc+2}, v{acc+3}
    """)
    for T in range(5): a(f"v_mfma_f32_16x16x32_bf16 {vr(OUT+4*T,4)}, {vr(AO+4*T,4)}, {vr(qp,4)}, {vr(OUT+4*T,4)}")
    setexec(0x0001000100010001)
    for T in range(5): a(f"global_store_dwordx4 v{vPC}, {vr(OUT+4*T,4)}, s[40:41] offset:{64*T} sc1")
    setexec(-1)
    stamp(8)
    a("s_branch L_fin")
    po_v = V.n
    V = VA(5)
    vFL = V()
    t0, t1, t2, t3 = V(1, 2), V(), V(), V()
    CK = V(64, 2); CV = V(64, 2)
    QB = V(64, 2)
    SV = QB; U = QB + 16; W = QB + 24; DP = QB + 32
    ff = QB
    DS = V(4, 2)
    ba = V(8); vPBs = V(); vMLs = V(); vq = V(); vqw = V(2); vqr = V(2); vSa = V(); ml = V(4, 2)
    CKV, QAS, SL = 0, 131072, 147456
    a(f"""
    L_roleA:
    s_sub_u32 s6, s5, 16
    s_lshr_b32 s6, s6, 2
    s_lshl_b32 s6, s6, 3
    s_add_u32 s6, s6, s4              ; chunk
    s_and_b32 s7, s5, 3               ; grp
    v_mov_b32 v{ff}, -1
    v_mov_b32 v{ff+1}, -1
    v_mov_b32 v{ff+2}, -1
    v_mov_b32 v{ff+3}, -1
    s_lshl_b32 s8, s7, 3
    s_add_u32 s8, s8, s3
    s_lshl_b32 s8, s8, 15
    s_lshl_b32 s9, s6, 10
    s_add_u32 s8, s8, s9
    s_add_u32 s8, s8, {PB_OFF}
    v_lshl_add_u32 v{t0}, v{vL}, 4, s8
    s_lshl_b32 s8, s6, 17
    s_lshl_b32 s9, s3, 14
    s_add_u32 s8, s8, s9
    v_lshlrev_b32 v{t3}, 4, v{vL}
    """)
    for k in range(8): a(f"v_xor_b32 v{ba+k}, {32*k}, v{t3}")
    a(f"""
    s_waitcnt lgkmcnt(0)
    s_load_dwordx2 {TAG}, s[40:41], {EP_OFF}
    global_store_dwordx4 v{t0}, {vr(ff,4)}, s[40:41] sc1
    """)
    srd(44, 18, SZ['ckv'])
    if o.get("ckv_late"): a("s_waitcnt vmcnt(0)")
    stamp(1)
    if o.get("a_exit1"): a("s_branch L_fin")
    for k in range(16):
        a(f"s_mov_b32 m0, s9\ns_add_u32 s9, s9, 1024\nbuffer_load_dwordx4 v{ba+(k&7)}, s[44:47], s8 offen{nt('ckv')} lds\ns_add_u32 s8, s8, 1024")
    a(f"""
    s_lshl_b32 s10, s7, 5
    s_add_u32 s10, s10, s6
    s_lshl_b32 s10, s10, 7
    s_add_u32 s10, s10, {ML_OFF}
    s_lshl_b32 s11, s7, 14
    s_lshl_b32 s12, s3, 11
    s_add_u32 s11, s11, s12
    v_lshl_add_u32 v{vq}, v{vL}, 4, s11
    s_lshl_b32 s11, s7, 12
    s_add_u32 s11, s11, {FL_OFF}
    v_and_b32 v{t0}, 31, v{vL}
    v_lshl_add_u32 v{vFL}, v{t0}, 7, s11
    s_lshl_b32 s9, s3, 14
    v_lshl_add_u32 v{t0}, v{vN}, 10, s9
    v_lshlrev_b32 v{t1}, 1, v{vE}
    v_xor_b32 v{t1}, v{t1}, v{vG}             ; g ^ 2(i&7)
    """)
    for q in range(4):
        a(f"v_xor_b32 v{t2}, {4*q}, v{t1}\nv_lshl_add_u32 v{ba+q}, v{t2}, 4, v{t0}")
    a(f"""
    s_lshl_b32 s9, s3, 1
    v_xor_b32 v{t0}, s9, v{vE}
    v_lshlrev_b32 v{t1}, 8, v{vL}
    v_lshl_add_u32 v{vqw}, v{t0}, 4, v{t1}
    v_add_u32 v{vqw}, {QAS}, v{vqw}
    v_xor_b32 v{vqw+1}, 16, v{vqw}
    v_xor_b32 v{t0}, v{vN}, v{vG}
    v_lshlrev_b32 v{t1}, 8, v{vG}
    v_lshl_add_u32 v{vqr}, v{t0}, 4, v{t1}
    v_add_u32 v{vqr}, {QAS}, v{vqr}
    v_xor_b32 v{vqr+1}, 64, v{vqr}
    v_lshlrev_b32 v{vSa}, 4, v{vL}
    v_add_u32 v{vSa}, {SL}, v{vSa}
    v_lshrrev_b32 v{t0}, 1, v{vN}
    s_lshl_b32 s8, s7, 18
    s_lshl_b32 s9, s6, 10
    s_add_u32 s8, s8, s9
    s_lshl_b32 s9, s3, 7
    s_add_u32 s8, s8, s9
    s_add_u32 s8, s8, {PB_OFF}
    v_lshl_add_u32 v{vPBs}, v{t0}, 15, s8
    v_lshl_add_u32 v{vPBs}, v{vG}, 5, v{vPBs}
    v_and_b32 v{t1}, 1, v{vL}
    v_lshl_add_u32 v{vPBs}, v{t1}, 4, v{vPBs}
    v_lshl_add_u32 v{vMLs}, v{t0}, 4, s10
    v_cmp_eq_u32 s[68:69], 1, v{t1}
    s_waitcnt lgkmcnt(0)
    """)
    mktag()
    a(f"""
    v_mov_b32 v{ml+2}, s70
    v_mov_b32 v{ml+3}, s71
    s_cmp_lg_u32 s3, 0
    s_cbranch_scc1 L_nofa
    s_mov_b32 s13, 0
    L_fap:
    global_load_dwordx2 {vr(ml,2)}, v{vFL}, s[40:41] sc1
    s_add_u32 s13, s13, 1
    s_waitcnt vmcnt(0)
    v_cmp_ne_u64 vcc, {TAG}, {vr(ml,2)}
    """)
    spin_tail("L_fap", "L_nofa")
    a("s_waitcnt vmcnt(0)")
    stamp(2)
    for t in range(16):
        a(f"ds_read_b128 {vr(CK+4*t,4)}, v{ba+(t&3)} offset:{256*(t>>2)}")
        if t == 11: a("s_waitcnt lgkmcnt(6)")
    a(f"""
    v_lshrrev_b32 v{t0}, 2, v{vL}             ; 4g+r
    v_and_b32 v{t1}, 7, v{t0}                 ; key&7
    v_lshlrev_b32 v{t0}, 10, v{t0}
    v_and_b32 v{t2}, 3, v{vL}
    v_lshl_add_u32 v{t0}, v{t2}, 3, v{t0}
    s_lshr_b32 s8, s3, 1
    s_lshl_b32 s8, s8, 8
    v_add_u32 v{t0}, s8, v{t0}
    s_and_b32 s8, s3, 1
    s_lshl_b32 s8, s8, 2
    v_xor_b32 v{t1}, s8, v{t1}
    """)
    for T in range(4):
        a(f"v_xor_b32 v{t2}, {T}, v{t1}\nv_lshl_add_u32 v{ba+T}, v{t2}, 5, v{t0}\nv_add_u32 v{ba+4+T}, 0x10000, v{ba+T}")
    a("s_barrier")
    def qa_loads():
        a(f"global_load_dwordx4 {vr(QB,4)}, v{vq}, s[40:41] offset:{QA_OFF} sc1")
        a(f"global_load_dwordx4 {vr(QB+4,4)}, v{vq}, s[40:41] offset:{QA_OFF+1024} sc1")
    qa_loads()
    for T in range(4):
        a("s_waitcnt lgkmcnt(4)")
        for t in range(4):
            for aa in range(2):
                off = (32*t + 16*aa) * 1024
                a(f"ds_read_b64_tr_b16 {vr(CV+16*T+4*t+2*aa,2)}, v{ba+T+4*(off>>16)} offset:{off & 0xffff}")
    stamp(3)
    if o.get("a_exit2"): a("s_branch L_fin")
    a("s_mov_b32 s13, 0\ns_branch L_qac\nL_qap:")
    qa_loads()
    a("L_qac:\ns_add_u32 s13, s13, 1\ns_waitcnt vmcnt(0)")
    maxtree(t2, range(QB, QB+8))
    a(f"v_cmp_eq_u32 vcc, -1, v{t2}")
    spin_tail("L_qap", "L_qao")
    a(f"""
    ds_write_b128 v{vqw}, {vr(QB,4)}
    ds_write_b128 v{vqw+1}, {vr(QB+4,4)}
    s_waitcnt lgkmcnt(0)
    s_barrier
    """)
    stamp(4)
    if DEV or probe: a("s_waitcnt lgkmcnt(0)")
    def qread(t): a(f"ds_read_b128 {vr(QB+4*t,4)}, v{vqr+(t&1)} offset:{1024*t}")
    PRE = 12
    for t in range(PRE): qread(t)
    for t in range(16):
        issued = min(16, PRE + t)
        a(f"s_waitcnt lgkmcnt({issued - t - 1})")
        a(f"v_mfma_f32_16x16x32_bf16 {vr(DS,4)}, {vr(CK+4*t,4)}, {vr(QB+4*t,4)}, {'0' if t == 0 else vr(DS,4)}")
        if t + PRE < 16: qread(t + PRE)
    a(f"""
    s_and_b32 s8, s3, 3
    s_lshl_b32 s8, s8, 10
    v_add_u32 v{t0}, s8, v{vSa}
    s_lshr_b32 s9, s3, 2
    s_lshl_b32 s8, 0x55555555, s9
    """)
    for r in range(4): a(f"v_add_f32_dpp v{DS+r}, v{DS+r}, v{DS+r} quad_perm:[1,0,3,2] {DPPM}")
    a(f"""
    s_mov_b32 exec_lo, s8
    s_mov_b32 exec_hi, s8
    ds_write_b128 v{t0}, {vr(DS,4)}
    s_mov_b64 exec, -1
    s_waitcnt lgkmcnt(0)
    s_barrier
    """)
    for q in range(4): a(f"ds_read_b128 {vr(SV+4*q,4)}, v{vSa} offset:{1024*q}")
    stamp(5)
    a("s_waitcnt lgkmcnt(0)")
    a(f"v_max3_f32 v{t0}, v{SV}, v{SV+1}, v{SV+2}\nv_max3_f32 v{t1}, v{SV+3}, v{SV+4}, v{SV+5}")
    for i in range(6, 14, 4):
        a(f"v_max3_f32 v{t0}, v{t0}, v{SV+i}, v{SV+i+1}\nv_max3_f32 v{t1}, v{t1}, v{SV+i+2}, v{SV+i+3}")
    a(f"""
    v_max3_f32 v{t0}, v{t0}, v{SV+14}, v{SV+15}
    v_max_f32 v{t0}, v{t0}, v{t1}
    v_max_f32_dpp v{t0}, v{t0}, v{t0} quad_perm:[1,0,3,2] {DPPM}
    """)
    xrow("v_max_f32", t0, t1)
    a(f"v_ceil_f32 v{ml}, v{t0}")
    for i in range(16): a(f"v_sub_f32 v{SV+i}, v{SV+i}, v{ml}")
    for i in range(16): a(f"v_exp_f32 v{SV+i}, v{SV+i}")
    a("s_cmp_lg_u32 s3, 0\ns_cbranch_scc1 L_nol")
    a(f"v_add_f32 v{t0}, v{SV}, v{SV+1}\nv_add_f32 v{t1}, v{SV+2}, v{SV+3}")
    for i in range(4, 16, 2): a(f"v_add_f32 v{t0}, v{t0}, v{SV+i}\nv_add_f32 v{t1}, v{t1}, v{SV+i+1}")
    a(f"""
    v_add_f32 v{ml+1}, v{t0}, v{t1}
    v_add_f32_dpp v{ml+1}, v{ml+1}, v{ml+1} quad_perm:[1,0,3,2] {DPPM}
    """)
    xrow("v_add_f32", ml+1, t1)
    a(f"""
    s_mov_b64 exec, 0x5555
    global_store_dwordx4 v{vMLs}, {vr(ml,4)}, s[40:41] sc1
    s_mov_b64 exec, -1
    L_nol:
    """)
    for i in range(8): a(f"v_cvt_pk_bf16_f32 v{U+i}, v{SV+2*i}, v{SV+2*i+1}")
    for i in range(8): a(f"v_mov_b32_dpp v{W+i}, v{U+i} quad_perm:[1,0,3,2] {DPPM}")
    order = []
    for j in range(2):
        for T in range(4): order.append((T, (0 if T < 2 else 2) + j, U + 4*j))
    for j in range(2):
        for T in range(4): order.append((T, (2 if T < 2 else 0) + j, W + 4*j))
    seen = set()
    for T, t, b in order:
        a(f"v_mfma_f32_16x16x32_bf16 {vr(DP+4*T,4)}, {vr(CV+16*T+4*t,4)}, {vr(b,4)}, {vr(DP+4*T,4) if T in seen else '0'}")
        seen.add(T)
    for i in range(8): a(f"v_cvt_pk_bf16_f32 v{U+i}, v{DP+2*i}, v{DP+2*i+1}")
    for i in range(4): a(f"v_cndmask_b32 v{U+i}, v{U+i}, v{U+4+i}, s[68:69]")
    a(f"global_store_dwordx4 v{vPBs}, {vr(U,4)}, s[40:41] sc1")
    stamp(6)
    a(f"""
    s_cmp_lg_u32 s3, 0
    s_cbranch_scc1 L_fin
    s_cmp_ge_u32 s6, 20
    s_cbranch_scc1 L_fin
    s_lshl_b32 s8, s6, 2
    s_add_u32 s8, s8, s7
    v_lshrrev_b32 v{t0}, 1, v{vL}
    v_mul_u32_u24 v{t0}, 2560, v{t0}
    v_and_b32 v{t1}, 1, v{vL}
    v_lshl_add_u32 v{t0}, v{t1}, 4, v{t0}
    s_lshl_b32 s9, s8, 5
    s_add_u32 s9, s9, {PC_OFF}
    v_add_u32 v{ba}, s9, v{t0}
    v_add_u32 v{ba+1}, {32*2560}, v{ba}
    v_add_u32 v{ba+2}, {64*2560}, v{ba}
    v_add_u32 v{ba+3}, {96*2560}, v{ba}
    s_lshl_b32 s9, s8, 4
    v_lshl_add_u32 v{ba+4}, v{t1}, 3, s9
    v_lshl_add_u32 v{ba+4}, v{vG}, 1, v{ba+4}
    v_lshlrev_b32 v{t0}, 7, v{vL}
    v_add_u32 v{t0}, {FL_OFF}, v{t0}
    v_add_u32 v{t1}, 8192, v{t0}
    s_mov_b32 s13, 0
    L_frp:
    global_load_dwordx2 {vr(SV,2)}, v{t0}, s[40:41] sc1
    global_load_dwordx2 {vr(SV+2,2)}, v{t1}, s[40:41] sc1
    s_add_u32 s13, s13, 1
    s_waitcnt vmcnt(0)
    v_cmp_ne_u64 vcc, {TAG}, {vr(SV,2)}
    v_cmp_ne_u64 s[72:73], {TAG}, {vr(SV+2,2)}
    s_nop 1
    s_or_b64 vcc, vcc, s[72:73]
    """)
    spin_tail("L_frp", "L_fro")
    a("s_mov_b32 s13, 0\nL_pcp:")
    for j in range(4): a(f"global_load_dwordx4 {vr(SV+4*j,4)}, v{ba+j}, s[40:41] sc1")
    a("s_add_u32 s13, s13, 1\ns_waitcnt vmcnt(0)")
    maxtree(t2, range(SV, SV+16))
    a(f"v_cmp_eq_u32 vcc, -1, v{t2}")
    spin_tail("L_pcp", "L_pco")
    stamp(7)
    for r in range(4): a(f"v_add_f32 v{SV+r}, v{SV+r}, v{SV+4+r}\nv_add_f32 v{SV+8+r}, v{SV+8+r}, v{SV+12+r}")
    for r in range(4): a(f"v_add_f32 v{SV+r}, v{SV+r}, v{SV+8+r}")
    a(f"""
    v_permlane32_swap_b32 v{SV}, v{SV+2}
    v_permlane32_swap_b32 v{SV+1}, v{SV+3}
    v_add_f32 v{SV}, v{SV}, v{SV+2}
    v_add_f32 v{SV+1}, v{SV+1}, v{SV+3}
    v_permlane16_swap_b32 v{SV}, v{SV+1}
    v_add_f32 v{SV}, v{SV}, v{SV+1}
    v_add_f32_dpp v{SV}, v{SV}, v{SV} row_ror:8 {DPPM}
    v_add_f32_dpp v{SV}, v{SV}, v{SV} row_ror:4 {DPPM}
    v_add_f32_dpp v{SV}, v{SV}, v{SV} row_ror:2 {DPPM}
    v_cvt_pk_bf16_f32 v{SV}, v{SV}, v{SV}
    """)
    setexec(0x0003000300030003)
    a(f"global_store_short v{ba+4}, v{SV}, s[36:37]")
    a(f"""
    s_cmp_lg_u32 s8, 0
    s_cbranch_scc1 L_noep
    s_mov_b64 exec, 1
    v_mov_b32 v{t0}, {EP_OFF}
    global_store_dwordx2 v{t0}, {vr(ml+2,2)}, s[40:41]
    L_noep:
    """)
    setexec(-1)
    stamp(8)
    a("L_fin:")
    if probe:
        role, idx, amp = probe
        a(f"""
        s_waitcnt lgkmcnt(0)
        s_cmp_{'ge' if role == 'PO' else 'lt'}_u32 s2, 128
        s_cbranch_scc1 L_end
        s_cmp_eq_u32 s{80+2*idx}, 0
        s_cbranch_scc1 L_end
        s_sub_u32 s8, s{80+2*idx}, s80
        s_mul_i32 s8, s8, {amp}
        s_min_u32 s8, s8, 100000
        L_probe:
        s_sleep 2
        s_memrealtime s[10:11]
        s_waitcnt lgkmcnt(0)
        s_sub_u32 s10, s10, s80
        s_cmp_lt_u32 s10, s8
        s_cbranch_scc1 L_probe
        """)
    if DEV:
        a(f"""
        s_waitcnt vmcnt(0)
        s_memrealtime s[{80+2*9}:{81+2*9}]
        s_waitcnt lgkmcnt(0)
        s_lshl_b32 s7, s2, 3
        s_add_u32 s7, s7, s3
        s_mul_i32 s7, s7, {NST*4}
        s_add_u32 s7, s7, {STAMP_OFF}
        s_mov_b64 exec, 1
        v_mov_b32 v3, s7
        """)
        for i in range(NST):
            a(f"v_mov_b32 v4, s{80+2*i}\nglobal_store_dword v3, v4, s[40:41] offset:{4*i}")
    a("L_end:\ns_endpgm")
    lines = hazard.fix(a.lines)
    nv = max(po_v, V.n)
    return single("\n".join(lines) + "\n", 256, 512, 155648, vgpr=256, sgpr=102, accum=256), nv

if __name__ == "__main__":
    out = sys.argv[1]
    DEV = "dev" in sys.argv[2:]
    txt, nv = build(DEV, {k: True for k in sys.argv[2:]})
    open(out, "w").write(txt)
    print("vgprs", nv)
```

```python
import sys, math, struct
from genlib import *
import hazard

def f2u(x): return struct.unpack("<I", struct.pack("<f", x))[0]

QP_OFF, HP_OFF, QA_OFF, FL_OFF, EP_OFF, ML_OFF, LR_OFF, PC_OFF, PF_OFF, PB_OFF = 0x0, 0x20000, 0x30000, 0x38000, 0x3C000, 0x40000, 0x48000, 0x50000, 0xA0000, 0x100000
SPIN = 200000
DPPM = "row_mask:0xf bank_mask:0xf"
NLOG2E = hex(f2u(-math.log2(math.e)))

def build(DEV=False, opts=None):
    o = dict(opts or {})
    def opt(name, dflt):
        for k in o:
            if k.startswith(name + "="): return int(k.split("=")[1])
        return dflt
    a = Asm()
    def nt(k): return " nt" if (o.get("nt") or o.get("nt_" + k)) else ""
    NST = 11
    probe = None
    for k in o:
        if k.startswith("probe"):
            _, role, idx, amp = k.split("_"); probe = (role, idx, int(amp))
    role = ["PO"]
    want = {"PO": "p1 qp wuk qa wo ml pb cp pc".split(), "A": "p1 ckv qap scm max pbst pf fl2 out".split()}
    for k in o:
        if k.startswith("sPO="): want["PO"] = k[4:].split(",")
        if k.startswith("sA="): want["A"] = k[3:].split(",")
    if probe: want = {"PO": [], "A": []}; want[probe[0]] = [probe[1]]
    def stamp(nm, wait=False):
        if not (DEV or probe): return
        if nm == "start": a("s_memrealtime s[80:81]"); return
        w = want[role[0]]
        if nm in w:
            i = w.index(nm) + 1
            a(f"s_memrealtime s[{80+2*i}:{81+2*i}]")
            if wait: a("s_waitcnt lgkmcnt(0)")
    class VA:
        def __init__(s, start): s.n = start
        def __call__(s, k=1, al=1):
            s.n = (s.n + al - 1) // al * al
            r = s.n; s.n += k
            assert s.n <= 256
            return r
    def vr(b, k): return f"v[{b}:{b+k-1}]"
    def srd(dst, src, size):
        a(f"s_mov_b32 s{dst}, s{src}\ns_mov_b32 s{dst+1}, s{src+1}\ns_mov_b32 s{dst+2}, {size}\ns_mov_b32 s{dst+3}, 0x20000")
    def setexec(mask):
        if mask == -1: a("s_mov_b64 exec, -1")
        elif mask < (1 << 31): a(f"s_mov_b64 exec, {hex(mask)}")
        else: a(f"s_mov_b32 exec_lo, {hex(mask & 0xffffffff)}\ns_mov_b32 exec_hi, {hex(mask >> 32)}")
    def maxtree(dst, rs):
        rs = list(rs)
        a(f"v_max3_u32 v{dst}, v{rs[0]}, v{rs[1]}, v{rs[2]}")
        rs = rs[3:]
        while len(rs) >= 2:
            a(f"v_max3_u32 v{dst}, v{dst}, v{rs[0]}, v{rs[1]}"); rs = rs[2:]
        if rs: a(f"v_max_u32 v{dst}, v{dst}, v{rs[0]}")
    def spin_tail(Lp, Lo):
        a(f"s_cmp_gt_u32 s13, {SPIN}\ns_cbranch_scc1 {Lo}\ns_cbranch_vccnz {Lp}\n{Lo}:")
    def xrow(op, x, t):
        a(f"""
        v_mov_b32 v{t}, v{x}
        v_permlane16_swap_b32 v{x}, v{t}
        {op} v{x}, v{x}, v{t}
        v_mov_b32 v{t}, v{x}
        v_permlane32_swap_b32 v{x}, v{t}
        {op} v{x}, v{x}, v{t}
        """)
    def allred(op, dst, src, t):
        a(f"{op}_dpp v{dst}, v{src}, v{src} row_ror:1 {DPPM}")
        for d in (2, 4, 8): a(f"{op}_dpp v{dst}, v{dst}, v{dst} row_ror:{d} {DPPM}")
        xrow(op, dst, t)
    def rbf(dst, src):
        a(f"v_cvt_pk_bf16_f32 v{dst}, v{src}, v{src}\nv_and_b32 v{dst}, 0xffff0000, v{dst}")
    TAG = "s[70:71]"
    def tagcheck(pairs):
        dst = ["vcc", "s[72:73]", "s[74:75]", "s[76:77]"]
        for d, p in zip(dst, pairs): a(f"v_cmp_ne_u64 {d}, {TAG}, {vr(p,2)}")
        if len(pairs) > 1: a("s_nop 0")
        for d in dst[1:len(pairs)]: a(f"s_or_b64 vcc, vcc, {d}")
    def swz1280(dst, n, wsel):
        for j in range(n):
            a(f"""
            v_add_u32 v{t0}, {64*j}, v{vL}
            v_mul_u32_u24 v{t1}, 820, v{t0}
            v_lshrrev_b32 v{t1}, 16, v{t1}
            v_lshl_add_u32 v{t1}, v{t1}, 1, {wsel}
            v_xor_b32 v{t0}, v{t0}, v{t1}
            v_lshlrev_b32 v{dst+j}, 4, v{t0}
            """)

    vL, vS, vE, vN, vG = 0, 1, 2, 3, 4
    t0, t1, t2, t3 = 6, 7, 8, 9
    pub = 10; msk = 14; Dq = 18; vWo = 5
    BIG = 22
    Y = BIG; WQ = BIG + 80; xd = BIG + 160; selE = BIG + 170; selO = BIG + 174
    BIGEND = BIG + 178
    EA = opt("ea", 8)
    if DEV or probe:
        for i in range(1, NST): a(f"s_mov_b32 s{80+2*i}, 0")
    stamp("start")
    a(f"""
    s_cmp_ge_u32 s2, 256
    s_cbranch_scc1 L_end
    s_load_dwordx16 s[16:31], s[0:1], 0
    s_load_dwordx2 s[40:41], s[0:1], 96
    s_load_dwordx8 s[32:39], s[0:1], 64
    v_lshrrev_b32 v1, 6, v0
    v_and_b32 v0, 63, v0
    v_readfirstlane_b32 s3, v1
    """)
    if not o.get("nocpf"):
        a(f"""
        s_cmp_lg_u32 s3, 3
        s_cbranch_scc1 L_nocpf
        s_getpc_b64 s[42:43]
        v_lshlrev_b32 v{t0}, 7, v0
        v_add_u32 v{t1}, 8192, v{t0}
        global_load_dword v254, v{t0}, s[42:43]
        s_mov_b32 exec_hi, 0
        global_load_dword v255, v{t1}, s[42:43]
        s_mov_b32 exec_hi, -1
        L_nocpf:
        """)
    a(f"""
    s_and_b32 s4, s2, 7
    s_lshr_b32 s5, s2, 3
    v_and_b32 v3, 15, v0
    v_lshrrev_b32 v4, 4, v0
    v_lshrrev_b32 v1, 3, v0
    v_and_b32 v2, 7, v0
    v_mul_u32_u24 v{t0}, 40, v{vG}
    s_mul_i32 s8, s4, 160
    v_add_u32 v{t0}, s8, v{t0}
    v_mul_u32_u24 v{vWo}, {20*8192}, v{vG}
    v_lshl_add_u32 v{vWo}, v{vN}, 4, v{vWo}
    s_mul_i32 s8, s4, {80*8192}
    s_lshl_b32 s9, s5, 8
    s_add_u32 s8, s8, s9
    s_mov_b32 s46, {SZ['wq']}
    s_mov_b32 s47, 0x20000
    s_cmp_lg_u32 s3, 0
    s_waitcnt lgkmcnt(0)
    s_load_dwordx2 {TAG}, s[40:41], {EP_OFF}
    s_cbranch_scc1 L_noP1a
    s_mov_b32 s44, s20
    s_mov_b32 s45, s21
    global_load_dwordx4 {vr(xd,4)}, v{t0}, s[16:17]
    global_load_dwordx4 {vr(xd+4,4)}, v{t0}, s[16:17] offset:16
    global_load_dwordx2 {vr(xd+8,2)}, v{t0}, s[16:17] offset:32
    """)
    for u in range(20):
        a(f"buffer_load_dwordx4 {vr(WQ+4*u,4)}, v{vWo}, s[44:47], s8 offen{nt('wq')}\ns_add_u32 s8, s8, 8192")
    a(f"""
    s_barrier
    L_noP1a:
    v_and_b32 v{t0}, 1, v{vL}
    v_lshlrev_b32 v{t0}, 4, v{t0}
    v_mov_b32 v{t1}, 0xffff
    v_lshlrev_b32 v{t0}, v{t0}, v{t1}
    v_lshrrev_b32 v{t1}, 1, v{vE}
    s_and_b32 s7, s5, 3
    s_bfe_u32 s6, s5, 0x20002
    s_lshl_b32 s6, s6, 3
    s_add_u32 s6, s6, s4              ; PO: h ; A: reducer line
    s_and_b32 s15, s3, 3              ; cw
    """)
    for r in range(4):
        a(f"v_cmp_eq_u32 vcc, {r}, v{t1}\nv_cndmask_b32 v{msk+r}, 0, v{t0}, vcc")
    def gettag():
        a(f"s_waitcnt lgkmcnt(0)\ns_add_u32 s70, s70, 1\ns_add_u32 s71, s71, 0x9e3779b9\nv_mov_b32 v{pub+2}, s70\nv_mov_b32 v{pub+3}, s71")
    def gemv20(waits, vaddr, off):
        for u in range(20):
            if waits is not None: a(f"s_waitcnt vmcnt({19-u+waits})")
            a(f"v_mfma_f32_16x16x32_bf16 {vr(Dq,4)}, {vr(Y+4*u,4)}, {vr(WQ+4*u,4)}, {'0' if u == 0 else vr(Dq,4)}")
        a(f"""
        v_cvt_pk_bf16_f32 v{pub}, v{Dq}, v{Dq+1}
        v_cvt_pk_bf16_f32 v{pub+1}, v{Dq+2}, v{Dq+3}
        s_mov_b32 exec_hi, 0
        global_store_dwordx4 v{vaddr}, {vr(pub,4)}, s[40:41] offset:{off} sc1
        s_mov_b32 exec_hi, -1
        """)
    a(f"""
    s_cmp_lg_u32 s3, 0
    s_cbranch_scc1 L_noP1b
    v_mov_b32 v{t2}, 0x0c0c0c0c
    s_mov_b32 s12, 0x01000100
    s_mov_b32 s13, 0x03020302
    """)
    for r in range(4):
        a(f"v_bfi_b32 v{selE+r}, v{msk+r}, s12, v{t2}\nv_bfi_b32 v{selO+r}, v{msk+r}, s13, v{t2}")
    a(f"s_lshl_b32 s12, s2, 9\nv_lshl_add_u32 v{t3}, v{vL}, 4, s12\ns_waitcnt vmcnt(20)")
    for u in range(20):
        for r in range(4):
            a(f"v_perm_b32 v{Y+4*u+r}, v{xd+u//2}, v{xd+u//2}, v{(selO if u & 1 else selE)+r}")
    gettag()
    gemv20(0, t3, QP_OFF)
    if DEV: a("s_memrealtime s[82:83]")
    a(f"""
    L_noP1b:
    v_mov_b32 v{Dq}, -1
    v_mov_b32 v{Dq+1}, -1
    v_mov_b32 v{Dq+2}, -1
    v_mov_b32 v{Dq+3}, -1
    s_cmp_ge_u32 s5, 16
    s_cbranch_scc1 L_roleA
    """)
    V = VA(BIG)
    AO = V(40, 2); AUV = V(32, 2); YW = V(16, 2); PBR = V(16, 2); OUT = V(20, 2); D2 = V(16, 2)
    WK = AO; QPR = AO; qf = AUV
    acc = V(4, 2); ml = V(4, 2); qp = V(8, 2); cf = V(8, 2)
    oW = V(5); vQs = V(); ones = V(2, 2); yI = V(2, 2)
    vML, vPB, vCW, vCR, vCT, vPC, vMS, vW, vUo, vM2 = [V() for _ in range(10)]
    QL, MLS, CP, CC, WKL, WUVL, WOL = 0, 1024, 2048, 4096, 8192, 40960, 73728
    a(f"""
    s_cmp_ge_u32 s3, 4
    s_cbranch_scc1 L_poK
    s_cmp_eq_u32 s3, 0
    s_cbranch_scc1 L_poH2
    s_cmp_lg_u32 s3, 2
    s_cbranch_scc1 L_poH1
    s_mul_i32 s14, s2, 2560
    s_add_u32 s14, s14, {PC_OFF}
    v_lshl_add_u32 v{t0}, v{vL}, 4, s14
    s_lshl_b32 s12, s6, 10
    s_lshl_b32 s13, s7, 8
    s_add_u32 s12, s12, s13
    s_add_u32 s12, s12, {QA_OFF}
    v_lshl_add_u32 v{t1}, v{vL}, 4, s12
    s_mov_b64 exec, 0xffff
    global_store_dwordx4 v{t1}, {vr(Dq,4)}, s[40:41] sc1
    s_mov_b64 exec, -1
    global_store_dwordx4 v{t0}, {vr(Dq,4)}, s[40:41] sc1
    global_store_dwordx4 v{t0}, {vr(Dq,4)}, s[40:41] offset:1024 sc1
    s_mov_b32 exec_hi, 0
    global_store_dwordx4 v{t0}, {vr(Dq,4)}, s[40:41] offset:2048 sc1
    s_mov_b32 exec_hi, -1
    L_poH1:
    s_barrier
    """)
    gettag()
    a(f"""
    s_cmp_lg_u32 s3, 2
    s_cbranch_scc1 L_poH2
    s_lshl_b32 s8, s2, 7
    s_add_u32 s8, s8, {FL_OFF}
    v_mov_b32 v{t0}, s8
    s_waitcnt vmcnt(0)
    s_mov_b64 exec, 1
    global_store_dwordx2 v{t0}, {vr(pub+2,2)}, s[40:41] sc1
    s_mov_b64 exec, -1
    s_branch L_poH2
    L_poK:
    """)
    srd(48, 22, SZ['wuk'])
    a(f"""
    v_xor_b32 v{t0}, v{vN}, v{vG}
    v_lshlrev_b32 v{t1}, 13, v{vG}
    v_lshl_add_u32 v{oW}, v{t0}, 4, v{t1}
    v_xor_b32 v{oW+1}, 64, v{oW}
    v_xor_b32 v{oW+2}, 128, v{oW}
    v_xor_b32 v{oW+3}, 192, v{oW}
    s_lshl_b32 s10, s7, 20
    s_lshl_b32 s11, s15, 18
    s_add_u32 s10, s10, s11
    s_lshl_b32 s11, s6, 8
    s_add_u32 s10, s10, s11
    s_lshl_b32 s11, s15, 13
    s_add_u32 s11, s11, {WKL}
    s_barrier
    """)
    for j in range(8):
        step = 65536 if j != 3 else (4 - 24) * 8192
        a(f"s_mov_b32 m0, s11\ns_add_u32 s11, s11, 1024\nbuffer_load_dwordx4 v{oW+(j&3)}, s[48:51], s10 offen{nt('wuk')} lds\ns_add_u32 s10, s10, {hex(step & 0xffffffff)}")
    a("s_setprio 2\nL_poH2:")
    srd(52, 24, SZ['wuv']); srd(56, 26, SZ['wo'])
    a(f"s_and_b32 s13, s3, 1\ns_lshl_b32 s13, s13, 3")
    swz1280(oW, 5, "s13")
    a(f"""
    v_mov_b32 v{ones}, 0x3f803f80
    v_mov_b32 v{ones+1}, 0x3f803f80
    s_and_b32 s12, s7, 1
    s_lshl_b32 s13, s6, 1
    s_add_u32 s12, s12, s13
    s_mul_i32 s12, s12, {64*1280}
    s_lshr_b32 s13, s7, 1
    s_mul_i32 s14, s13, 40960
    s_mul_i32 s9, s3, 5120
    s_add_u32 s14, s14, s9
    s_add_u32 s12, s12, s14
    s_add_u32 s14, s14, {WOL}
    s_mul_i32 s9, s13, 81920
    s_sub_u32 s9, 40960, s9
    ; wuv
    v_lshlrev_b32 v{t0}, 1, v{vG}
    v_xor_b32 v{t0}, v{t0}, v{vE}
    v_lshlrev_b32 v{vUo}, 13, v{vS}
    v_lshl_add_u32 v{vUo}, v{t0}, 4, v{vUo}
    s_lshl_b32 s10, s13, 21
    s_lshl_b32 s11, s3, 18
    s_add_u32 s10, s10, s11
    s_lshl_b32 s11, s6, 8
    s_add_u32 s10, s10, s11
    s_and_b32 s11, s7, 1
    s_lshl_b32 s11, s11, 7
    s_add_u32 s10, s10, s11
    s_lshl_b32 s11, s3, 12
    s_add_u32 s11, s11, {WUVL}
    s_lshr_b32 s8, s6, 4
    s_lshl_b32 s8, s8, 14
    s_and_b32 s42, s6, 15
    s_lshl_b32 s42, s42, 4
    s_add_u32 s8, s8, s42
    s_add_u32 s8, s8, {ML_OFF}
    v_lshl_add_u32 v{vML}, v{vL}, 8, s8
    s_lshl_b32 s8, s6, 16
    s_lshl_b32 s42, s13, 9
    s_add_u32 s8, s8, s42
    s_lshl_b32 s42, s15, 7
    s_add_u32 s8, s8, s42
    s_lshr_b32 s42, s3, 2
    s_lshl_b32 s43, s42, 15
    s_add_u32 s8, s8, s43
    s_add_u32 s8, s8, {PB_OFF}
    v_lshl_add_u32 v{vPB}, v{vS}, 12, s8
    v_lshl_add_u32 v{vPB}, v{vE}, 4, v{vPB}
    v_and_b32 v{t2}, 3, v{vL}
    v_lshl_add_u32 v{t2}, v{vS}, 2, v{t2}
    s_lshl_b32 s43, s42, 7
    v_lshl_add_u32 v{vM2}, v{t2}, 2, s43
    s_lshl_b32 s8, s3, 8
    s_add_u32 s8, s8, {CC}
    v_lshrrev_b32 v{t2}, 1, v{vG}
    v_lshl_add_u32 v{vCW}, v{t2}, 7, s8
    v_lshl_add_u32 v{vCW}, v{vE}, 4, v{vCW}
    v_and_b32 v{t2}, 1, v{vG}
    v_lshl_add_u32 v{vCW}, v{t2}, 3, v{vCW}
    v_and_b32 v{t2}, 1, v{vL}
    v_lshl_add_u32 v{vCR}, v{t2}, 7, s8
    v_lshl_add_u32 v{vCR}, v{vG}, 4, v{vCR}
    s_lshl_b32 s8, s3, 6
    v_lshl_add_u32 v{vCT}, v{t2}, 5, s8
    v_lshl_add_u32 v{vCT}, v{vG}, 3, v{vCT}
    s_mul_i32 s8, s2, 2560
    s_mul_i32 s42, s3, 320
    s_add_u32 s8, s8, s42
    s_add_u32 s8, s8, {PC_OFF}
    v_lshl_add_u32 v{vPC}, v{vG}, 4, s8
    v_lshlrev_b32 v{vMS}, 3, v{vL}
    s_cmp_ge_u32 s3, 4
    s_cbranch_scc1 L_poK2
    s_cmp_lg_u32 s3, 1
    s_cbranch_scc1 L_noqp
    v_and_b32 v{acc}, 1, v{vG}
    v_cmp_eq_u32 vcc, 1, v{acc}
    v_cndmask_b32 v{yI}, v{msk}, v{msk+2}, vcc
    v_cndmask_b32 v{yI+1}, v{msk+1}, v{msk+3}, vcc
    v_and_b32 v{yI}, v{ones}, v{yI}
    v_and_b32 v{yI+1}, v{ones}, v{yI+1}
    s_lshl_b32 s8, s6, 12
    v_lshl_add_u32 v{acc}, v{vL}, 4, s8
    v_lshlrev_b32 v{acc+1}, 4, v{vN}
    v_lshl_add_u32 v{acc+1}, v{vG}, 3, v{acc+1}
    s_mov_b32 s13, 0
    L_qpp:
    """)
    for j in range(4): a(f"global_load_dwordx4 {vr(QPR+4*j,4)}, v{acc}, s[40:41] offset:{QP_OFF+1024*j} sc1")
    a("s_add_u32 s13, s13, 1\ns_waitcnt vmcnt(0)")
    for j in range(4):
        a(f"v_mfma_f32_16x16x16_bf16 {vr(Dq,4)}, {vr(yI,2)}, {vr(QPR+4*j,2)}, {'0' if j == 0 else vr(Dq,4)}")
    tagcheck([QPR+2, QPR+6, QPR+10, QPR+14])
    spin_tail("L_qpp", "L_qpo")
    stamp("qp")
    a(f"""
    v_cvt_pk_bf16_f32 v{Dq}, v{Dq}, v{Dq+1}
    v_cvt_pk_bf16_f32 v{Dq+1}, v{Dq+2}, v{Dq+3}
    s_mov_b32 exec_hi, 0
    ds_write_b64 v{acc+1}, {vr(Dq,2)} offset:{QL}
    s_mov_b32 exec_hi, -1
    L_noqp:
    s_waitcnt lgkmcnt(0)
    s_barrier
    """)
    def wo_load(j):
        a(f"s_mov_b32 m0, s14\ns_add_u32 s14, s14, 1024\nbuffer_load_dwordx4 v{oW+j}, s[56:59], s12 offen{nt('wo')} lds")
    if o.get("noearly"): a("s_barrier")
    for j in range(5): wo_load(j)
    a(f"""
    {"" if o.get("noearly") else "s_barrier"}
    s_branch L_poJ
    L_poK2:
    s_lshl_b32 s8, s6, 10
    s_lshl_b32 s13, s7, 8
    s_add_u32 s8, s8, s13
    s_lshl_b32 s13, s15, 6
    s_add_u32 s8, s8, s13
    s_add_u32 s8, s8, {QA_OFF}
    v_lshl_add_u32 v{vQs}, v{vG}, 4, s8
    s_lshl_b32 s8, s15, 13
    s_add_u32 s8, s8, {WKL}
    v_xor_b32 v{t0}, v{vN}, v{vG}
    v_lshl_add_u32 v{t1}, v{vN}, 8, s8
    v_lshl_add_u32 v{t0}, v{t0}, 4, v{t1}
    v_xor_b32 v{t1}, 64, v{t0}
    v_xor_b32 v{t2}, 128, v{t0}
    v_xor_b32 v{t3}, 192, v{t0}
    s_waitcnt vmcnt(0)
    """)
    stamp("wuk")
    for tau in range(2):
        for ks in range(4): a(f"ds_read_b128 {vr(WK+16*tau+4*ks,4)}, v{[t0,t1,t2,t3][ks]} offset:{4096*tau}")
    a(f"""
    v_lshlrev_b32 v{t0}, 4, v{vG}
    s_mov_b32 s13, {hex(f2u(128**-0.5 * math.log2(math.e)))}
    s_waitcnt lgkmcnt(0)
    s_barrier
    """)
    for ks in range(4): a(f"ds_read_b128 {vr(qf+4*ks,4)}, v{t0} offset:{QL+64*ks}")
    for ks in range(4):
        a(f"s_waitcnt lgkmcnt({3-ks})")
        a(f"v_mfma_f32_16x16x32_bf16 {vr(Dq,4)}, {vr(WK+4*ks,4)}, {vr(qf+4*ks,4)}, {'0' if ks == 0 else vr(Dq,4)}")
        a(f"v_mfma_f32_16x16x32_bf16 {vr(acc,4)}, {vr(WK+16+4*ks,4)}, {vr(qf+4*ks,4)}, {'0' if ks == 0 else vr(acc,4)}")
    for r in range(4): a(f"v_mul_f32 v{Dq+r}, s13, v{Dq+r}")
    for r in range(4): a(f"v_mul_f32 v{acc+r}, s13, v{acc+r}")
    a(f"""
    v_cvt_pk_bf16_f32 v{qp}, v{Dq}, v{Dq+1}
    v_cvt_pk_bf16_f32 v{qp+1}, v{Dq+2}, v{Dq+3}
    v_cvt_pk_bf16_f32 v{qp+2}, v{acc}, v{acc+1}
    v_cvt_pk_bf16_f32 v{qp+3}, v{acc+2}, v{acc+3}
    """)
    setexec(0x0001000100010001)
    a(f"global_store_dwordx4 v{vQs}, {vr(qp,4)}, s[40:41] sc1")
    setexec(-1)
    stamp("qa")
    if o.get("qack") or "qack" in want["PO"]: a("s_waitcnt vmcnt(0)")
    stamp("qack")
    if o.get("podelay"):
        a("s_sleep 20")
    a("s_setprio 0\ns_barrier")
    for j in range(5): wo_load(j)
    a("L_poJ:")
    for j in range(4):
        a(f"s_mov_b32 m0, s11\ns_add_u32 s11, s11, 1024\nbuffer_load_dwordx4 v{vUo}, s[52:55], s10 offen{nt('wuv')} lds\ns_add_u32 s10, s10, 65536")
    a(f"s_add_u32 s12, s12, s9\ns_add_u32 s14, s14, s9\ns_sub_u32 s14, s14, 5120")
    if o.get("obar"): a("s_barrier")
    for j in range(5): wo_load(j)
    a(f"""
    v_lshrrev_b32 v{t1}, 2, v{vL}
    v_and_b32 v{t3}, 7, v{t1}
    v_and_b32 v{t2}, 3, v{vL}
    v_lshlrev_b32 v{t0}, 7, v{t1}
    v_lshl_add_u32 v{t0}, v{t2}, 3, v{t0}
    s_lshl_b32 s13, s15, 13
    s_add_u32 s13, s13, {WUVL}
    v_add_u32 v{t0}, s13, v{t0}
    v_mul_u32_u24 v{t1}, 1280, v{t1}
    v_lshl_add_u32 v{t1}, v{t2}, 3, v{t1}
    v_add_u32 v{t1}, {WOL}, v{t1}
    s_mul_i32 s13, s3, 5
    """)
    for T in range(5):
        a(f"v_xor_b32 v{oW+T}, s13, v{t3}\nv_lshl_add_u32 v{oW+T}, v{oW+T}, 5, v{t1}\ns_add_u32 s13, s13, 1")
    a(f"v_lshrrev_b32 v{t3}, 1, v{t3}")
    for Td in range(4):
        a(f"v_xor_b32 v{t2}, {Td}, v{t3}\nv_lshl_add_u32 v{cf+Td}, v{t2}, 5, v{t0}")
    a("s_waitcnt vmcnt(0)\ns_barrier")
    stamp("wo", True)
    a(f"""
    s_cmp_lg_u32 s3, 0
    s_cbranch_scc1 L_noml0
    global_load_dwordx4 {vr(ml,4)}, v{vML}, s[40:41] sc1
    L_noml0:
    """)
    n_ = 0
    for ks in range(2):
        for Td in range(4):
            for aa in range(2):
                a(f"ds_read_b64_tr_b16 {vr(AUV+16*ks+4*Td+2*aa,2)}, v{cf+Td} offset:{(32*ks+16*aa)*128}")
        a("s_waitcnt lgkmcnt(6)")
    for T in range(5):
        for ks in range(2):
            for aa in range(2):
                a(f"ds_read_b64_tr_b16 {vr(AO+8*T+4*ks+2*aa,2)}, v{oW+T} offset:{(2*ks+aa)*20480}")
        if T in (1, 3): a("s_waitcnt lgkmcnt(6)")
    a(f"""
    s_cmp_lg_u32 s3, 0
    s_cbranch_scc1 L_mlw
    s_mov_b32 s13, 0
    s_branch L_mlc
    L_mlp:
    global_load_dwordx4 {vr(ml,4)}, v{vML}, s[40:41] sc1
    L_mlc:
    s_add_u32 s13, s13, 1
    s_waitcnt vmcnt(0)
    """)
    tagcheck([ml+2])
    spin_tail("L_mlp", "L_mlo")
    a(f"""
    v_lshlrev_b32 v{t0}, 2, v{vL}
    ds_write_b32 v{t0}, v{ml} offset:{MLS}
    v_add_u32 v{vML}, {LR_OFF-ML_OFF}, v{vML}
    L_mlw:
    s_waitcnt lgkmcnt(0)
    s_barrier
    """)
    stamp("ml")
    a(f"""
    s_cmp_lg_u32 s3, 0
    s_cbranch_scc1 L_nol0
    global_load_dwordx4 {vr(ml,4)}, v{vML}, s[40:41] sc1
    L_nol0:
    """)
    def pb_loads():
        for u in range(4): a(f"global_load_dwordx4 {vr(PBR+4*u,4)}, v{vPB}, s[40:41] offset:{1024*u} sc1")
    pb_loads()
    a(f"""
    v_lshlrev_b32 v{t0}, 2, v{vL}
    ds_read_b32 v{t3}, v{t0} offset:{MLS}
    ds_read_b32 v{t2}, v{vM2} offset:{MLS}
    s_waitcnt lgkmcnt(0)
    """)
    allred("v_max_f32", t0, t3, t1)
    a(f"""
    v_sub_f32 v{t2}, v{t2}, v{t0}
    v_sub_f32 v{t3}, v{t3}, v{t0}
    v_exp_f32 v{t2}, v{t2}
    v_exp_f32 v{vW}, v{t3}
    v_cvt_pk_bf16_f32 v{t2}, v{t2}, v{t2}
    """)
    for u in range(4):
        for r in range(4):
            a(f"v_and_b32_dpp v{YW+4*u+r}, v{t2}, v{msk+r} quad_perm:[{u},{u},{u},{u}] {DPPM}")
    a(f"""
    s_cmp_lg_u32 s3, 0
    s_cbranch_scc1 L_nol1
    s_mov_b32 s13, 0
    s_waitcnt vmcnt(4)
    s_branch L_lrc
    L_lrp:
    global_load_dwordx4 {vr(ml,4)}, v{vML}, s[40:41] sc1
    s_waitcnt vmcnt(0)
    L_lrc:
    s_add_u32 s13, s13, 1
    """)
    tagcheck([ml+2])
    spin_tail("L_lrp", "L_lro")
    a(f"v_mul_f32 v{t2}, v{vW}, v{ml}")
    allred("v_add_f32", t0, t2, t1)
    a(f"""
    v_rcp_f32 v{pub}, v{t0}
    s_lshl_b32 s8, s2, 7
    s_add_u32 s8, s8, {FL_OFF+16}
    v_mov_b32 v{t3}, s8
    L_nol1:
    """)
    a("s_mov_b32 s13, 0\ns_branch L_pbc\nL_pbp:")
    pb_loads()
    a("L_pbc:\ns_add_u32 s13, s13, 1")
    for u in range(4):
        a(f"s_waitcnt vmcnt({3-u})")
        a(f"v_mfma_f32_16x16x32_bf16 {vr(Dq,4)}, {vr(YW+4*u,4)}, {vr(PBR+4*u,4)}, {'0' if u == 0 else vr(Dq,4)}")
        R = PBR + 4*u
        if u == 0: a(f"v_max3_u32 v{t2}, v{R}, v{R+1}, v{R+2}\nv_max_u32 v{t2}, v{t2}, v{R+3}")
        else: a(f"v_max3_u32 v{t2}, v{t2}, v{R}, v{R+1}\nv_max3_u32 v{t2}, v{t2}, v{R+2}, v{R+3}")
    a(f"v_cmp_eq_u32 vcc, -1, v{t2}")
    spin_tail("L_pbp", "L_pbo")
    stamp("pb")
    a(f"""
    s_cmp_lg_u32 s3, 0
    s_cbranch_scc1 L_nol2
    s_mov_b64 exec, 1
    global_store_dwordx4 v{t3}, {vr(pub,4)}, s[40:41] sc1
    s_mov_b64 exec, -1
    L_nol2:
    v_cvt_pk_bf16_f32 v{qp}, v{Dq}, v{Dq+1}
    v_cvt_pk_bf16_f32 v{qp+1}, v{Dq+2}, v{Dq+3}
    """)
    setexec(0xFF00FF0000FF00FF)
    a(f"ds_write_b64 v{vCW}, {vr(qp,2)}")
    setexec(-1)
    a(f"""
    s_waitcnt lgkmcnt(0)
    ds_read_b128 {vr(cf,4)}, v{vCR}
    ds_read_b128 {vr(cf+4,4)}, v{vCR} offset:64
    """)
    for ks in range(2):
        a(f"s_waitcnt lgkmcnt({1-ks})")
        for Td in range(4):
            a(f"v_mfma_f32_16x16x32_bf16 {vr(D2+4*Td,4)}, {vr(AUV+16*ks+4*Td,4)}, {vr(cf+4*ks,4)}, {'0' if ks == 0 else vr(D2+4*Td,4)}")
    setexec(0x0003000300030003)
    for Td in range(4):
        a(f"v_cvt_pk_bf16_f32 v{qp+2*Td}, v{D2+4*Td}, v{D2+4*Td+1}\nv_cvt_pk_bf16_f32 v{qp+2*Td+1}, v{D2+4*Td+2}, v{D2+4*Td+3}")
        a(f"ds_write_b64 v{vCT}, {vr(qp+2*Td,2)} offset:{CP+512*Td}")
    setexec(-1)
    a("s_waitcnt lgkmcnt(0)\ns_barrier")
    stamp("cp", True)
    for Td in range(4): a(f"ds_read_b64_tr_b16 {vr(cf+2*Td,2)}, v{vMS} offset:{CP+512*Td}")
    for Td in range(4):
        a(f"s_waitcnt lgkmcnt({3-Td})")
        a(f"v_mfma_f32_16x16x16_bf16 {vr(D2+4*Td,4)}, {vr(cf+2*Td,2)}, {vr(ones,2)}, 0")
    for i in range(4): a(f"v_cvt_pk_bf16_f32 v{qp+i}, v{D2+2*i}, v{D2+2*i+1}")
    for i in range(4, 8): a(f"v_cvt_pk_bf16_f32 v{qp+i}, v{D2+2*i}, v{D2+2*i+1}")
    for ks in range(2):
        for T in range(5):
            a(f"v_mfma_f32_16x16x32_bf16 {vr(OUT+4*T,4)}, {vr(AO+8*T+4*ks,4)}, {vr(qp+4*ks,4)}, {'0' if ks == 0 else vr(OUT+4*T,4)}")
    setexec(0x0001000100010001)
    for T in range(5): a(f"global_store_dwordx4 v{vPC}, {vr(OUT+4*T,4)}, s[40:41] offset:{64*T} sc1")
    setexec(-1)
    stamp("pc")
    a("s_branch L_fin")
    po_v = V.n
    role[0] = "A"
    CK = BIG; CV = BIG + 64; QB = BIG + 128
    V = VA(BIG + 192)
    SV = QB; U = QB + 16; DP = QB + 24
    DS = Dq
    ba = V(8); vPBs = V(); vMLs = V(); vq = V(); vqw = V(2); vqr = V(2); vSa = V(); vSw = V()
    QP = V(8, 2); vPF = V()
    ml = pub
    CKV, QAS, SL, W2L = 0, 65536, 81920, 86016
    a(f"""
    L_roleA:
    s_and_b32 s78, s5, 1                     ; grp
    s_bfe_u32 s79, s5, 0x30001
    s_lshl_b32 s79, s79, 3
    s_add_u32 s79, s79, s4                   ; chunk
    s_sub_u32 s69, s2, 128
    v_mov_b32 v{vPBs}, 0xf0000
    v_mov_b32 v{vPF}, 0xf0000
    s_cmp_ge_u32 s3, 4
    s_cbranch_scc1 L_aC
    s_cmp_eq_u32 s3, 0
    s_cbranch_scc1 L_aH0
    s_barrier
    """)
    gettag()
    a(f"""
    L_aH0:
    s_lshl_b32 s8, s78, 4
    s_lshl_b32 s9, s3, 2
    s_add_u32 s8, s8, s9
    s_lshl_b32 s8, s8, 16
    s_lshl_b32 s9, s79, 10
    s_add_u32 s8, s8, s9
    s_add_u32 s8, s8, {PB_OFF}
    v_lshl_add_u32 v{t0}, v{vL}, 4, s8
    v_add_u32 v{t1}, 0x10000, v{t0}
    v_add_u32 v{t2}, 0x20000, v{t0}
    v_add_u32 v{t3}, 0x30000, v{t0}
    global_store_dwordx4 v{t0}, {vr(Dq,4)}, s[40:41] sc1
    global_store_dwordx4 v{t1}, {vr(Dq,4)}, s[40:41] sc1
    global_store_dwordx4 v{t2}, {vr(Dq,4)}, s[40:41] sc1
    global_store_dwordx4 v{t3}, {vr(Dq,4)}, s[40:41] sc1
    s_mul_i32 s8, s69, 2560
    s_mul_i32 s9, s3, 640
    s_add_u32 s8, s8, s9
    s_add_u32 s14, s8, {PF_OFF}
    v_lshl_add_u32 v{t1}, v{vL}, 4, s14
    v_lshl_add_u32 v{vPF}, v{vG}, 4, s14
    s_mov_b32 exec_hi, 0xff
    global_store_dwordx4 v{t1}, {vr(Dq,4)}, s[40:41] sc1
    s_mov_b32 exec_hi, -1
    """)
    srd(60, 30, SZ['w1']); srd(64, 32, SZ['w2'])
    a(f"s_and_b32 s13, s3, 1\ns_lshl_b32 s13, s13, 3")
    swz1280(ba, 5, "s13")
    a(f"""
    s_mul_i32 s12, s69, {16*1280}
    s_mul_i32 s14, s3, 5120
    s_add_u32 s12, s12, s14
    s_add_u32 s14, s14, {W2L}
    s_lshl_b32 s11, s78, 13
    s_add_u32 s11, s11, {FL_OFF}
    v_lshl_add_u32 v{ba+5}, v{vL}, 7, s11
    s_barrier
    s_cmp_lg_u32 s3, 0
    s_cbranch_scc1 L_now1
    s_cmp_ge_u32 s69, 112
    s_cbranch_scc1 L_now1
    v_mul_u32_u24 v{vWo}, {20*3456}, v{vG}
    v_lshl_add_u32 v{vWo}, v{vN}, 4, v{vWo}
    s_mul_i32 s8, s4, {80*3456}
    s_lshr_b32 s9, s69, 3
    s_lshl_b32 s9, s9, 8
    s_add_u32 s8, s8, s9
    """)
    for u in range(20):
        a(f"buffer_load_dwordx4 {vr(WQ+4*u,4)}, v{vWo}, s[60:63], s8 offen{nt('w1')}\ns_add_u32 s8, s8, 3456")
    a("L_now1:")
    for j in range(5):
        a(f"s_mov_b32 m0, s14\ns_add_u32 s14, s14, 1024\nbuffer_load_dwordx4 v{ba+j}, s[64:67], s12 offen{nt('w2')} lds")
    a(f"""
    s_cmp_lg_u32 s3, 1
    s_cbranch_scc1 L_nofa
    s_mov_b32 s13, 0
    L_fap:
    global_load_dwordx2 {vr(QP,2)}, v{ba+5}, s[40:41] sc1
    s_add_u32 s13, s13, 1
    s_waitcnt vmcnt(0)
    """)
    tagcheck([QP])
    spin_tail("L_fap", "L_nofa")
    a("s_branch L_aJ")
    a(f"""
    L_aC:
    s_lshl_b32 s8, s79, 16
    s_lshl_b32 s9, s15, 14
    s_add_u32 s8, s8, s9
    s_lshl_b32 s10, s78, 13                  ; rotation
    v_lshlrev_b32 v{t3}, 4, v{vL}
    """)
    for k in range(8): a(f"v_xor_b32 v{ba+k}, {32*k}, v{t3}")
    srd(48, 18, SZ['ckv'])
    def ckv_setq():
        a("s_add_u32 s11, s9, s10\ns_add_u32 s14, s8, s10\ns_mov_b32 m0, s11\ns_add_u32 s10, s10, 4096\ns_and_b32 s10, s10, 0x3fff")
    def ckv_ld(jj):
        if jj % 4 == 0: ckv_setq()
        a(f"buffer_load_dwordx4 v{ba+(jj&7)}, s[48:51], s14 offen offset:{1024*(jj&3)}{nt('ckv')} lds")
    a("s_barrier")
    for jj in range(EA): ckv_ld(jj)
    gettag()
    a("s_setprio 2\ns_barrier")
    for jj in range(EA, 16): ckv_ld(jj)
    a(f"""
    v_lshl_add_u32 v{t0}, v{vN}, 10, s9
    v_lshlrev_b32 v{t1}, 1, v{vE}
    v_xor_b32 v{t1}, v{t1}, v{vG}             ; g ^ 2(i&7)
    """)
    for q in range(4):
        a(f"v_xor_b32 v{t2}, {4*q}, v{t1}\nv_lshl_add_u32 v{ba+q}, v{t2}, 4, v{t0}")
    a(f"""
    v_xor_b32 v{t0}, v{vN}, v{vG}
    v_lshlrev_b32 v{t1}, 8, v{vG}
    v_lshl_add_u32 v{vqr}, v{t0}, 4, v{t1}
    v_add_u32 v{vqr}, {QAS}, v{vqr}
    v_xor_b32 v{vqr+1}, 64, v{vqr}
    s_lshl_b32 s8, s78, 20
    s_lshl_b32 s10, s79, 10
    s_add_u32 s8, s8, s10
    s_lshl_b32 s10, s15, 8
    s_add_u32 s8, s8, s10
    s_add_u32 s8, s8, {PB_OFF}
    v_lshl_add_u32 v{vPBs}, v{vN}, 16, s8
    v_lshl_add_u32 v{vPBs}, v{vG}, 4, v{vPBs}
    s_waitcnt vmcnt(0)
    """)
    stamp("ckvl", True)
    for t in range(16):
        a(f"ds_read_b128 {vr(CK+4*t,4)}, v{ba+(t&3)} offset:{256*(t>>2)}")
        if t == 11: a("s_waitcnt lgkmcnt(6)")
    a(f"""
    v_lshrrev_b32 v{t0}, 2, v{vL}             ; 4g+r
    v_and_b32 v{t1}, 7, v{t0}                 ; key&7
    v_lshlrev_b32 v{t0}, 10, v{t0}
    v_and_b32 v{t2}, 3, v{vL}
    v_lshl_add_u32 v{t0}, v{t2}, 3, v{t0}
    s_lshl_b32 s8, s15, 8
    v_add_u32 v{t0}, s8, v{t0}
    """)
    for T in range(8):
        a(f"v_xor_b32 v{t2}, {T}, v{t1}\nv_lshl_add_u32 v{ba+T}, v{t2}, 5, v{t0}")
    a(f"""
    L_aJ:
    v_lshlrev_b32 v{vSa}, 4, v{vL}
    v_add_u32 v{vSa}, {SL}, v{vSa}
    s_lshl_b32 s8, s15, 10
    v_add_u32 v{vSw}, s8, v{vSa}
    s_lshl_b32 s10, s78, 6
    s_add_u32 s10, s10, s79
    s_lshl_b32 s10, s10, 8
    s_add_u32 s10, s10, {ML_OFF}
    v_lshl_add_u32 v{vMLs}, v{vN}, 4, s10
    s_lshl_b32 s11, s78, 14
    s_lshl_b32 s12, s3, 11
    s_add_u32 s11, s11, s12
    s_add_u32 s11, s11, {QA_OFF}
    v_lshl_add_u32 v{vq}, v{vL}, 4, s11
    s_lshl_b32 s9, s3, 1
    v_xor_b32 v{t0}, s9, v{vE}
    v_lshlrev_b32 v{t1}, 8, v{vL}
    v_lshl_add_u32 v{vqw}, v{t0}, 4, v{t1}
    v_add_u32 v{vqw}, {QAS}, v{vqw}
    v_xor_b32 v{vqw+1}, 16, v{vqw}
    s_barrier
    """)
    stamp("ckv")
    def qa_loads():
        a(f"global_load_dwordx4 {vr(QP,4)}, v{vq}, s[40:41] sc1")
        a(f"global_load_dwordx4 {vr(QP+4,4)}, v{vq}, s[40:41] offset:1024 sc1")
    qa_loads()
    a("s_cmp_lt_u32 s3, 4\ns_cbranch_scc1 L_nocv")
    for T in range(8):
        if T % 2 == 0: a("s_waitcnt lgkmcnt(4)")
        for t in range(2):
            for aa in range(2):
                a(f"ds_read_b64_tr_b16 {vr(CV+8*T+4*t+2*aa,2)}, v{ba+T} offset:{(32*t+16*aa)*1024}")
    a("L_nocv:\ns_mov_b32 s13, 0\ns_branch L_qac\nL_qap:")
    qa_loads()
    a("L_qac:\ns_add_u32 s13, s13, 1\ns_waitcnt vmcnt(0)")
    maxtree(t2, range(QP, QP+8))
    a(f"v_cmp_eq_u32 vcc, -1, v{t2}")
    spin_tail("L_qap", "L_qao")
    stamp("qap")
    a(f"""
    ds_write_b128 v{vqw}, {vr(QP,4)}
    ds_write_b128 v{vqw+1}, {vr(QP+4,4)}
    s_waitcnt lgkmcnt(0)
    s_barrier
    s_cmp_lt_u32 s3, 4
    s_cbranch_scc1 L_aH2
    """)
    stamp("qa", True)
    def qread(t): a(f"ds_read_b128 {vr(QB+4*t,4)}, v{vqr+(t&1)} offset:{1024*t}")
    PRE = 12
    for t in range(PRE): qread(t)
    for t in range(16):
        issued = min(16, PRE + t)
        a(f"s_waitcnt lgkmcnt({issued - t - 1})")
        a(f"v_mfma_f32_16x16x32_bf16 {vr(DS,4)}, {vr(CK+4*t,4)}, {vr(QB+4*t,4)}, {'0' if t == 0 else vr(DS,4)}")
        if t + PRE < 16: qread(t + PRE)
    stamp("scm")
    a(f"""
    ds_write_b128 v{vSw}, {vr(DS,4)}
    s_waitcnt lgkmcnt(0)
    s_barrier
    """)
    def smax():
        for q in range(4): a(f"ds_read_b128 {vr(SV+4*q,4)}, v{vSa} offset:{1024*q}")
        a("s_waitcnt lgkmcnt(2)")
        a(f"v_max3_f32 v{t0}, v{SV}, v{SV+1}, v{SV+2}\nv_max3_f32 v{t1}, v{SV+3}, v{SV+4}, v{SV+5}\nv_max3_f32 v{t0}, v{t0}, v{SV+6}, v{SV+7}")
        a("s_waitcnt lgkmcnt(0)")
        a(f"""
        v_max3_f32 v{t1}, v{t1}, v{SV+8}, v{SV+9}
        v_max3_f32 v{t0}, v{t0}, v{SV+10}, v{SV+11}
        v_max3_f32 v{t1}, v{t1}, v{SV+12}, v{SV+13}
        v_max3_f32 v{t0}, v{t0}, v{SV+14}, v{SV+15}
        v_max_f32 v{t0}, v{t0}, v{t1}
        """)
        xrow("v_max_f32", t0, t1)
        a(f"v_ceil_f32 v{ml}, v{t0}")
    smax()
    stamp("max")
    for i in range(8): a(f"v_sub_f32 v{SV+i}, v{SV+i}, v{ml}")
    for i in range(8): a(f"v_exp_f32 v{SV+i}, v{SV+i}")
    for i in range(4): a(f"v_cvt_pk_bf16_f32 v{U+i}, v{SV+2*i}, v{SV+2*i+1}")
    for i in range(8, 10): a(f"v_sub_f32 v{SV+i}, v{SV+i}, v{ml}")
    fill = [f"v_sub_f32 v{SV+i}, v{SV+i}, v{ml}" for i in range(10, 16)]
    ex = [f"v_exp_f32 v{SV+i}, v{SV+i}" for i in range(8, 16)]
    for T in range(8):
        a(f"v_mfma_f32_16x16x32_bf16 {vr(DP+4*T,4)}, {vr(CV+8*T,4)}, {vr(U,4)}, 0")
        a(ex[T])
        if T < 6: a(fill[T])
    for i in range(4, 8): a(f"v_cvt_pk_bf16_f32 v{U+i}, v{SV+2*i}, v{SV+2*i+1}")
    stamp("exp")
    OB = CK
    for T in range(8):
        a(f"v_mfma_f32_16x16x32_bf16 {vr(DP+4*T,4)}, {vr(CV+8*T+4,4)}, {vr(U+4,4)}, {vr(DP+4*T,4)}")
    for j in range(4):
        for i in range(4): a(f"v_cvt_pk_bf16_f32 v{OB+4*j+i}, v{DP+8*j+2*i}, v{DP+8*j+2*i+1}")
        a(f"global_store_dwordx4 v{vPBs}, {vr(OB+4*j,4)}, s[40:41] offset:{64*j} sc1")
    stamp("pbst")
    a("s_branch L_fin")
    A2 = WQ; FO = WQ + 20; HR = WQ + 60; HP = WQ + 64; hs = WQ + 72
    a(f"""
    L_aH2:
    s_barrier
    s_cmp_lg_u32 s3, 3
    s_cbranch_scc1 L_noml
    s_setprio 3
    """)
    smax()
    a(f"""
    s_mov_b64 exec, 0xffff
    global_store_dwordx4 v{vMLs}, {vr(ml,4)}, s[40:41] sc1
    s_mov_b64 exec, -1
    s_setprio 0
    v_add_u32 v{vMLs}, {LR_OFF-ML_OFF}, v{vMLs}
    """)
    stamp("max")
    for i in range(16): a(f"v_sub_f32 v{SV+i}, v{SV+i}, v{ml}")
    for i in range(16): a(f"v_exp_f32 v{SV+i}, v{SV+i}")
    for i in range(0, 8, 2): a(f"v_pk_add_f32 {vr(SV+i,2)}, {vr(SV+i,2)}, {vr(SV+8+i,2)}")
    for i in range(0, 4, 2): a(f"v_pk_add_f32 {vr(SV+i,2)}, {vr(SV+i,2)}, {vr(SV+4+i,2)}")
    a(f"""
    v_pk_add_f32 {vr(SV,2)}, {vr(SV,2)}, {vr(SV+2,2)}
    v_add_f32 v{ml}, v{SV}, v{SV+1}
    """)
    xrow("v_add_f32", ml, t1)
    a(f"""
    s_mov_b64 exec, 0xffff
    global_store_dwordx4 v{vMLs}, {vr(ml,4)}, s[40:41] sc1
    s_mov_b64 exec, -1
    """)
    stamp("pbst")
    a(f"""
    L_noml:
    s_cmp_lg_u32 s3, 0
    s_cbranch_scc1 L_nohp
    s_cmp_ge_u32 s69, 112
    s_cbranch_scc1 L_nohp
    s_lshl_b32 s8, s69, 9
    s_add_u32 s8, s8, {HP_OFF}
    v_lshl_add_u32 v{t3}, v{vL}, 4, s8
    """)
    gemv20(None, t3, 0)
    a(f"""
    L_nohp:
    s_cmp_ge_u32 s69, 108
    s_cbranch_scc1 L_nofd
    s_lshr_b32 s8, s69, 3
    s_lshl_b32 s8, s8, 12
    s_lshl_b32 s9, s4, 5
    s_add_u32 s8, s8, s9
    s_add_u32 s8, s8, {HP_OFF}
    v_lshl_add_u32 v{t0}, v{vE}, 9, s8
    v_and_b32 v{t1}, 1, v{vG}
    v_lshl_add_u32 v{t0}, v{t1}, 8, v{t0}
    v_lshrrev_b32 v{t1}, 1, v{vG}
    v_lshl_add_u32 v{t0}, v{t1}, 4, v{t0}
    v_lshrrev_b32 v{t1}, 2, v{vL}
    v_and_b32 v{t3}, 7, v{t1}
    v_mul_u32_u24 v{t1}, 1280, v{t1}
    v_and_b32 v{t2}, 3, v{vL}
    v_lshl_add_u32 v{t1}, v{t2}, 3, v{t1}
    v_add_u32 v{t1}, {W2L}, v{t1}
    s_mul_i32 s13, s3, 10
    """)
    for T in range(10):
        a(f"v_xor_b32 v{t2}, s13, v{t3}\nv_lshl_add_u32 v{t2}, v{t2}, 5, v{t1}\ns_add_u32 s13, s13, 1\nds_read_b64_tr_b16 {vr(A2+2*T,2)}, v{t2}")
    a(f"""
    s_mov_b32 s13, 0
    L_hpp:
    global_load_dwordx4 {vr(HR,4)}, v{t0}, s[40:41] sc1
    s_add_u32 s13, s13, 1
    s_waitcnt vmcnt(0)
    """)
    tagcheck([HR+2])
    spin_tail("L_hpp", "L_hpo")
    a(f"""
    v_lshlrev_b32 v{HP}, 16, v{HR}
    v_and_b32 v{HP+1}, 0xffff0000, v{HR}
    v_lshlrev_b32 v{HP+2}, 16, v{HR+1}
    v_and_b32 v{HP+3}, 0xffff0000, v{HR+1}
    """)
    for d in ("quad_perm:[1,0,3,2]", "quad_perm:[2,3,0,1]", "row_half_mirror"):
        for r in range(4): a(f"v_add_f32_dpp v{HP+r}, v{HP+r}, v{HP+r} {d} {DPPM}")
    for r in range(4): a(f"v_mul_f32 v{HP+4+r}, {NLOG2E}, v{HP+r}")
    for r in range(4): a(f"v_exp_f32 v{HP+4+r}, v{HP+4+r}")
    for r in range(4): a(f"v_add_f32 v{HP+4+r}, 1.0, v{HP+4+r}")
    for r in range(4): a(f"v_rcp_f32 v{HP+4+r}, v{HP+4+r}")
    for r in range(4): a(f"v_mul_f32 v{HP+r}, v{HP+r}, v{HP+4+r}")
    a(f"v_cvt_pk_bf16_f32 v{hs}, v{HP}, v{HP+1}\nv_cvt_pk_bf16_f32 v{hs+1}, v{HP+2}, v{HP+3}")
    a("s_waitcnt lgkmcnt(0)")
    for T in range(10): a(f"v_mfma_f32_16x16x16_bf16 {vr(FO+4*T,4)}, {vr(A2+2*T,2)}, {vr(hs,2)}, 0")
    setexec(0x0001000100010001)
    for T in range(10): a(f"global_store_dwordx4 v{vPF}, {vr(FO+4*T,4)}, s[40:41] offset:{64*T} sc1")
    setexec(-1)
    stamp("pf")
    gx = Y; gg = Y + 6; vg = Y + 12; RB = Y + 16; RS = Y + 32; RC = Y + 48
    a(f"""
    L_nofd:
    s_cmp_lg_u32 s3, 1
    s_cbranch_scc1 L_fin
    s_cmp_ge_u32 s6, 20
    s_cbranch_scc1 L_fin
    s_lshl_b32 s15, s6, 2
    s_add_u32 s15, s15, s7
    v_mul_u32_u24 v{t1}, 20, v{vL}
    global_load_dwordx4 {vr(gx,4)}, v{t1}, s[16:17]
    global_load_dword v{gx+4}, v{t1}, s[16:17] offset:16
    global_load_dwordx4 {vr(gg,4)}, v{t1}, s[34:35]
    global_load_dword v{gg+4}, v{t1}, s[34:35] offset:16
    v_lshrrev_b32 v{t2}, 1, v{vL}
    v_mul_u32_u24 v{t0}, 2560, v{t2}
    v_and_b32 v{t1}, 1, v{vL}
    v_lshl_add_u32 v{t0}, v{t1}, 4, v{t0}
    s_lshl_b32 s9, s15, 5
    s_add_u32 s9, s9, {PF_OFF}
    v_add_u32 v{ba}, s9, v{t0}
    v_add_u32 v{ba+1}, {32*2560}, v{ba}
    v_add_u32 v{ba+2}, {64*2560}, v{ba}
    v_add_u32 v{ba+3}, {96*2560}, v{ba}
    s_lshl_b32 s9, s15, 4
    v_lshl_add_u32 v{ba+4}, v{t1}, 3, s9
    v_lshl_add_u32 v{ba+4}, v{vG}, 1, v{ba+4}
    v_lshlrev_b32 v{ba+5}, 8, v{vL}
    v_add_u32 v{ba+5}, {ML_OFF+8}, v{ba+5}
    v_add_u32 v{ba+6}, 16384, v{ba+5}
    v_lshlrev_b32 v{ba+7}, 7, v{t2}
    v_add_u32 v{ba+7}, {FL_OFF+16+4096}, v{ba+7}
    v_add_u32 v{vq}, 8192, v{ba+7}
    v_mov_b32 v{t3}, 0
    s_waitcnt vmcnt(0)
    """)
    for i in range(5):
        a(f"""
        v_lshlrev_b32 v{t0}, 16, v{gx+i}
        v_lshlrev_b32 v{t1}, 16, v{gg+i}
        v_mul_f32 v{t0}, v{t0}, v{t1}
        v_and_b32 v{t1}, 0xffff0000, v{gx+i}
        v_and_b32 v{t2}, 0xffff0000, v{gg+i}
        v_mul_f32 v{t1}, v{t1}, v{t2}
        v_cvt_pk_bf16_f32 v{t0}, v{t0}, v{t1}
        v_lshlrev_b32 v{t1}, 16, v{t0}
        v_and_b32 v{t0}, 0xffff0000, v{t0}
        v_add_f32 v{t3}, v{t3}, v{t1}
        v_add_f32 v{t3}, v{t3}, v{t0}
        """)
    allred("v_add_f32", t3, t3, t0)
    rbf(t3, t3)
    a(f"""
    v_mul_f32 v{t3}, {NLOG2E}, v{t3}
    v_exp_f32 v{t3}, v{t3}
    v_add_f32 v{t3}, 1.0, v{t3}
    v_rcp_f32 v{t3}, v{t3}
    """)
    rbf(vg, t3)
    a(f"v_sub_f32 v{vg+1}, 1.0, v{vg}")
    rbf(vg+1, vg+1)
    a(f"""
    s_mov_b32 s13, 0
    L_frp:
    global_load_dwordx2 {vr(RB,2)}, v{ba+5}, s[40:41] sc1
    global_load_dwordx2 {vr(RB+2,2)}, v{ba+6}, s[40:41] sc1
    s_add_u32 s13, s13, 1
    s_waitcnt vmcnt(0)
    """)
    tagcheck([RB, RB+2])
    spin_tail("L_frp", "L_fro")
    def reduce4(R):
        a(f"""
        v_permlane32_swap_b32 v{R}, v{R+2}
        v_permlane32_swap_b32 v{R+1}, v{R+3}
        v_add_f32 v{R}, v{R}, v{R+2}
        v_add_f32 v{R+1}, v{R+1}, v{R+3}
        v_permlane16_swap_b32 v{R}, v{R+1}
        v_add_f32 v{R}, v{R}, v{R+1}
        v_add_f32_dpp v{R}, v{R}, v{R} row_ror:8 {DPPM}
        v_add_f32_dpp v{R}, v{R}, v{R} row_ror:4 {DPPM}
        v_add_f32_dpp v{R}, v{R}, v{R} row_ror:2 {DPPM}
        """)
    for r in range(4): a(f"v_mov_b32 v{RB+12+r}, 0")
    a("s_mov_b32 s13, 0\nL_pfp:")
    for j in range(3): a(f"global_load_dwordx4 {vr(RB+4*j,4)}, v{ba+j}, s[40:41] sc1")
    a(f"s_mov_b64 exec, 0xffffff\nglobal_load_dwordx4 {vr(RB+12,4)}, v{ba+3}, s[40:41] sc1\ns_mov_b64 exec, -1")
    a("s_add_u32 s13, s13, 1\ns_waitcnt vmcnt(0)")
    maxtree(t2, range(RB, RB+16))
    a(f"v_cmp_eq_u32 vcc, -1, v{t2}")
    spin_tail("L_pfp", "L_pfo")
    for j in range(4): a(f"v_add_u32 v{ba+j}, {(PC_OFF-PF_OFF) & 0xffffffff}, v{ba+j}")
    for r in range(0, 4, 2): a(f"v_pk_add_f32 {vr(RB+r,2)}, {vr(RB+r,2)}, {vr(RB+4+r,2)}\nv_pk_add_f32 {vr(RB+8+r,2)}, {vr(RB+8+r,2)}, {vr(RB+12+r,2)}")
    for r in range(0, 4, 2): a(f"v_pk_add_f32 {vr(RB+r,2)}, {vr(RB+r,2)}, {vr(RB+8+r,2)}")
    for r in range(4): a(f"v_mul_f32 v{RB+r}, v{vg+1}, v{RB+r}")
    a(f"""
    s_mov_b32 s13, 0
    L_f2p:
    global_load_dwordx4 {vr(RS,4)}, v{ba+7}, s[40:41] offset:-4096 sc1
    global_load_dwordx4 {vr(RS+4,4)}, v{ba+7}, s[40:41] sc1
    global_load_dwordx4 {vr(RS+8,4)}, v{vq}, s[40:41] offset:-4096 sc1
    global_load_dwordx4 {vr(RS+12,4)}, v{vq}, s[40:41] sc1
    s_add_u32 s13, s13, 1
    s_waitcnt vmcnt(0)
    """)
    tagcheck([RS+2, RS+6, RS+10, RS+14])
    spin_tail("L_f2p", "L_f2o")
    stamp("fl2")
    def pc_loads():
        for j in range(4): a(f"global_load_dwordx4 {vr(RC+4*j,4)}, v{ba+j}, s[40:41] sc1")
    pc_loads()
    for j in range(4): a(f"v_mul_f32 v{RS+4*j}, v{vg}, v{RS+4*j}")
    a("s_mov_b32 s13, 0\ns_branch L_pcc\nL_pcp:")
    pc_loads()
    a("L_pcc:\ns_add_u32 s13, s13, 1\ns_waitcnt vmcnt(0)")
    maxtree(t2, range(RC, RC+16))
    a(f"v_cmp_eq_u32 vcc, -1, v{t2}")
    spin_tail("L_pcp", "L_pco")
    stamp("pc")
    for j in range(4):
        for r in range(4): a(f"v_fmac_f32 v{RB+r}, v{RS+4*j}, v{RC+4*j+r}")
    reduce4(RB)
    a(f"v_cvt_pk_bf16_f32 v{RB}, v{RB}, v{RB}")
    setexec(0x0003000300030003)
    a(f"global_store_short v{ba+4}, v{RB}, s[36:37]")
    a(f"""
    s_cmp_lg_u32 s15, 0
    s_cbranch_scc1 L_noep
    s_mov_b64 exec, 1
    v_mov_b32 v{t0}, {EP_OFF}
    global_store_dwordx2 v{t0}, {vr(pub+2,2)}, s[40:41]
    L_noep:
    """)
    setexec(-1)
    stamp("out")
    a("L_fin:")
    if probe:
        prole, _, amp = probe; idx = 1
        a(f"""
        s_waitcnt lgkmcnt(0)
        s_cmp_{'ge' if prole == 'PO' else 'lt'}_u32 s2, 128
        s_cbranch_scc1 L_end
        s_cmp_eq_u32 s{80+2*idx}, 0
        s_cbranch_scc1 L_end
        {"s_and_b32 s8, s2, 7" + chr(10) + "s_cmp_lg_u32 s8, %d" % opt("px", 0) + chr(10) + "s_cbranch_scc1 L_end" if opt("px", -1) >= 0 else ""}
        s_sub_u32 s8, s{80+2*idx}, s80
        s_mul_i32 s8, s8, {amp}
        s_min_u32 s8, s8, 100000
        L_probe:
        s_sleep 2
        s_memrealtime s[10:11]
        s_waitcnt lgkmcnt(0)
        s_sub_u32 s10, s10, s80
        s_cmp_lt_u32 s10, s8
        s_cbranch_scc1 L_probe
        """)
    if DEV:
        a(f"""
        s_waitcnt vmcnt(0)
        s_memrealtime s[100:101]
        s_waitcnt lgkmcnt(0)
        s_lshl_b32 s7, s2, 3
        s_add_u32 s7, s7, s3
        s_mul_i32 s7, s7, {NST*4}
        s_add_u32 s7, s7, {STAMP_OFF}
        s_mov_b64 exec, 1
        v_mov_b32 v3, s7
        """)
        for i in range(NST):
            a(f"v_mov_b32 v4, s{80+2*i}\nglobal_store_dword v3, v4, s[40:41] offset:{4*i}")
    a("L_end:\ns_endpgm")
    a(".fill 3200, 4, 0xbf800000")
    lines = hazard.fix(a.lines)
    nv = max(po_v, V.n, BIGEND)
    if DEV:
        for r_ in want: lines.insert(0, f"; STAMPS {r_} start " + " ".join(want[r_] + ["-"] * (NST - 2 - len(want[r_]))) + " end")
    return single("\n".join(lines) + "\n", 256, 512, 155648, vgpr=256, sgpr=102, accum=256), nv

if __name__ == "__main__":
    out = sys.argv[1]
    DEV = "dev" in sys.argv[2:]
    txt, nv = build(DEV, {k: True for k in sys.argv[2:]})
    open(out, "w").write(txt)
    print("vgprs", nv)
```

```python
import sys, math, struct
from genlib import *
import hazard

def f2u(x): return struct.unpack("<I", struct.pack("<f", x))[0]

QP_OFF, HP_OFF, FA_OFF, FL_OFF, EP_OFF, ML_OFF, PC_OFF, PB_OFF, QA_OFF = 0x0, 0x20000, 0x30000, 0x38000, 0x3C000, 0x40000, 0x50000, 0x100000, 0x300000
FK_OFF, FO_OFF, PF_OFF = 0x34000, 0x48000, 0x380000
ROWB = 3072
SPIN = 200000
DPPM = "row_mask:0xf bank_mask:0xf"
NLOG2E = hex(f2u(-math.log2(math.e)))

def build(DEV=False, opts=None):
    o = dict(opts or {})
    def opt(name, dflt):
        for k in o:
            if k.startswith(name + "="): return int(k.split("=")[1])
        return dflt
    a = Asm()
    def nt(k): return " nt" if (o.get("nt") or o.get("nt_" + k)) else ""
    NST = 11
    probe = None
    for k in o:
        if k.startswith("probe"):
            _, role, idx, amp = k.split("_"); probe = (role, idx, int(amp))
    role = ["PO"]
    want = {"PO": "p1 flo wo go pb cp pc".split(), "A": "p1 qa qap fa pbst pf fo pfr out".split()}
    for k in o:
        if k.startswith("sPO="): want["PO"] = k[4:].split(",")
        if k.startswith("sA="): want["A"] = k[3:].split(",")
    if probe: want = {"PO": [], "A": []}; want[probe[0]] = [probe[1]]
    def stamp(nm, wait=False):
        if not (DEV or probe): return
        if nm == "start": a("s_memrealtime s[80:81]"); return
        w = want[role[0]]
        if nm in w:
            i = w.index(nm) + 1
            a(f"s_memrealtime s[{80+2*i}:{81+2*i}]")
            if wait: a("s_waitcnt lgkmcnt(0)")
    class VA:
        def __init__(s, start): s.n = start
        def __call__(s, k=1, al=1):
            s.n = (s.n + al - 1) // al * al
            r = s.n; s.n += k
            assert s.n <= 254
            return r
    def vr(b, k): return f"v[{b}:{b+k-1}]"
    def srd(dst, src, size):
        a(f"s_mov_b32 s{dst}, s{src}\ns_mov_b32 s{dst+1}, s{src+1}\ns_mov_b32 s{dst+2}, {size}\ns_mov_b32 s{dst+3}, 0x20000")
    def setexec(mask):
        if mask == -1: a("s_mov_b64 exec, -1")
        elif mask < (1 << 31): a(f"s_mov_b64 exec, {hex(mask)}")
        else: a(f"s_mov_b32 exec_lo, {hex(mask & 0xffffffff)}\ns_mov_b32 exec_hi, {hex(mask >> 32)}")
    def spin_tail(Lp, Lo):
        a(f"s_cmp_gt_u32 s13, {SPIN}\ns_cbranch_scc1 {Lo}\ns_cbranch_vccnz {Lp}\n{Lo}:")
    def xrow(op, x, t):
        a(f"""
        v_mov_b32 v{t}, v{x}
        v_permlane16_swap_b32 v{x}, v{t}
        {op} v{x}, v{x}, v{t}
        v_mov_b32 v{t}, v{x}
        v_permlane32_swap_b32 v{x}, v{t}
        {op} v{x}, v{x}, v{t}
        """)
    def allred(op, dst, src, t):
        a(f"{op}_dpp v{dst}, v{src}, v{src} row_ror:1 {DPPM}")
        for d in (2, 4, 8): a(f"{op}_dpp v{dst}, v{dst}, v{dst} row_ror:{d} {DPPM}")
        xrow(op, dst, t)
    def rbf(dst, src):
        a(f"v_cvt_pk_bf16_f32 v{dst}, v{src}, v{src}\nv_and_b32 v{dst}, 0xffff0000, v{dst}")
    TAG = "s[70:71]"
    MK = ["s[16:17]", "s[18:19]", "s[20:21]", "s[22:23]", "s[24:25]"]
    def tagcheck(pairs):
        dst = ["vcc", "s[72:73]", "s[74:75]", "s[76:77]"]
        for d, p in zip(dst, pairs): a(f"v_cmp_ne_u64 {d}, {TAG}, {vr(p,2)}")
        if len(pairs) > 1: a("s_nop 0")
        for d in dst[1:len(pairs)]: a(f"s_or_b64 vcc, vcc, {d}")
    def sent_mask(k, R, t):
        a(f"v_max3_u32 v{t}, v{R}, v{R+1}, v{R+2}\nv_max_u32 v{t}, v{t}, v{R+3}\nv_cmp_eq_u32 {MK[k]}, -1, v{t}")
    def or_masks(n):
        a("s_nop 0")
        a(f"s_or_b64 vcc, {MK[0]}, {MK[1]}")
        for k in range(2, n): a(f"s_or_b64 vcc, vcc, {MK[k]}")
    def masked(loads):
        for k, l in enumerate(loads): a(f"s_mov_b64 exec, {MK[k]}\n{l}")
        a("s_mov_b64 exec, -1")
    def swz1280(dst, n, wsel):
        for j in range(n):
            a(f"""
            v_add_u32 v{t0}, {64*j}, v{vL}
            v_mul_u32_u24 v{t1}, 820, v{t0}
            v_lshrrev_b32 v{t1}, 16, v{t1}
            v_lshl_add_u32 v{t1}, v{t1}, 1, {wsel}
            v_xor_b32 v{t0}, v{t0}, v{t1}
            v_lshlrev_b32 v{dst+j}, 4, v{t0}
            """)
    def flag_store(sreg):
        a(f"""
        v_mov_b32 v{t0}, {sreg}
        s_mov_b64 exec, 1
        global_store_dwordx2 v{t0}, {vr(pub+2,2)}, s[40:41] sc1
        s_mov_b64 exec, -1
        """)

    vL, vS, vE, vN, vG = 0, 1, 2, 3, 4
    t0, t1, t2, t3 = 6, 7, 8, 9
    pub = 10; msk = 14; Dq = 18; vWo = 5
    BIG = 22
    Y = BIG; WQ = BIG + 80; xd = BIG + 160; selE = BIG + 170; selO = BIG + 174
    BIGEND = BIG + 178
    EA = opt("ea", 0)
    REP = opt("rep", 8)
    if DEV or probe:
        for i in range(1, NST): a(f"s_mov_b32 s{80+2*i}, 0")
    stamp("start")
    a(f"""
    s_cmp_ge_u32 s2, 256
    s_cbranch_scc1 L_end
    s_load_dwordx16 s[16:31], s[0:1], 0
    s_load_dwordx2 s[40:41], s[0:1], 96
    s_load_dwordx8 s[32:39], s[0:1], 64
    v_lshrrev_b32 v1, 6, v0
    v_and_b32 v0, 63, v0
    v_readfirstlane_b32 s3, v1
    """)
    if not o.get("nocpf"):
        a(f"""
        s_cmp_lg_u32 s3, 3
        s_cbranch_scc1 L_nocpf
        s_cmp_ge_u32 s2, {opt("cpfn", 32)}
        s_cbranch_scc1 L_nocpf
        s_getpc_b64 s[42:43]
        v_lshlrev_b32 v{t0}, 6, v0
        v_add_u32 v{t1}, 8192, v{t0}
        global_load_dword v254, v{t0}, s[42:43]
        global_load_dword v255, v{t1}, s[42:43] offset:-4096
        global_load_dword v254, v{t1}, s[42:43]
        v_add_u32 v{t1}, 4096, v{t1}
        s_mov_b32 exec_hi, 0
        global_load_dword v255, v{t1}, s[42:43]
        s_mov_b32 exec_hi, -1
        L_nocpf:
        """)
    a(f"""
    s_and_b32 s4, s2, 7
    s_lshr_b32 s5, s2, 3
    v_and_b32 v3, 15, v0
    v_lshrrev_b32 v4, 4, v0
    v_lshrrev_b32 v1, 3, v0
    v_and_b32 v2, 7, v0
    v_mul_u32_u24 v{t0}, 40, v{vG}
    s_mul_i32 s8, s4, 160
    v_add_u32 v{t0}, s8, v{t0}
    v_mul_u32_u24 v{vWo}, {20*8192}, v{vG}
    v_lshl_add_u32 v{vWo}, v{vN}, 4, v{vWo}
    s_mul_i32 s8, s4, {80*8192}
    s_lshl_b32 s9, s5, 8
    s_add_u32 s8, s8, s9
    s_mov_b32 s46, {SZ['wq']}
    s_mov_b32 s47, 0x20000
    s_cmp_lg_u32 s3, 0
    s_waitcnt lgkmcnt(0)
    s_load_dwordx2 {TAG}, s[40:41], {EP_OFF}
    s_cbranch_scc1 L_noP1a
    s_mov_b32 s44, s20
    s_mov_b32 s45, s21
    global_load_dwordx4 {vr(xd,4)}, v{t0}, s[16:17]
    global_load_dwordx4 {vr(xd+4,4)}, v{t0}, s[16:17] offset:16
    global_load_dwordx2 {vr(xd+8,2)}, v{t0}, s[16:17] offset:32
    """)
    for u in range(20):
        a(f"buffer_load_dwordx4 {vr(WQ+4*u,4)}, v{vWo}, s[44:47], s8 offen{nt('wq')}\ns_add_u32 s8, s8, 8192")
    a(f"""
    s_barrier
    L_noP1a:
    v_and_b32 v{t0}, 1, v{vL}
    v_lshlrev_b32 v{t0}, 4, v{t0}
    v_mov_b32 v{t1}, 0xffff
    v_lshlrev_b32 v{t0}, v{t0}, v{t1}
    v_lshrrev_b32 v{t1}, 1, v{vE}
    s_and_b32 s7, s5, 3               ; sub
    s_bfe_u32 s6, s5, 0x20002
    s_lshl_b32 s6, s6, 3
    s_add_u32 s6, s6, s4              ; h
    s_and_b32 s15, s3, 3              ; cw
    s_and_b32 s78, s5, 1
    s_bfe_u32 s79, s5, 0x30001
    s_lshl_b32 s79, s79, 3
    s_add_u32 s79, s79, s4            ; chunk
    s_and_b32 s69, s2, 127
    """)
    for r in range(4):
        a(f"v_cmp_eq_u32 vcc, {r}, v{t1}\nv_cndmask_b32 v{msk+r}, 0, v{t0}, vcc")
    def gettag():
        a(f"s_waitcnt lgkmcnt(0)\ns_add_u32 s70, s70, 1\ns_add_u32 s71, s71, 0x9e3779b9\nv_mov_b32 v{pub+2}, s70\nv_mov_b32 v{pub+3}, s71")
    def gemv20(waits, vaddr, off):
        for u in range(20):
            if waits is not None: a(f"s_waitcnt vmcnt({19-u+waits})")
            a(f"v_mfma_f32_16x16x32_bf16 {vr(Dq,4)}, {vr(Y+4*u,4)}, {vr(WQ+4*u,4)}, {'0' if u == 0 else vr(Dq,4)}")
        a(f"""
        v_cvt_pk_bf16_f32 v{pub}, v{Dq}, v{Dq+1}
        v_cvt_pk_bf16_f32 v{pub+1}, v{Dq+2}, v{Dq+3}
        s_mov_b32 exec_hi, 0
        global_store_dwordx4 v{vaddr}, {vr(pub,4)}, s[40:41] offset:{off} sc1
        s_mov_b32 exec_hi, -1
        """)
    a(f"""
    s_cmp_lg_u32 s3, 0
    s_cbranch_scc1 L_noP1b
    v_mov_b32 v{t2}, 0x0c0c0c0c
    s_mov_b32 s12, 0x01000100
    s_mov_b32 s13, 0x03020302
    """)
    for r in range(4):
        a(f"v_bfi_b32 v{selE+r}, v{msk+r}, s12, v{t2}\nv_bfi_b32 v{selO+r}, v{msk+r}, s13, v{t2}")
    a(f"s_lshl_b32 s12, s2, 9\nv_lshl_add_u32 v{t3}, v{vL}, 4, s12\ns_waitcnt vmcnt(20)")
    for u in range(20):
        for r in range(4):
            a(f"v_perm_b32 v{Y+4*u+r}, v{xd+u//2}, v{xd+u//2}, v{(selO if u & 1 else selE)+r}")
    gettag()
    gemv20(0, t3, QP_OFF)
    if DEV: a("s_memrealtime s[82:83]")
    a(f"""
    L_noP1b:
    v_mov_b32 v{Dq}, -1
    v_mov_b32 v{Dq+1}, -1
    v_mov_b32 v{Dq+2}, -1
    v_mov_b32 v{Dq+3}, -1
    s_cmp_ge_u32 s5, 16
    s_cbranch_scc1 L_roleA
    """)
    V = VA(BIG)
    AO = V(40, 2); AUV = V(32, 2); YW = V(16, 2); PBR = V(16, 2); OUT = V(20, 2); D2 = V(16, 2)
    A2 = YW; HR = PBR; HP = PBR + 4; gx = AO; gg = AO + 6
    V = VA(BIGEND)
    acc = V(4, 2); ml = V(4, 2); qp = V(8, 2); cf = V(8, 2)
    oW = V(5); ones = V(2, 2); vg = V(2, 2)
    vML, vPB, vCW, vCR, vCT, vPC, vMS, vFA, vSc, vHP = [V() for _ in range(10)]; vUo = V(2)
    GT, CP, CC, W2L, WUVL, WOL = 0, 2048, 4096, 8192, 40960, 73728
    a(f"""
    s_cmp_eq_u32 s3, 0
    s_cbranch_scc1 L_o2
    s_lshl_b32 s8, s79, 16
    s_lshl_b32 s9, s78, 15
    s_add_u32 s8, s8, s9
    v_lshl_add_u32 v{t0}, v{vL}, 6, s8
    s_barrier
    s_cmp_lg_u32 s3, 1
    s_cbranch_scc1 L_o1b
    """)
    if not o.get("nopf"):
        for j in range(8): a(f"global_load_dword v254, v{t0}, s[18:19]\nv_add_u32 v{t0}, 4096, v{t0}")
    a("L_o1b:")
    gettag()
    a("L_o2:")
    if o.get("bback"): a("s_cmp_lg_u32 s3, 0\ns_cbranch_scc1 L_o2b\ns_waitcnt vmcnt(0)\nL_o2b:")
    srd(52, 24, SZ['wuv']); srd(56, 26, SZ['wo'])
    a(f"s_and_b32 s13, s3, 1\ns_lshl_b32 s13, s13, 3")
    swz1280(oW, 5, "s13")
    a(f"""
    s_and_b32 s12, s7, 1
    s_lshl_b32 s13, s6, 1
    s_add_u32 s12, s12, s13
    s_mul_i32 s12, s12, {64*1280}
    s_lshr_b32 s13, s7, 1             ; ch
    s_mul_i32 s14, s13, 40960
    s_mul_i32 s9, s3, 5120
    s_add_u32 s14, s14, s9
    s_add_u32 s12, s12, s14
    s_add_u32 s14, s14, {WOL}
    s_mul_i32 s9, s13, 81920
    s_sub_u32 s9, 40960, s9
    s_and_b32 s10, s3, 1
    s_lshl_b32 s10, s10, 2
    v_xor_b32 v{t0}, s10, v{vE}
    v_lshlrev_b32 v{vUo}, 13, v{vS}
    v_lshl_add_u32 v{vUo}, v{t0}, 4, v{vUo}
    v_xor_b32 v{vUo+1}, 32, v{vUo}
    s_lshl_b32 s10, s13, 21
    s_lshl_b32 s11, s3, 18
    s_add_u32 s10, s10, s11
    s_lshl_b32 s11, s6, 8
    s_add_u32 s10, s10, s11
    s_and_b32 s11, s7, 1
    s_lshl_b32 s11, s11, 7
    s_add_u32 s10, s10, s11
    s_lshl_b32 s11, s3, 12
    s_add_u32 s11, s11, {WUVL}
    s_lshl_b32 s68, s6, 16
    s_lshl_b32 s8, s13, 9
    s_add_u32 s68, s68, s8
    s_add_u32 s68, s68, {PB_OFF}
    s_barrier
    """)
    a(f"""
    s_cmp_lg_u32 s3, 2
    s_cbranch_scc1 L_noclr
    s_setprio 3
    s_and_b32 s8, s7, 1
    s_lshl_b32 s8, s8, 15
    s_add_u32 s8, s8, s68
    v_and_b32 v{t0}, 31, v{vL}
    v_lshl_add_u32 v{t0}, v{t0}, 4, s8
    v_lshrrev_b32 v{t1}, 5, v{vL}
    v_lshl_add_u32 v{t0}, v{t1}, 10, v{t0}
    """)
    for j in range(8):
        a(f"global_store_dwordx4 v{t0}, {vr(Dq,4)}, s[40:41] sc1\nglobal_store_dwordx4 v{t0}, {vr(Dq,4)}, s[40:41] offset:2048 sc1\nv_add_u32 v{t0}, 4096, v{t0}")
    a(f"""
    s_mul_i32 s8, s2, {ROWB}
    s_add_u32 s8, s8, {PC_OFF}
    v_lshl_add_u32 v{t0}, v{vL}, 4, s8
    global_store_dwordx4 v{t0}, {vr(Dq,4)}, s[40:41] sc1
    global_store_dwordx4 v{t0}, {vr(Dq,4)}, s[40:41] offset:1024 sc1
    global_store_dwordx4 v{t0}, {vr(Dq,4)}, s[40:41] offset:2048 sc1
    s_lshl_b32 s8, s2, 7
    s_add_u32 s8, s8, {FL_OFF}
    s_waitcnt vmcnt(0)
    """)
    flag_store("s8")
    stamp("flo")
    a("s_branch L_ldone\nL_noclr:\ns_mov_b32 s42, s3\nL_lp:")
    def wo_load(j):
        a(f"s_mov_b32 m0, s14\ns_add_u32 s14, s14, 1024\nbuffer_load_dwordx4 v{oW+j}, s[56:59], s12 offen{nt('wo')} lds")
    for j in range(4):
        a(f"s_mov_b32 m0, s11\ns_add_u32 s11, s11, 1024\nbuffer_load_dwordx4 v{vUo+(j>>1)}, s[52:55], s10 offen{nt('wuv')} lds\ns_add_u32 s10, s10, 65536")
    for j in range(5): wo_load(j)
    a(f"s_add_u32 s12, s12, s9\ns_add_u32 s14, s14, s9\ns_sub_u32 s14, s14, 5120")
    for j in range(5): wo_load(j)
    a(f"""
    s_cmp_lg_u32 s42, 0
    s_cbranch_scc1 L_ldone
    s_mov_b32 s42, 2
    s_add_u32 s11, s11, 4096
    s_add_u32 s10, s10, {1<<18}
    s_sub_u32 s12, s12, s9
    s_add_u32 s12, s12, 10240
    s_sub_u32 s14, s14, s9
    s_add_u32 s14, s14, 5120
    s_branch L_lp
    L_ldone:
    s_setprio 0
    v_mov_b32 v{ones}, 0x3f803f80
    v_mov_b32 v{ones+1}, 0x3f803f80
    s_lshr_b32 s8, s6, 4
    s_lshl_b32 s8, s8, 13
    s_add_u32 s8, s8, {FA_OFF}
    v_lshl_add_u32 v{vFA}, v{vL}, 7, s8
    s_lshl_b32 s8, s6, 10
    s_add_u32 s8, s8, {ML_OFF}
    v_lshl_add_u32 v{vML}, v{vL}, 4, s8
    s_lshl_b32 s8, s15, 7
    s_add_u32 s8, s8, s68
    s_lshr_b32 s42, s3, 2
    s_lshl_b32 s42, s42, 12
    s_add_u32 s8, s8, s42
    v_lshl_add_u32 v{vPB}, v{vS}, 13, s8
    v_lshl_add_u32 v{vPB}, v{vE}, 4, v{vPB}
    s_lshl_b32 s8, s3, 8
    s_add_u32 s8, s8, {CC}
    v_lshrrev_b32 v{t2}, 1, v{vG}
    v_lshl_add_u32 v{vCW}, v{t2}, 7, s8
    v_lshl_add_u32 v{vCW}, v{vE}, 4, v{vCW}
    v_and_b32 v{t2}, 1, v{vG}
    v_lshl_add_u32 v{vCW}, v{t2}, 3, v{vCW}
    v_and_b32 v{t2}, 1, v{vL}
    v_lshl_add_u32 v{vCR}, v{t2}, 7, s8
    v_lshl_add_u32 v{vCR}, v{vG}, 4, v{vCR}
    s_lshl_b32 s8, s3, 6
    v_lshl_add_u32 v{vCT}, v{t2}, 5, s8
    v_lshl_add_u32 v{vCT}, v{vG}, 3, v{vCT}
    s_mul_i32 s8, s2, {ROWB}
    s_mul_i32 s42, s3, 384
    s_add_u32 s8, s8, s42
    s_add_u32 s8, s8, {PC_OFF}
    v_lshl_add_u32 v{vPC}, v{vL}, 2, s8
    s_mov_b32 s26, 0xffff0000
    s_mov_b32 s27, 0xffff0000
    s_mov_b32 s28, 0
    s_mov_b32 s29, -1
    v_lshlrev_b32 v{vMS}, 3, v{vL}
    v_lshrrev_b32 v{t1}, 2, v{vL}
    v_and_b32 v{t3}, 7, v{t1}
    v_and_b32 v{t2}, 3, v{vL}
    v_and_b32 v{acc}, 3, v{t1}
    v_lshlrev_b32 v{t0}, 11, v{acc}
    v_lshl_add_u32 v{t0}, v{vG}, 7, v{t0}
    v_lshl_add_u32 v{t0}, v{t2}, 3, v{t0}
    s_lshr_b32 s13, s15, 1
    s_lshl_b32 s13, s13, 14
    s_and_b32 s8, s15, 1
    s_lshl_b32 s8, s8, 10
    s_add_u32 s13, s13, s8
    s_add_u32 s13, s13, {WUVL}
    v_add_u32 v{t0}, s13, v{t0}
    v_mul_u32_u24 v{t1}, 1280, v{t1}
    v_lshl_add_u32 v{t1}, v{t2}, 3, v{t1}
    v_add_u32 v{t1}, {WOL}, v{t1}
    s_mul_i32 s13, s3, 5
    """)
    for T in range(5):
        a(f"v_xor_b32 v{oW+T}, s13, v{t3}\nv_lshl_add_u32 v{oW+T}, v{oW+T}, 5, v{t1}\ns_add_u32 s13, s13, 1")
    for Td in range(4):
        a(f"v_xor_b32 v{t2}, {Td}, v{acc}\nv_lshl_add_u32 v{cf+Td}, v{t2}, 5, v{t0}")
    a(f"""
    s_lshl_b32 s8, s2, 7
    s_add_u32 s8, s8, {FO_OFF}
    s_waitcnt vmcnt(0) lgkmcnt(0)
    s_barrier
    """)
    stamp("wo", True)
    a(f"""
    s_cmp_lg_u32 s3, 0
    s_cbranch_scc1 L_nofa0
    global_load_dwordx2 {vr(ml,2)}, v{vFA}, s[40:41] sc1
    L_nofa0:
    """)
    for ks in range(2):
        for Td in range(4):
            for aa in range(2):
                a(f"ds_read_b64_tr_b16 {vr(AUV+16*ks+4*Td+2*aa,2)}, v{cf+Td} offset:{(4*ks+64*aa)*128}")
        a("s_waitcnt lgkmcnt(5)")
    for T in range(5):
        for ks in range(2):
            for aa in range(2):
                a(f"ds_read_b64_tr_b16 {vr(AO+8*T+4*ks+2*aa,2)}, v{oW+T} offset:{(2*ks+aa)*20480}")
        if T in (1, 3): a("s_waitcnt lgkmcnt(5)")
    a(f"""
    s_cmp_lg_u32 s3, 0
    s_cbranch_scc1 L_gow
    s_mov_b32 s13, 0
    s_branch L_goc
    L_gop:
    s_mov_b64 exec, vcc
    global_load_dwordx2 {vr(ml,2)}, v{vFA}, s[40:41] sc1
    s_mov_b64 exec, -1
    L_goc:
    s_add_u32 s13, s13, 1
    s_waitcnt vmcnt(0)
    """)
    tagcheck([ml])
    spin_tail("L_gop", "L_goo")
    a(f"""
    L_gow:
    v_mov_b32 v{vFA}, s8
    s_cmp_eq_u32 s3, 0
    s_cselect_b32 s42, 1, 0
    s_mov_b32 s43, 0
    s_waitcnt lgkmcnt(0)
    s_barrier
    s_mov_b32 s13, 0
    """)
    stamp("go")
    FO1 = 0 if o.get("folate") else 1
    pbl = [f"global_load_dwordx4 {vr(PBR+4*u,4)}, v{vPB}, s[40:41] offset:{1024*u} sc1" for u in range(4)]
    mll = f"global_load_dwordx4 {vr(ml,4)}, v{vML}, s[40:41] sc1"
    a(mll)
    for l in pbl: a(l)
    fost = f"s_mov_b64 exec, s[42:43]\nglobal_store_dwordx2 v{vFA}, {vr(pub+2,2)}, s[40:41] sc1\ns_mov_b64 exec, -1\ns_mov_b32 s42, 0"
    a("s_branch L_pbc\nL_pbp:")
    a(f"s_mov_b64 exec, {MK[4]}\n{mll}")
    masked(pbl)
    a("L_pbc:")
    if FO1: a(fost)
    a(f"s_add_u32 s13, s13, 1\ns_waitcnt vmcnt({4+FO1})")
    allred("v_max_f32", t0, ml, t1)
    a(f"""
    v_sub_f32 v{t3}, v{ml}, v{t0}
    v_exp_f32 v{t3}, v{t3}
    s_cmp_ge_u32 s3, 4
    v_cvt_pk_bf16_f32 v{t2}, v{t3}, v{t3}
    v_mul_f32 v{t3}, v{t3}, v{ml+1}
    s_cbranch_scc1 L_hh1
    v_mov_b32_dpp v{t2}, v{t2} row_shr:4 row_mask:0xf bank_mask:0xa
    s_branch L_hh2
    L_hh1:
    v_mov_b32_dpp v{t2}, v{t2} row_shl:4 row_mask:0xf bank_mask:0x5
    L_hh2:
    v_cmp_ne_u64 {MK[4]}, {TAG}, {vr(ml+2,2)}
    """)
    for u in range(4):
        for r in range(4):
            a(f"v_and_b32_dpp v{YW+4*u+r}, v{t2}, v{msk+r} quad_perm:[{u},{u},{u},{u}] {DPPM}")
    allred("v_add_f32", t0, t3, t1)
    a(f"v_rcp_f32 v{vSc}, v{t0}")
    for u in range(4):
        a(f"s_waitcnt vmcnt({3-u+FO1})")
        a(f"v_mfma_f32_16x16x32_bf16 {vr(Dq,4)}, {vr(YW+4*u,4)}, {vr(PBR+4*u,4)}, {'0' if u == 0 else vr(Dq,4)}")
        sent_mask(u, PBR+4*u, t2)
    or_masks(5)
    spin_tail("L_pbp", "L_pbo")
    stamp("pb")
    if not FO1: a(fost)
    for r in range(4): a(f"v_mul_f32 v{Dq+r}, v{vSc}, v{Dq+r}")
    a(f"""
    v_cvt_pk_bf16_f32 v{qp}, v{Dq}, v{Dq+1}
    v_cvt_pk_bf16_f32 v{qp+1}, v{Dq+2}, v{Dq+3}
    """)
    setexec(0xFF00FF0000FF00FF)
    a(f"ds_write_b64 v{vCW}, {vr(qp,2)}")
    setexec(-1)
    a(f"""
    s_waitcnt lgkmcnt(0)
    ds_read_b128 {vr(cf,4)}, v{vCR}
    ds_read_b128 {vr(cf+4,4)}, v{vCR} offset:64
    """)
    for ks in range(2):
        a(f"s_waitcnt lgkmcnt({1-ks})")
        for Td in range(4):
            a(f"v_mfma_f32_16x16x32_bf16 {vr(D2+4*Td,4)}, {vr(AUV+16*ks+4*Td,4)}, {vr(cf+4*ks,4)}, {'0' if ks == 0 else vr(D2+4*Td,4)}")
    setexec(0x0003000300030003)
    for Td in range(4):
        a(f"v_cvt_pk_bf16_f32 v{qp+2*Td}, v{D2+4*Td}, v{D2+4*Td+1}\nv_cvt_pk_bf16_f32 v{qp+2*Td+1}, v{D2+4*Td+2}, v{D2+4*Td+3}")
        a(f"ds_write_b64 v{vCT}, {vr(qp+2*Td,2)} offset:{CP+512*Td}")
    setexec(-1)
    a("s_waitcnt lgkmcnt(0)\ns_barrier")
    stamp("cp", True)
    for Td in range(4): a(f"ds_read_b64_tr_b16 {vr(cf+2*Td,2)}, v{vMS} offset:{CP+512*Td}")
    for Td in range(4):
        a(f"s_waitcnt lgkmcnt({3-Td})")
        a(f"v_mfma_f32_16x16x16_bf16 {vr(D2+4*Td,4)}, {vr(cf+2*Td,2)}, {vr(ones,2)}, 0")
    for i in range(8): a(f"v_cvt_pk_bf16_f32 v{qp+i}, v{D2+2*i}, v{D2+2*i+1}")
    for ks in range(2):
        for T in range(5):
            a(f"v_mfma_f32_16x16x32_bf16 {vr(OUT+4*T,4)}, {vr(qp+4*ks,4)}, {vr(AO+8*T+4*ks,4)}, {'0' if ks == 0 else vr(OUT+4*T,4)}")
    def rowsel(R, st, va, off):
        a(f"""
        v_cndmask_b32 v{R}, v{R}, v{R+st}, s[26:27]
        v_cndmask_b32 v{R+2*st}, v{R+2*st}, v{R+3*st}, s[26:27]
        v_cndmask_b32 v{R}, v{R}, v{R+2*st}, s[28:29]
        global_store_dword v{va}, v{R}, s[40:41] offset:{off} sc1
        """)
    rowsel(OUT, 4, vPC, 0)
    a(f"s_mov_b64 exec, 0xffff\nglobal_store_dword v{vPC}, v{OUT+16}, s[40:41] offset:256 sc1\ns_mov_b64 exec, -1")
    stamp("pc")
    a("s_branch L_fin")
    po_v = V.n
    role[0] = "A"
    CK = BIG; CV = BIG + 64; QB = BIG + 128
    V = VA(BIG + 192)
    SV = QB; U = QB + 16; DP = QB + 24
    DS = Dq
    WK = BIG; QPR = BIG + 64; qf = BIG + 80; D2 = BIG + 96; acc = BIG + 112; yI = BIG + 116; qp = BIG + 118
    ba = V(8); vPBs = V(4); vMLs = V(); vq = V(); vqw = V(4); vqr = V(2); vSa = V(); vSw = V()
    QP = QB + 48
    vQs = vPBs
    ml = pub
    CKV, QAS, SL, QL, WKL, W2L = 0, 65536, 81920, 86016, 90112, 122880
    a(f"""
    L_roleA:
    s_lshl_b32 s8, s6, 10
    s_lshl_b32 s13, s7, 8
    s_add_u32 s68, s8, s13
    s_add_u32 s68, s68, {QA_OFF}
    v_mov_b32 v{vPBs}, 0xf0000
    v_mov_b32 v{vPBs+1}, 0xf0000
    v_mov_b32 v{vPBs+2}, 0xf0000
    v_mov_b32 v{vPBs+3}, 0xf0000
    s_cmp_ge_u32 s3, 4
    s_cbranch_scc1 L_aC
    s_cmp_eq_u32 s3, 0
    s_cbranch_scc1 L_aH0
    s_cmp_lg_u32 s3, 3
    s_cbranch_scc1 L_aK
    v_lshl_add_u32 v{t1}, v{vN}, 4, s68
    v_lshl_add_u32 v{t1}, v{vG}, 15, v{t1}
    v_add_u32 v{t2}, 0x20000, v{t1}
    global_store_dwordx4 v{t1}, {vr(Dq,4)}, s[40:41] sc1
    global_store_dwordx4 v{t2}, {vr(Dq,4)}, s[40:41] sc1
    s_mul_i32 s8, s69, {ROWB}
    s_add_u32 s8, s8, {PF_OFF}
    v_lshl_add_u32 v{t1}, v{vL}, 4, s8
    global_store_dwordx4 v{t1}, {vr(Dq,4)}, s[40:41] sc1
    global_store_dwordx4 v{t1}, {vr(Dq,4)}, s[40:41] offset:1024 sc1
    global_store_dwordx4 v{t1}, {vr(Dq,4)}, s[40:41] offset:2048 sc1
    s_barrier
    """)
    gettag()
    a(f"""
    s_lshl_b32 s8, s69, 7
    s_add_u32 s8, s8, {FK_OFF}
    s_waitcnt vmcnt(0)
    """)
    flag_store("s8")
    a(f"""
    s_lshl_b32 s11, s78, 13
    s_add_u32 s11, s11, {FK_OFF}
    v_lshl_add_u32 v{ba}, v{vL}, 7, s11
    s_barrier
    s_barrier
    s_mov_b32 s13, 0
    L_fap:
    global_load_dwordx2 {vr(QP,2)}, v{ba}, s[40:41] sc1
    s_add_u32 s13, s13, 1
    s_waitcnt vmcnt(0)
    """)
    tagcheck([QP])
    spin_tail("L_fap", "L_fao")
    a(f"""
    s_branch L_aJ
    L_aH0:
    s_barrier
    s_barrier
    s_branch L_aJ
    L_aK:
    """)
    srd(48, 22, SZ['wuk'])
    a(f"""
    s_sub_u32 s15, s3, 1                     ; k wave 0/1
    v_xor_b32 v{t0}, v{vN}, v{vG}
    v_lshlrev_b32 v{t1}, 15, v{vG}
    v_lshl_add_u32 v{ba}, v{t0}, 4, v{t1}
    v_xor_b32 v{ba+1}, 64, v{ba}
    v_xor_b32 v{ba+2}, 128, v{ba}
    v_xor_b32 v{ba+3}, 192, v{ba}
    s_lshl_b32 s10, s7, 20
    s_lshl_b32 s11, s15, 19
    s_add_u32 s10, s10, s11
    s_lshl_b32 s11, s6, 8
    s_add_u32 s10, s10, s11
    s_lshl_b32 s11, s15, 14
    s_add_u32 s11, s11, {WKL}
    s_barrier
    """)
    for j in range(16):
        step = 16*8192 if (j & 3) != 3 else (1 - 48) * 8192
        a(f"s_mov_b32 m0, s11\ns_add_u32 s11, s11, 1024\nbuffer_load_dwordx4 v{ba+(j&3)}, s[48:51], s10 offen{nt('wuk')} lds\ns_add_u32 s10, s10, {hex(step & 0xffffffff)}")
    gettag()
    a(f"""
    s_setprio 3
    s_lshl_b32 s13, s15, 7
    s_add_u32 s8, s68, s13
    v_lshl_add_u32 v{vQs}, v{vN}, 3, s8
    v_lshl_add_u32 v{vQs}, v{vG}, 15, v{vQs}
    v_add_u32 v{vQs+1}, 0x20000, v{vQs}
    v_and_b32 v{acc}, 1, v{vG}
    v_cmp_eq_u32 vcc, 1, v{acc}
    v_cndmask_b32 v{yI}, v{msk}, v{msk+2}, vcc
    v_cndmask_b32 v{yI+1}, v{msk+1}, v{msk+3}, vcc
    v_and_b32 v{yI}, 0x3f803f80, v{yI}
    v_and_b32 v{yI+1}, 0x3f803f80, v{yI+1}
    s_lshl_b32 s8, s15, 8
    s_add_u32 s8, s8, {QL}
    v_lshl_add_u32 v{acc+1}, v{vN}, 4, s8
    v_lshl_add_u32 v{acc+1}, v{vG}, 3, v{acc+1}
    v_lshl_add_u32 v{acc+2}, v{vG}, 4, s8
    s_lshl_b32 s8, s15, 14
    s_add_u32 s8, s8, {WKL}
    v_xor_b32 v{t0}, v{vN}, v{vG}
    v_lshl_add_u32 v{t1}, v{vN}, 8, s8
    v_lshl_add_u32 v{t0}, v{t0}, 4, v{t1}
    v_xor_b32 v{t1}, 64, v{t0}
    v_xor_b32 v{t2}, 128, v{t0}
    v_xor_b32 v{t3}, 192, v{t0}
    s_lshl_b32 s8, s6, 12
    v_lshl_add_u32 v{acc}, v{vL}, 4, s8
    s_mov_b32 s13, 0
    s_barrier
    """)
    qpl = [f"global_load_dwordx4 {vr(QPR+4*j,4)}, v{acc}, s[40:41] offset:{QP_OFF+1024*j} sc1" for j in range(4)]
    QAT = opt("qat", 3)
    for tau in range(4):
        if tau == QAT:
            for l in qpl: a(l)
        a(f"s_waitcnt vmcnt({12-4*tau+(4 if tau >= QAT else 0)}) lgkmcnt(8)")
        for ks in range(4): a(f"ds_read_b128 {vr(WK+16*tau+4*ks,4)}, v{[t0,t1,t2,t3][ks]} offset:{4096*tau}")
    if QAT == 4:
        for l in qpl: a(l)
    stamp("wuk")
    a("s_branch L_qpc\nL_qpp:")
    masked(qpl)
    a("L_qpc:\ns_add_u32 s13, s13, 1\ns_waitcnt vmcnt(0)")
    for j in range(4):
        a(f"v_mfma_f32_16x16x16_bf16 {vr(Dq,4)}, {vr(yI,2)}, {vr(QPR+4*j,2)}, {'0' if j == 0 else vr(Dq,4)}")
        a(f"v_cmp_ne_u64 {MK[j]}, {TAG}, {vr(QPR+4*j+2,2)}")
    or_masks(4)
    spin_tail("L_qpp", "L_qpo")
    stamp("qp")
    a(f"""
    v_cvt_pk_bf16_f32 v{Dq}, v{Dq}, v{Dq+1}
    v_cvt_pk_bf16_f32 v{Dq+1}, v{Dq+2}, v{Dq+3}
    s_mov_b32 exec_hi, 0
    ds_write_b64 v{acc+1}, {vr(Dq,2)}
    s_mov_b32 exec_hi, -1
    s_mov_b32 s13, {hex(f2u(128**-0.5 * math.log2(math.e)))}
    s_waitcnt lgkmcnt(0)
    """)
    for ks in range(4): a(f"ds_read_b128 {vr(qf+4*ks,4)}, v{acc+2} offset:{64*ks}")
    for ks in range(4):
        a(f"s_waitcnt lgkmcnt({3-ks})")
        for tau in range(4):
            a(f"v_mfma_f32_16x16x32_bf16 {vr(D2+4*tau,4)}, {vr(qf+4*ks,4)}, {vr(WK+16*tau+4*ks,4)}, {'0' if ks == 0 else vr(D2+4*tau,4)}")
    for tau in range(4): a(f"v_mul_f32 v{D2+4*tau}, s13, v{D2+4*tau}")
    a(f"""
    v_cvt_pk_bf16_f32 v{qp}, v{D2}, v{D2+4}
    v_cvt_pk_bf16_f32 v{qp+1}, v{D2+8}, v{D2+12}
    """)
    if REP == 8:
        a(f"global_store_dwordx2 v{vQs}, {vr(qp,2)}, s[40:41] sc1\nglobal_store_dwordx2 v{vQs+1}, {vr(qp,2)}, s[40:41] sc1")
    else:
        a(f"s_mov_b64 exec, 0xffff\nglobal_store_dwordx2 v{vQs}, {vr(qp,2)}, s[40:41] sc1\ns_mov_b64 exec, -1")
    stamp("qa")
    a("s_setprio 0\ns_barrier\ns_branch L_aJ")
    a(f"""
    L_aC:
    s_lshl_b32 s8, s79, 16
    s_lshl_b32 s9, s15, 14
    s_add_u32 s8, s8, s9
    s_lshl_b32 s10, s78, 13                  ; rotation
    v_lshlrev_b32 v{t3}, 4, v{vL}
    """)
    for k in range(8): a(f"v_xor_b32 v{ba+k}, {32*k}, v{t3}")
    srd(48, 18, SZ['ckv'])
    def ckv_ld(jj):
        if jj % 4 == 0: a("s_add_u32 s11, s9, s10\ns_add_u32 s14, s8, s10\ns_mov_b32 m0, s11\ns_add_u32 s10, s10, 4096\ns_and_b32 s10, s10, 0x3fff")
        a(f"buffer_load_dwordx4 v{ba+(jj&7)}, s[48:51], s14 offen offset:{1024*(jj&3)}{nt('ckv')} lds")
    a(f"""
    v_xor_b32 v{t0}, v{vN}, v{vG}
    v_lshlrev_b32 v{t1}, 8, v{vG}
    v_lshl_add_u32 v{vqr}, v{t0}, 4, v{t1}
    v_add_u32 v{vqr}, {QAS}, v{vqr}
    v_xor_b32 v{vqr+1}, 64, v{vqr}
    s_lshl_b32 s12, s78, 20
    s_lshl_b32 s13, s79, 10
    s_add_u32 s12, s12, s13
    s_lshl_b32 s13, s15, 8
    s_add_u32 s12, s12, s13
    s_add_u32 s12, s12, {PB_OFF}
    v_lshl_add_u32 v{vPBs}, v{vG}, 18, s12
    v_lshl_add_u32 v{vPBs}, v{vN}, 4, v{vPBs}
    v_add_u32 v{vPBs+1}, 0x10000, v{vPBs}
    v_add_u32 v{vPBs+2}, 0x20000, v{vPBs}
    v_add_u32 v{vPBs+3}, 0x30000, v{vPBs}
    s_barrier
    s_barrier
    """)
    for jj in range(EA): ckv_ld(jj)
    a("s_setprio 2\ns_barrier")
    for jj in range(EA, 16): ckv_ld(jj)
    a(f"""
    v_lshl_add_u32 v{t0}, v{vN}, 10, s9
    v_lshlrev_b32 v{t1}, 1, v{vE}
    v_xor_b32 v{t1}, v{t1}, v{vG}             ; g ^ 2(i&7)
    """)
    for q in range(4):
        a(f"v_xor_b32 v{t2}, {4*q}, v{t1}\nv_lshl_add_u32 v{ba+q}, v{t2}, 4, v{t0}")
    a("s_waitcnt vmcnt(0) lgkmcnt(0)")
    stamp("ckvl", True)
    for t in range(16):
        a(f"ds_read_b128 {vr(CK+4*t,4)}, v{ba+(t&3)} offset:{256*(t>>2)}")
        if t == 11: a("s_waitcnt lgkmcnt(6)")
    a(f"""
    v_lshrrev_b32 v{t0}, 2, v{vL}             ; 4g+r
    v_and_b32 v{t1}, 7, v{t0}                 ; key&7
    v_lshlrev_b32 v{t0}, 10, v{t0}
    v_and_b32 v{t2}, 3, v{vL}
    v_lshl_add_u32 v{t0}, v{t2}, 3, v{t0}
    s_lshl_b32 s8, s15, 8
    v_add_u32 v{t0}, s8, v{t0}
    """)
    for T in range(8):
        a(f"v_xor_b32 v{t2}, {T}, v{t1}\nv_lshl_add_u32 v{ba+T}, v{t2}, 5, v{t0}")
    a(f"""
    L_aJ:
    v_lshlrev_b32 v{vSa}, 4, v{vL}
    v_add_u32 v{vSa}, {SL}, v{vSa}
    s_lshl_b32 s8, s15, 10
    v_add_u32 v{vSw}, s8, v{vSa}
    s_lshl_b32 s10, s78, 14
    s_lshl_b32 s8, s79, 4
    s_add_u32 s10, s10, s8
    s_add_u32 s10, s10, {ML_OFF}
    v_lshl_add_u32 v{vMLs}, v{vN}, 10, s10
    s_lshl_b32 s11, s78, 14
    s_lshl_b32 s12, s15, 12
    s_add_u32 s11, s11, s12
    s_lshl_b32 s12, s4, 15
    {"s_add_u32 s11, s11, s12" if REP == 8 else ""}
    s_add_u32 s11, s11, {QA_OFF}
    v_lshl_add_u32 v{vq}, v{vL}, 4, s11
    s_lshl_b32 s9, s15, 2
    v_xor_b32 v{t0}, s9, v{vE}
    v_lshlrev_b32 v{t1}, 8, v{vL}
    v_lshl_add_u32 v{vqw}, v{t0}, 4, v{t1}
    v_add_u32 v{vqw}, {QAS}, v{vqw}
    v_xor_b32 v{vqw+1}, 16, v{vqw}
    v_xor_b32 v{vqw+2}, 32, v{vqw}
    v_xor_b32 v{vqw+3}, 48, v{vqw}
    s_lshl_b32 s12, s78, 6
    s_add_u32 s12, s12, s79
    s_lshl_b32 s12, s12, 7
    s_add_u32 s12, s12, {FA_OFF}
    s_barrier
    """)
    stamp("ckv")
    a("s_cmp_lt_u32 s3, 4\ns_cbranch_scc1 L_aH2")
    qal = [f"global_load_dwordx4 {vr(QP+4*j,4)}, v{vq}, s[40:41] offset:{1024*j} sc1" for j in range(4)]
    for l in qal: a(l)
    for T in range(8):
        if T % 2 == 0: a("s_waitcnt lgkmcnt(4)")
        for t in range(2):
            for aa in range(2):
                a(f"ds_read_b64_tr_b16 {vr(CV+8*T+4*t+2*aa,2)}, v{ba+T} offset:{(32*t+16*aa)*1024}")
    a("s_mov_b32 s13, 0\ns_branch L_qac\nL_qap:")
    masked(qal)
    a("L_qac:\ns_add_u32 s13, s13, 1")
    for j in range(4):
        a(f"s_waitcnt vmcnt({3-j})")
        a(f"ds_write_b128 v{vqw+j}, {vr(QP+4*j,4)}")
        sent_mask(j, QP+4*j, t2)
    or_masks(4)
    spin_tail("L_qap", "L_qao")
    stamp("qap")
    a(f"""
    s_waitcnt lgkmcnt(0)
    s_barrier
    """)
    stamp("st", True)
    def qread(t): a(f"ds_read_b128 {vr(QB+4*t,4)}, v{vqr+(t&1)} offset:{1024*t}")
    PRE = 12
    for t in range(PRE): qread(t)
    for t in range(16):
        issued = min(16, PRE + t)
        a(f"s_waitcnt lgkmcnt({issued - t - 1})")
        a(f"v_mfma_f32_16x16x32_bf16 {vr(DS,4)}, {vr(CK+4*t,4)}, {vr(QB+4*t,4)}, {'0' if t == 0 else vr(DS,4)}")
        if t + PRE < 16: qread(t + PRE)
    stamp("scm")
    a(f"""
    ds_write_b128 v{vSw}, {vr(DS,4)}
    s_waitcnt lgkmcnt(0)
    s_barrier
    """)
    def smax():
        for q in range(4): a(f"ds_read_b128 {vr(SV+4*q,4)}, v{vSa} offset:{1024*q}")
        a("s_waitcnt lgkmcnt(2)")
        a(f"v_max3_f32 v{t0}, v{SV}, v{SV+1}, v{SV+2}\nv_max3_f32 v{t1}, v{SV+3}, v{SV+4}, v{SV+5}\nv_max3_f32 v{t0}, v{t0}, v{SV+6}, v{SV+7}")
        a("s_waitcnt lgkmcnt(0)")
        a(f"""
        v_max3_f32 v{t1}, v{t1}, v{SV+8}, v{SV+9}
        v_max3_f32 v{t0}, v{t0}, v{SV+10}, v{SV+11}
        v_max3_f32 v{t1}, v{t1}, v{SV+12}, v{SV+13}
        v_max3_f32 v{t0}, v{t0}, v{SV+14}, v{SV+15}
        v_max_f32 v{t0}, v{t0}, v{t1}
        """)
        xrow("v_max_f32", t0, t1)
        a(f"v_ceil_f32 v{ml}, v{t0}")
    smax()
    stamp("max")
    for i in range(8): a(f"v_sub_f32 v{SV+i}, v{SV+i}, v{ml}")
    for i in range(8): a(f"v_exp_f32 v{SV+i}, v{SV+i}")
    for i in range(4): a(f"v_cvt_pk_bf16_f32 v{U+i}, v{SV+2*i}, v{SV+2*i+1}")
    for i in range(8, 10): a(f"v_sub_f32 v{SV+i}, v{SV+i}, v{ml}")
    fill = [f"v_sub_f32 v{SV+i}, v{SV+i}, v{ml}" for i in range(10, 16)]
    ex = [f"v_exp_f32 v{SV+i}, v{SV+i}" for i in range(8, 16)]
    for T in range(8):
        a(f"v_mfma_f32_16x16x32_bf16 {vr(DP+4*T,4)}, {vr(U,4)}, {vr(CV+8*T,4)}, 0")
        a(ex[T])
        if T < 6: a(fill[T])
    for i in range(4, 8): a(f"v_cvt_pk_bf16_f32 v{U+i}, v{SV+2*i}, v{SV+2*i+1}")
    OB = CK
    for T in range(8):
        a(f"v_mfma_f32_16x16x32_bf16 {vr(DP+4*T,4)}, {vr(U+4,4)}, {vr(CV+8*T+4,4)}, {vr(DP+4*T,4)}")
    for i in range(3):
        for r in range(4): a(f"v_cvt_pk_bf16_f32 v{OB+4*r+i}, v{DP+8*i+r}, v{DP+8*i+4+r}")
    for r in range(4):
        a(f"v_cvt_pk_bf16_f32 v{OB+4*r+3}, v{DP+24+r}, v{DP+28+r}")
        a(f"global_store_dwordx4 v{vPBs+r}, {vr(OB+4*r,4)}, s[40:41] sc1")
    stamp("pbst")
    a("s_barrier\ns_branch L_fin")
    FAL = o.get("falate")
    FW = opt("fw", 1)
    FQ = BIG + 180
    a("L_aH2:")
    srd(60, 30, SZ['w1']); srd(64, 32, SZ['w2'])
    a(f"""
    s_lshl_b32 s11, s78, 13
    s_add_u32 s11, s11, {FL_OFF}
    v_lshl_add_u32 v{ba+5}, v{vL}, 7, s11
    s_cmp_lg_u32 s3, 2
    s_cbranch_scc1 L_nof0
    global_load_dwordx2 {vr(FQ,2)}, v{ba+5}, s[40:41] sc1
    L_nof0:
    s_and_b32 s13, s3, 1
    s_lshl_b32 s13, s13, 3
    """)
    swz1280(ba, 5, "s13")
    a(f"""
    s_mul_i32 s42, s69, {16*1280}
    s_mul_i32 s43, s3, 5120
    s_add_u32 s42, s42, s43
    s_add_u32 s43, s43, {W2L}
    v_mul_u32_u24 v{vWo}, {20*3456}, v{vG}
    v_lshl_add_u32 v{vWo}, v{vN}, 4, v{vWo}
    s_mul_i32 s14, s4, {80*3456}
    s_lshr_b32 s9, s69, 3
    s_lshl_b32 s9, s9, 8
    s_add_u32 s14, s14, s9
    s_barrier
    s_cmp_lg_u32 s3, 2
    s_cbranch_scc1 L_nofs
    s_mov_b32 s13, 0
    s_branch L_flc
    L_flp:
    global_load_dwordx2 {vr(FQ,2)}, v{ba+5}, s[40:41] sc1
    L_flc:
    s_add_u32 s13, s13, 1
    s_waitcnt vmcnt(0)
    """)
    tagcheck([FQ])
    spin_tail("L_flp", "L_flo")
    if not FAL: flag_store("s12")
    stamp("fa")
    a("L_nofs:")
    def w1_loads():
        a("s_cmp_lg_u32 s3, 0\ns_cbranch_scc1 L_now1")
        for u in range(20):
            a(f"buffer_load_dwordx4 {vr(WQ+4*u,4)}, v{vWo}, s[60:63], s14 offen{nt('w1')}\ns_add_u32 s14, s14, 3456")
        a("L_now1:")
    if FW == 0: w1_loads()
    a("s_barrier")
    if FAL:
        a("s_cmp_lg_u32 s3, 2\ns_cbranch_scc1 L_nofs2")
        flag_store("s12")
        a("L_nofs2:")
    if FW == 1: w1_loads()
    a(f"""
    s_cmp_lg_u32 s3, 3
    s_cbranch_scc1 L_noml
    s_setprio {opt("mlprio", 2)}
    """)
    smax()
    for i in range(16): a(f"v_sub_f32 v{SV+i}, v{SV+i}, v{ml}")
    for i in range(16): a(f"v_exp_f32 v{SV+i}, v{SV+i}")
    for i in range(0, 8, 2): a(f"v_pk_add_f32 {vr(SV+i,2)}, {vr(SV+i,2)}, {vr(SV+8+i,2)}")
    for i in range(0, 4, 2): a(f"v_pk_add_f32 {vr(SV+i,2)}, {vr(SV+i,2)}, {vr(SV+4+i,2)}")
    a(f"""
    v_pk_add_f32 {vr(SV,2)}, {vr(SV,2)}, {vr(SV+2,2)}
    v_add_f32 v{ml+1}, v{SV}, v{SV+1}
    """)
    xrow("v_add_f32", ml+1, t1)
    a(f"""
    s_mov_b64 exec, 0xffff
    global_store_dwordx4 v{vMLs}, {vr(ml,4)}, s[40:41] sc1
    s_mov_b64 exec, -1
    """)
    stamp("pbst")
    A2 = WQ; FO = WQ + 20; HR = WQ + 60; HP = WQ + 64; hs = WQ + 72
    gx = Y; gg = Y + 6; vg = Y + 12; RB = Y + 16; RS = Y + 32; RC = Y + 48
    a("L_noml:\ns_setprio 0\ns_barrier")
    if FW == 2: w1_loads()
    for j in range(5):
        a(f"s_mov_b32 m0, s43\ns_add_u32 s43, s43, 1024\nbuffer_load_dwordx4 v{ba+j}, s[64:67], s42 offen{nt('w2')} lds")
    a(f"""
    s_cmp_lg_u32 s3, 0
    s_cbranch_scc1 L_nohp
    s_lshl_b32 s8, s69, 9
    s_add_u32 s8, s8, {HP_OFF}
    v_lshl_add_u32 v{t3}, v{vL}, 4, s8
    """)
    gemv20(5, t3, 0)
    stamp("hp")
    a(f"""
    L_nohp:
    s_cmp_lg_u32 s3, 1
    s_cbranch_scc1 L_nogate
    s_load_dwordx2 s[44:45], s[0:1], 0
    v_mul_u32_u24 v{t1}, 20, v{vL}
    global_load_dwordx4 {vr(gg,4)}, v{t1}, s[34:35]
    global_load_dword v{gg+4}, v{t1}, s[34:35] offset:16
    s_waitcnt lgkmcnt(0)
    global_load_dwordx4 {vr(gx,4)}, v{t1}, s[44:45]
    global_load_dword v{gx+4}, v{t1}, s[44:45] offset:16
    v_mov_b32 v{t3}, 0
    s_waitcnt vmcnt(0)
    """)
    for i in range(5):
        a(f"""
        v_lshlrev_b32 v{t0}, 16, v{gx+i}
        v_lshlrev_b32 v{t1}, 16, v{gg+i}
        v_mul_f32 v{t0}, v{t0}, v{t1}
        v_and_b32 v{t1}, 0xffff0000, v{gx+i}
        v_and_b32 v{t2}, 0xffff0000, v{gg+i}
        v_mul_f32 v{t1}, v{t1}, v{t2}
        v_cvt_pk_bf16_f32 v{t0}, v{t0}, v{t1}
        v_lshlrev_b32 v{t1}, 16, v{t0}
        v_and_b32 v{t0}, 0xffff0000, v{t0}
        v_add_f32 v{t3}, v{t3}, v{t1}
        v_add_f32 v{t3}, v{t3}, v{t0}
        """)
    allred("v_add_f32", t3, t3, t0)
    rbf(t3, t3)
    a(f"""
    v_mul_f32 v{t3}, {NLOG2E}, v{t3}
    v_exp_f32 v{t3}, v{t3}
    v_add_f32 v{t3}, 1.0, v{t3}
    v_rcp_f32 v{t3}, v{t3}
    """)
    rbf(vg, t3)
    a(f"v_sub_f32 v{vg+1}, 1.0, v{vg}")
    rbf(vg+1, vg+1)
    a(f"""
    L_nogate:
    s_lshr_b32 s8, s69, 3
    s_lshl_b32 s8, s8, 12
    s_lshl_b32 s9, s4, 5
    s_add_u32 s8, s8, s9
    s_add_u32 s8, s8, {HP_OFF}
    v_lshl_add_u32 v{t0}, v{vE}, 9, s8
    v_and_b32 v{t1}, 1, v{vG}
    v_lshl_add_u32 v{t0}, v{t1}, 8, v{t0}
    v_lshrrev_b32 v{t1}, 1, v{vG}
    v_lshl_add_u32 v{t0}, v{t1}, 4, v{t0}
    v_lshrrev_b32 v{t1}, 2, v{vL}
    v_and_b32 v{t3}, 7, v{t1}
    v_mul_u32_u24 v{t1}, 1280, v{t1}
    v_and_b32 v{t2}, 3, v{vL}
    v_lshl_add_u32 v{t1}, v{t2}, 3, v{t1}
    v_add_u32 v{t1}, {W2L}, v{t1}
    s_mul_i32 s8, s69, {ROWB}
    s_mul_i32 s9, s3, 768
    s_add_u32 s8, s8, s9
    s_add_u32 s8, s8, {PF_OFF}
    v_lshl_add_u32 v{vq}, v{vL}, 2, s8
    s_mov_b32 s26, 0xffff0000
    s_mov_b32 s27, 0xffff0000
    s_mov_b32 s28, 0
    s_mov_b32 s29, -1
    s_mul_i32 s13, s3, 10
    s_waitcnt vmcnt(0)
    s_barrier
    s_cmp_ge_u32 s69, 108
    s_cbranch_scc1 L_nofd
    global_load_dwordx4 {vr(HR,4)}, v{t0}, s[40:41] sc1
    """)
    for T in range(10):
        a(f"v_xor_b32 v{t2}, s13, v{t3}\nv_lshl_add_u32 v{t2}, v{t2}, 5, v{t1}\ns_add_u32 s13, s13, 1\nds_read_b64_tr_b16 {vr(A2+2*T,2)}, v{t2}")
    a(f"""
    s_mov_b32 s13, 0
    s_branch L_hpc
    L_hpp:
    s_mov_b64 exec, vcc
    global_load_dwordx4 {vr(HR,4)}, v{t0}, s[40:41] sc1
    s_mov_b64 exec, -1
    L_hpc:
    s_add_u32 s13, s13, 1
    s_waitcnt vmcnt(0)
    """)
    tagcheck([HR+2])
    spin_tail("L_hpp", "L_hpo")
    a(f"""
    v_lshlrev_b32 v{HP}, 16, v{HR}
    v_and_b32 v{HP+1}, 0xffff0000, v{HR}
    v_lshlrev_b32 v{HP+2}, 16, v{HR+1}
    v_and_b32 v{HP+3}, 0xffff0000, v{HR+1}
    """)
    for d in ("quad_perm:[1,0,3,2]", "quad_perm:[2,3,0,1]", "row_half_mirror"):
        for r in range(4): a(f"v_add_f32_dpp v{HP+r}, v{HP+r}, v{HP+r} {d} {DPPM}")
    for r in range(4): a(f"v_mul_f32 v{HP+4+r}, {NLOG2E}, v{HP+r}")
    for r in range(4): a(f"v_exp_f32 v{HP+4+r}, v{HP+4+r}")
    for r in range(4): a(f"v_add_f32 v{HP+4+r}, 1.0, v{HP+4+r}")
    for r in range(4): a(f"v_rcp_f32 v{HP+4+r}, v{HP+4+r}")
    for r in range(4): a(f"v_mul_f32 v{HP+r}, v{HP+r}, v{HP+4+r}")
    a(f"v_cvt_pk_bf16_f32 v{hs}, v{HP}, v{HP+1}\nv_cvt_pk_bf16_f32 v{hs+1}, v{HP+2}, v{HP+3}")
    a("s_waitcnt lgkmcnt(0)")
    for T in range(10): a(f"v_mfma_f32_16x16x16_bf16 {vr(FO+4*T,4)}, {vr(hs,2)}, {vr(A2+2*T,2)}, 0")
    rowsel(FO, 4, vq, 0); rowsel(FO+20, 4, vq, 384)
    a(f"s_mov_b64 exec, 0xffff\nglobal_store_dword v{vq}, v{FO+16}, s[40:41] offset:256 sc1\nglobal_store_dword v{vq}, v{FO+36}, s[40:41] offset:640 sc1\ns_mov_b64 exec, -1")
    stamp("pf")
    a(f"""
    L_nofd:
    s_cmp_lg_u32 s3, 1
    s_cbranch_scc1 L_fin
    s_cmp_ge_u32 s69, 80
    s_cbranch_scc1 L_fin
    s_lshr_b32 s8, s69, 3
    s_mul_i32 s15, s4, 10
    s_add_u32 s15, s15, s8
    v_lshrrev_b32 v{t2}, 1, v{vL}
    v_mul_u32_u24 v{t0}, {ROWB}, v{t2}
    v_and_b32 v{t1}, 1, v{vL}
    v_lshl_add_u32 v{t0}, v{t1}, 4, v{t0}
    s_mul_i32 s9, s4, 384
    s_lshl_b32 s8, s8, 5
    s_add_u32 s9, s9, s8
    s_add_u32 s9, s9, {PC_OFF}
    v_add_u32 v{ba}, s9, v{t0}
    v_add_u32 v{ba+1}, {32*3072}, v{ba}
    v_add_u32 v{ba+2}, {64*3072}, v{ba}
    v_add_u32 v{ba+3}, {96*3072}, v{ba}
    v_add_u32 v{vPBs}, {PF_OFF-PC_OFF}, v{ba}
    v_add_u32 v{vPBs+1}, {PF_OFF-PC_OFF}, v{ba+1}
    v_add_u32 v{vPBs+2}, {PF_OFF-PC_OFF}, v{ba+2}
    v_add_u32 v{vPBs+3}, {PF_OFF-PC_OFF}, v{ba+3}
    s_lshl_b32 s9, s15, 4
    v_lshl_add_u32 v{ba+4}, v{t1}, 3, s9
    v_lshl_add_u32 v{ba+4}, v{vG}, 1, v{ba+4}
    v_lshlrev_b32 v{ba+5}, 7, v{vL}
    v_add_u32 v{ba+5}, {FO_OFF}, v{ba+5}
    v_add_u32 v{ba+6}, 8192, v{ba+5}
    v_mov_b32 v{RB+12}, 0
    v_mov_b32 v{RB+13}, 0
    v_mov_b32 v{RB+14}, 0
    v_mov_b32 v{RB+15}, 0
    s_mov_b32 s13, 0
    s_mov_b64 {MK[0]}, -1
    s_mov_b64 {MK[1]}, -1
    L_frp:
    """)
    masked([f"global_load_dwordx2 {vr(RS,2)}, v{ba+5}, s[40:41] sc1", f"global_load_dwordx2 {vr(RS+2,2)}, v{ba+6}, s[40:41] sc1"])
    a(f"""
    s_add_u32 s13, s13, 1
    s_waitcnt vmcnt(0)
    v_cmp_ne_u64 {MK[0]}, {TAG}, {vr(RS,2)}
    v_cmp_ne_u64 {MK[1]}, {TAG}, {vr(RS+2,2)}
    """)
    or_masks(2)
    spin_tail("L_frp", "L_fro")
    stamp("fo")
    def sum4(R):
        for r in range(0, 4, 2): a(f"v_pk_add_f32 {vr(R+r,2)}, {vr(R+r,2)}, {vr(R+4+r,2)}\nv_pk_add_f32 {vr(R+8+r,2)}, {vr(R+8+r,2)}, {vr(R+12+r,2)}")
        for r in range(0, 4, 2): a(f"v_pk_add_f32 {vr(R+r,2)}, {vr(R+r,2)}, {vr(R+8+r,2)}")
    pfl = [f"global_load_dwordx4 {vr(RB+4*j,4)}, v{vPBs+j}, s[40:41] sc1" for j in range(4)]
    a(f"s_mov_b64 {MK[0]}, -1\ns_mov_b64 {MK[1]}, -1\ns_mov_b64 {MK[2]}, -1\ns_mov_b64 {MK[3]}, 0xffffff\ns_mov_b32 s13, 0\nL_pfp:")
    masked(pfl)
    a("s_add_u32 s13, s13, 1")
    for j in range(4):
        a(f"s_waitcnt vmcnt({3-j})")
        sent_mask(j, RB+4*j, t2)
    or_masks(4)
    spin_tail("L_pfp", "L_pfo")
    stamp("pfr")
    pcl = [f"global_load_dwordx4 {vr(RC+4*j,4)}, v{ba+j}, s[40:41] sc1" for j in range(4)]
    for l in pcl: a(l)
    sum4(RB)
    for r in range(4): a(f"v_mul_f32 v{RB+r}, v{vg+1}, v{RB+r}")
    a("s_mov_b32 s13, 0\ns_branch L_pcc\nL_pcp:")
    masked(pcl)
    a("L_pcc:\ns_add_u32 s13, s13, 1")
    for j in range(4):
        a(f"s_waitcnt vmcnt({3-j})")
        sent_mask(j, RC+4*j, t2)
    or_masks(4)
    spin_tail("L_pcp", "L_pco")
    stamp("pc")
    sum4(RC)
    for r in range(4): a(f"v_fmac_f32 v{RB+r}, v{vg}, v{RC+r}")
    R = RB
    a(f"""
    v_permlane32_swap_b32 v{R}, v{R+2}
    v_permlane32_swap_b32 v{R+1}, v{R+3}
    v_add_f32 v{R}, v{R}, v{R+2}
    v_add_f32 v{R+1}, v{R+1}, v{R+3}
    v_permlane16_swap_b32 v{R}, v{R+1}
    v_add_f32 v{R}, v{R}, v{R+1}
    v_add_f32_dpp v{R}, v{R}, v{R} row_ror:8 {DPPM}
    v_add_f32_dpp v{R}, v{R}, v{R} row_ror:4 {DPPM}
    v_add_f32_dpp v{R}, v{R}, v{R} row_ror:2 {DPPM}
    v_cvt_pk_bf16_f32 v{R}, v{R}, v{R}
    """)
    setexec(0x0003000300030003)
    a(f"global_store_short v{ba+4}, v{R}, s[36:37]")
    a(f"""
    s_cmp_lg_u32 s15, 0
    s_cbranch_scc1 L_noep
    s_mov_b64 exec, 1
    v_mov_b32 v{t0}, {EP_OFF}
    global_store_dwordx2 v{t0}, {vr(pub+2,2)}, s[40:41]
    L_noep:
    """)
    setexec(-1)
    stamp("out")
    a("L_fin:")
    if probe:
        prole, _, amp = probe; idx = 1
        a(f"""
        s_waitcnt lgkmcnt(0)
        s_cmp_{'ge' if prole == 'PO' else 'lt'}_u32 s2, 128
        s_cbranch_scc1 L_end
        s_cmp_eq_u32 s{80+2*idx}, 0
        s_cbranch_scc1 L_end
        s_sub_u32 s8, s{80+2*idx}, s80
        s_mul_i32 s8, s8, {amp}
        s_min_u32 s8, s8, 100000
        L_probe:
        s_sleep 2
        s_memrealtime s[10:11]
        s_waitcnt lgkmcnt(0)
        s_sub_u32 s10, s10, s80
        s_cmp_lt_u32 s10, s8
        s_cbranch_scc1 L_probe
        """)
    if DEV:
        a(f"""
        s_waitcnt vmcnt(0)
        s_memrealtime s[100:101]
        s_waitcnt lgkmcnt(0)
        s_lshl_b32 s7, s2, 3
        s_add_u32 s7, s7, s3
        s_mul_i32 s7, s7, {NST*4}
        s_add_u32 s7, s7, {STAMP_OFF}
        s_mov_b64 exec, 1
        v_mov_b32 v3, s7
        """)
        for i in range(NST):
            a(f"v_mov_b32 v4, s{80+2*i}\nglobal_store_dword v3, v4, s[40:41] offset:{4*i}")
    a("L_end:\ns_endpgm")
    a(".fill 3600, 4, 0xbf800000")
    lines = hazard.fix(a.lines)
    nv = max(po_v, V.n, BIGEND)
    if DEV:
        for r_ in want: lines.insert(0, f"; STAMPS {r_} start " + " ".join(want[r_] + ["-"] * (NST - 2 - len(want[r_]))) + " end")
    return single("\n".join(lines) + "\n", 256, 512, 155648, vgpr=256, sgpr=102, accum=256), nv

if __name__ == "__main__":
    out = sys.argv[1]
    DEV = "dev" in sys.argv[2:]
    txt, nv = build(DEV, {k: True for k in sys.argv[2:]})
    open(out, "w").write(txt)
    print("vgprs", nv)
```

```python
import sys, math, struct
from genlib import *
import hazard

def f2u(x): return struct.unpack("<I", struct.pack("<f", x))[0]

QP_OFF, HP_OFF, FA_OFF, FL_OFF, EP_OFF, ML_OFF, PC_OFF, PB_OFF, QA_OFF = 0x0, 0x20000, 0x30000, 0x38000, 0x3C000, 0x40000, 0x50000, 0x100000, 0x300000
FK_OFF, FO_OFF, PF_OFF = 0x34000, 0x48000, 0x380000
ROWB = 3072
SPIN = 200000
DPPM = "row_mask:0xf bank_mask:0xf"
NLOG2E = hex(f2u(-math.log2(math.e)))

def build(DEV=False, opts=None):
    o = dict(opts or {})
    def opt(name, dflt):
        for k in o:
            if k.startswith(name + "="): return int(k.split("=")[1])
        return dflt
    a = Asm()
    def nt(k): return " nt" if (o.get("nt") or o.get("nt_" + k)) else ""
    NST = 11
    probe = None
    for k in o:
        if k.startswith("probe"):
            _, role, idx, amp = k.split("_"); probe = (role, idx, int(amp))
    role = ["PO"]
    want = {"PO": "p1 flo wo go pb cp pc".split(), "A": "p1 qa qap fa pbst pf fo pfr out".split()}
    for k in o:
        if k.startswith("sPO="): want["PO"] = k[4:].split(",")
        if k.startswith("sA="): want["A"] = k[3:].split(",")
    if probe: want = {"PO": [], "A": []}; want[probe[0]] = [probe[1]]
    def stamp(nm, wait=False):
        if not (DEV or probe): return
        if nm == "start": a("s_memrealtime s[80:81]"); return
        w = want[role[0]]
        if nm in w:
            i = w.index(nm) + 1
            a(f"s_memrealtime s[{80+2*i}:{81+2*i}]")
            if wait: a("s_waitcnt lgkmcnt(0)")
    class VA:
        def __init__(s, start): s.n = start
        def __call__(s, k=1, al=1):
            s.n = (s.n + al - 1) // al * al
            r = s.n; s.n += k
            assert s.n <= 254
            return r
    def vr(b, k): return f"v[{b}:{b+k-1}]"
    def srd(dst, src, size):
        a(f"s_mov_b32 s{dst}, s{src}\ns_mov_b32 s{dst+1}, s{src+1}\ns_mov_b32 s{dst+2}, {size}\ns_mov_b32 s{dst+3}, 0x20000")
    def setexec(mask):
        if mask == -1: a("s_mov_b64 exec, -1")
        elif mask < (1 << 31): a(f"s_mov_b64 exec, {hex(mask)}")
        else: a(f"s_mov_b32 exec_lo, {hex(mask & 0xffffffff)}\ns_mov_b32 exec_hi, {hex(mask >> 32)}")
    def spin_tail(Lp, Lo):
        a(f"s_cmp_gt_u32 s13, {SPIN}\ns_cbranch_scc1 {Lo}\ns_cbranch_vccnz {Lp}\n{Lo}:")
    def xrow(op, x, t):
        a(f"""
        v_mov_b32 v{t}, v{x}
        v_permlane16_swap_b32 v{x}, v{t}
        {op} v{x}, v{x}, v{t}
        v_mov_b32 v{t}, v{x}
        v_permlane32_swap_b32 v{x}, v{t}
        {op} v{x}, v{x}, v{t}
        """)
    def allred(op, dst, src, t):
        a(f"{op}_dpp v{dst}, v{src}, v{src} row_ror:1 {DPPM}")
        for d in (2, 4, 8): a(f"{op}_dpp v{dst}, v{dst}, v{dst} row_ror:{d} {DPPM}")
        xrow(op, dst, t)
    def rbf(dst, src):
        a(f"v_cvt_pk_bf16_f32 v{dst}, v{src}, v{src}\nv_and_b32 v{dst}, 0xffff0000, v{dst}")
    TAG = "s[70:71]"
    MK = ["s[16:17]", "s[18:19]", "s[20:21]", "s[22:23]", "s[24:25]"]
    def tagcheck(pairs):
        dst = ["vcc", "s[72:73]", "s[74:75]", "s[76:77]"]
        for d, p in zip(dst, pairs): a(f"v_cmp_ne_u64 {d}, {TAG}, {vr(p,2)}")
        if len(pairs) > 1: a("s_nop 0")
        for d in dst[1:len(pairs)]: a(f"s_or_b64 vcc, vcc, {d}")
    def sent_mask(k, R, t):
        a(f"v_max3_u32 v{t}, v{R}, v{R+1}, v{R+2}\nv_max_u32 v{t}, v{t}, v{R+3}\nv_cmp_eq_u32 {MK[k]}, -1, v{t}")
    def or_masks(n):
        a("s_nop 0")
        a(f"s_or_b64 vcc, {MK[0]}, {MK[1]}")
        for k in range(2, n): a(f"s_or_b64 vcc, vcc, {MK[k]}")
    def masked(loads):
        for k, l in enumerate(loads): a(f"s_mov_b64 exec, {MK[k]}\n{l}")
        a("s_mov_b64 exec, -1")
    def swz1280(dst, n, wsel):
        for j in range(n):
            a(f"""
            v_add_u32 v{t0}, {64*j}, v{vL}
            v_mul_u32_u24 v{t1}, 820, v{t0}
            v_lshrrev_b32 v{t1}, 16, v{t1}
            v_lshl_add_u32 v{t1}, v{t1}, 1, {wsel}
            v_xor_b32 v{t0}, v{t0}, v{t1}
            v_lshlrev_b32 v{dst+j}, 4, v{t0}
            """)
    def flag_store(sreg):
        a(f"""
        v_mov_b32 v{t0}, {sreg}
        s_mov_b64 exec, 1
        global_store_dwordx2 v{t0}, {vr(pub+2,2)}, s[40:41] sc1
        s_mov_b64 exec, -1
        """)

    vL, vS, vE, vN, vG = 0, 1, 2, 3, 4
    t0, t1, t2, t3 = 6, 7, 8, 9
    pub = 10; msk = 14; Dq = 18; vWo = 5
    BIG = 22
    Y = BIG; WQ = BIG + 80; xd = BIG + 160; selE = BIG + 170; selO = BIG + 174
    BIGEND = BIG + 178
    EA = opt("ea", 0)
    REP = opt("rep", 8)
    if DEV or probe:
        for i in range(1, NST): a(f"s_mov_b32 s{80+2*i}, 0")
    stamp("start")
    a(f"""
    s_cmp_ge_u32 s2, 256
    s_cbranch_scc1 L_end
    s_load_dwordx16 s[16:31], s[0:1], 0
    s_load_dwordx2 s[40:41], s[0:1], 96
    s_load_dwordx8 s[32:39], s[0:1], 64
    v_lshrrev_b32 v1, 6, v0
    v_and_b32 v0, 63, v0
    v_readfirstlane_b32 s3, v1
    """)
    if not o.get("nocpf"):
        a(f"""
        s_cmp_lg_u32 s3, 3
        s_cbranch_scc1 L_nocpf
        s_cmp_ge_u32 s2, {opt("cpfn", 32)}
        s_cbranch_scc1 L_nocpf
        s_getpc_b64 s[42:43]
        v_lshlrev_b32 v{t0}, 6, v0
        v_add_u32 v{t1}, 8192, v{t0}
        global_load_dword v254, v{t0}, s[42:43]
        global_load_dword v255, v{t1}, s[42:43] offset:-4096
        global_load_dword v254, v{t1}, s[42:43]
        v_add_u32 v{t1}, 4096, v{t1}
        s_mov_b32 exec_hi, 0
        global_load_dword v255, v{t1}, s[42:43]
        s_mov_b32 exec_hi, -1
        L_nocpf:
        """)
    a(f"""
    s_and_b32 s4, s2, 7
    s_lshr_b32 s5, s2, 3
    v_and_b32 v3, 15, v0
    v_lshrrev_b32 v4, 4, v0
    v_lshrrev_b32 v1, 3, v0
    v_and_b32 v2, 7, v0
    v_mul_u32_u24 v{t0}, 40, v{vG}
    s_mul_i32 s8, s4, 160
    v_add_u32 v{t0}, s8, v{t0}
    v_mul_u32_u24 v{vWo}, {20*8192}, v{vG}
    v_lshl_add_u32 v{vWo}, v{vN}, 4, v{vWo}
    s_mul_i32 s8, s4, {80*8192}
    s_lshl_b32 s9, s5, 8
    s_add_u32 s8, s8, s9
    s_mov_b32 s46, {SZ['wq']}
    s_mov_b32 s47, 0x20000
    s_cmp_lg_u32 s3, 0
    s_waitcnt lgkmcnt(0)
    s_load_dwordx2 {TAG}, s[40:41], {EP_OFF}
    s_cbranch_scc1 L_noP1a
    s_mov_b32 s44, s20
    s_mov_b32 s45, s21
    global_load_dwordx4 {vr(xd,4)}, v{t0}, s[16:17]
    global_load_dwordx4 {vr(xd+4,4)}, v{t0}, s[16:17] offset:16
    global_load_dwordx2 {vr(xd+8,2)}, v{t0}, s[16:17] offset:32
    """)
    for u in range(20):
        a(f"buffer_load_dwordx4 {vr(WQ+4*u,4)}, v{vWo}, s[44:47], s8 offen{nt('wq')}\ns_add_u32 s8, s8, 8192")
    a(f"""
    s_barrier
    L_noP1a:
    v_and_b32 v{t0}, 1, v{vL}
    v_lshlrev_b32 v{t0}, 4, v{t0}
    v_mov_b32 v{t1}, 0xffff
    v_lshlrev_b32 v{t0}, v{t0}, v{t1}
    v_lshrrev_b32 v{t1}, 1, v{vE}
    s_and_b32 s7, s5, 3               ; sub
    s_bfe_u32 s6, s5, 0x20002
    s_lshl_b32 s6, s6, 3
    s_add_u32 s6, s6, s4              ; h
    s_and_b32 s15, s3, 3              ; cw
    s_and_b32 s78, s5, 1
    s_bfe_u32 s79, s5, 0x30001
    s_lshl_b32 s79, s79, 3
    s_add_u32 s79, s79, s4            ; chunk
    s_and_b32 s69, s2, 127
    """)
    for r in range(4):
        a(f"v_cmp_eq_u32 vcc, {r}, v{t1}\nv_cndmask_b32 v{msk+r}, 0, v{t0}, vcc")
    def gettag():
        a(f"s_waitcnt lgkmcnt(0)\ns_add_u32 s70, s70, 1\ns_add_u32 s71, s71, 0x9e3779b9\nv_mov_b32 v{pub+2}, s70\nv_mov_b32 v{pub+3}, s71")
    def gemv20(waits, vaddr, off):
        for u in range(20):
            if waits is not None: a(f"s_waitcnt vmcnt({19-u+waits})")
            a(f"v_mfma_f32_16x16x32_bf16 {vr(Dq,4)}, {vr(Y+4*u,4)}, {vr(WQ+4*u,4)}, {'0' if u == 0 else vr(Dq,4)}")
        a(f"""
        v_cvt_pk_bf16_f32 v{pub}, v{Dq}, v{Dq+1}
        v_cvt_pk_bf16_f32 v{pub+1}, v{Dq+2}, v{Dq+3}
        s_mov_b32 exec_hi, 0
        global_store_dwordx4 v{vaddr}, {vr(pub,4)}, s[40:41] offset:{off} sc1
        s_mov_b32 exec_hi, -1
        """)
    a(f"""
    s_cmp_lg_u32 s3, 0
    s_cbranch_scc1 L_noP1b
    v_mov_b32 v{t2}, 0x0c0c0c0c
    s_mov_b32 s12, 0x01000100
    s_mov_b32 s13, 0x03020302
    """)
    for r in range(4):
        a(f"v_bfi_b32 v{selE+r}, v{msk+r}, s12, v{t2}\nv_bfi_b32 v{selO+r}, v{msk+r}, s13, v{t2}")
    a(f"s_lshl_b32 s12, s2, 9\nv_lshl_add_u32 v{t3}, v{vL}, 4, s12\ns_waitcnt vmcnt(20)")
    for u in range(20):
        for r in range(4):
            a(f"v_perm_b32 v{Y+4*u+r}, v{xd+u//2}, v{xd+u//2}, v{(selO if u & 1 else selE)+r}")
    gettag()
    gemv20(0, t3, QP_OFF)
    if DEV: a("s_memrealtime s[82:83]")
    a(f"""
    L_noP1b:
    v_mov_b32 v{Dq}, -1
    v_mov_b32 v{Dq+1}, -1
    v_mov_b32 v{Dq+2}, -1
    v_mov_b32 v{Dq+3}, -1
    s_cmp_ge_u32 s5, 16
    s_cbranch_scc1 L_roleA
    """)
    V = VA(BIG)
    AO = V(40, 2); AUV = V(32, 2); YW = V(16, 2); PBR = V(16, 2); OUT = V(20, 2); D2 = V(16, 2)
    A2 = YW; HR = PBR; HP = PBR + 4; gx = AO; gg = AO + 6
    V = VA(BIGEND)
    acc = V(4, 2); ml = V(4, 2); qp = V(8, 2); cf = V(8, 2)
    oW = V(5); ones = V(2, 2); vg = V(2, 2)
    vML, vPB, vCW, vCR, vCT, vPC, vMS, vFA, vSc, vHP = [V() for _ in range(10)]; vUo = V(2)
    GT, CP, CC, W2L, WUVL, WOL = 0, 2048, 4096, 8192, 40960, 73728
    a(f"""
    s_cmp_eq_u32 s3, 0
    s_cbranch_scc1 L_o2
    s_lshl_b32 s8, s79, 16
    s_lshl_b32 s9, s78, 15
    s_add_u32 s8, s8, s9
    v_lshl_add_u32 v{t0}, v{vL}, 6, s8
    s_barrier
    s_cmp_lg_u32 s3, 1
    s_cbranch_scc1 L_o1b
    """)
    if not o.get("nopf"):
        for j in range(8): a(f"global_load_dword v254, v{t0}, s[18:19]\nv_add_u32 v{t0}, 4096, v{t0}")
    a("L_o1b:")
    gettag()
    a("L_o2:")
    if o.get("bback"): a("s_cmp_lg_u32 s3, 0\ns_cbranch_scc1 L_o2b\ns_waitcnt vmcnt(0)\nL_o2b:")
    srd(52, 24, SZ['wuv']); srd(56, 26, SZ['wo'])
    a(f"s_and_b32 s13, s3, 1\ns_lshl_b32 s13, s13, 3")
    swz1280(oW, 5, "s13")
    a(f"""
    s_and_b32 s12, s7, 1
    s_lshl_b32 s13, s6, 1
    s_add_u32 s12, s12, s13
    s_mul_i32 s12, s12, {64*1280}
    s_lshr_b32 s13, s7, 1             ; ch
    s_mul_i32 s14, s13, 40960
    s_mul_i32 s9, s3, 5120
    s_add_u32 s14, s14, s9
    s_add_u32 s12, s12, s14
    s_add_u32 s14, s14, {WOL}
    s_mul_i32 s9, s13, 81920
    s_sub_u32 s9, 40960, s9
    s_and_b32 s10, s3, 1
    s_lshl_b32 s10, s10, 2
    v_xor_b32 v{t0}, s10, v{vE}
    v_lshlrev_b32 v{vUo}, 13, v{vS}
    v_lshl_add_u32 v{vUo}, v{t0}, 4, v{vUo}
    v_xor_b32 v{vUo+1}, 32, v{vUo}
    s_lshl_b32 s10, s13, 21
    s_lshl_b32 s11, s3, 18
    s_add_u32 s10, s10, s11
    s_lshl_b32 s11, s6, 8
    s_add_u32 s10, s10, s11
    s_and_b32 s11, s7, 1
    s_lshl_b32 s11, s11, 7
    s_add_u32 s10, s10, s11
    s_lshl_b32 s11, s3, 12
    s_add_u32 s11, s11, {WUVL}
    s_lshl_b32 s68, s6, 16
    s_lshl_b32 s8, s13, 9
    s_add_u32 s68, s68, s8
    s_add_u32 s68, s68, {PB_OFF}
    s_barrier
    """)
    a(f"""
    s_cmp_lg_u32 s3, 2
    s_cbranch_scc1 L_noclr
    s_setprio 3
    s_and_b32 s8, s7, 1
    s_lshl_b32 s8, s8, 15
    s_add_u32 s8, s8, s68
    v_and_b32 v{t0}, 31, v{vL}
    v_lshl_add_u32 v{t0}, v{t0}, 4, s8
    v_lshrrev_b32 v{t1}, 5, v{vL}
    v_lshl_add_u32 v{t0}, v{t1}, 10, v{t0}
    """)
    for j in range(8):
        a(f"global_store_dwordx4 v{t0}, {vr(Dq,4)}, s[40:41] sc1\nglobal_store_dwordx4 v{t0}, {vr(Dq,4)}, s[40:41] offset:2048 sc1\nv_add_u32 v{t0}, 4096, v{t0}")
    a(f"""
    s_mul_i32 s8, s2, {ROWB}
    s_add_u32 s8, s8, {PC_OFF}
    v_lshl_add_u32 v{t0}, v{vL}, 4, s8
    global_store_dwordx4 v{t0}, {vr(Dq,4)}, s[40:41] sc1
    global_store_dwordx4 v{t0}, {vr(Dq,4)}, s[40:41] offset:1024 sc1
    global_store_dwordx4 v{t0}, {vr(Dq,4)}, s[40:41] offset:2048 sc1
    s_lshl_b32 s8, s2, 7
    s_add_u32 s8, s8, {FL_OFF}
    s_waitcnt vmcnt(0)
    """)
    flag_store("s8")
    stamp("flo")
    a("s_branch L_ldone\nL_noclr:\ns_mov_b32 s42, s3\nL_lp:")
    def wo_load(j):
        a(f"s_mov_b32 m0, s14\ns_add_u32 s14, s14, 1024\nbuffer_load_dwordx4 v{oW+j}, s[56:59], s12 offen{nt('wo')} lds")
    for j in range(4):
        a(f"s_mov_b32 m0, s11\ns_add_u32 s11, s11, 1024\nbuffer_load_dwordx4 v{vUo+(j>>1)}, s[52:55], s10 offen{nt('wuv')} lds\ns_add_u32 s10, s10, 65536")
    for j in range(5): wo_load(j)
    a(f"s_add_u32 s12, s12, s9\ns_add_u32 s14, s14, s9\ns_sub_u32 s14, s14, 5120")
    for j in range(5): wo_load(j)
    a(f"""
    s_cmp_lg_u32 s42, 0
    s_cbranch_scc1 L_ldone
    s_mov_b32 s42, 2
    s_add_u32 s11, s11, 4096
    s_add_u32 s10, s10, {1<<18}
    s_sub_u32 s12, s12, s9
    s_add_u32 s12, s12, 10240
    s_sub_u32 s14, s14, s9
    s_add_u32 s14, s14, 5120
    s_branch L_lp
    L_ldone:
    s_setprio 0
    v_mov_b32 v{ones}, 0x3f803f80
    v_mov_b32 v{ones+1}, 0x3f803f80
    s_lshr_b32 s8, s6, 4
    s_lshl_b32 s8, s8, 13
    s_add_u32 s8, s8, {FA_OFF}
    v_lshl_add_u32 v{vFA}, v{vL}, 7, s8
    s_lshl_b32 s8, s6, 10
    s_add_u32 s8, s8, {ML_OFF}
    v_lshl_add_u32 v{vML}, v{vL}, 4, s8
    s_lshl_b32 s8, s15, 7
    s_add_u32 s8, s8, s68
    s_lshr_b32 s42, s3, 2
    s_lshl_b32 s42, s42, 12
    s_add_u32 s8, s8, s42
    v_lshl_add_u32 v{vPB}, v{vS}, 13, s8
    v_lshl_add_u32 v{vPB}, v{vE}, 4, v{vPB}
    s_lshl_b32 s8, s3, 8
    s_add_u32 s8, s8, {CC}
    v_lshrrev_b32 v{t2}, 1, v{vG}
    v_lshl_add_u32 v{vCW}, v{t2}, 7, s8
    v_lshl_add_u32 v{vCW}, v{vE}, 4, v{vCW}
    v_and_b32 v{t2}, 1, v{vG}
    v_lshl_add_u32 v{vCW}, v{t2}, 3, v{vCW}
    v_and_b32 v{t2}, 1, v{vL}
    v_lshl_add_u32 v{vCR}, v{t2}, 7, s8
    v_lshl_add_u32 v{vCR}, v{vG}, 4, v{vCR}
    s_lshl_b32 s8, s3, 6
    v_lshl_add_u32 v{vCT}, v{t2}, 5, s8
    v_lshl_add_u32 v{vCT}, v{vG}, 3, v{vCT}
    s_mul_i32 s8, s2, {ROWB}
    s_mul_i32 s42, s3, 384
    s_add_u32 s8, s8, s42
    s_add_u32 s8, s8, {PC_OFF}
    v_lshl_add_u32 v{vPC}, v{vL}, 2, s8
    s_mov_b32 s26, 0xffff0000
    s_mov_b32 s27, 0xffff0000
    s_mov_b32 s28, 0
    s_mov_b32 s29, -1
    v_lshlrev_b32 v{vMS}, 3, v{vL}
    v_lshrrev_b32 v{t1}, 2, v{vL}
    v_and_b32 v{t3}, 7, v{t1}
    v_and_b32 v{t2}, 3, v{vL}
    v_and_b32 v{acc}, 3, v{t1}
    v_lshlrev_b32 v{t0}, 11, v{acc}
    v_lshl_add_u32 v{t0}, v{vG}, 7, v{t0}
    v_lshl_add_u32 v{t0}, v{t2}, 3, v{t0}
    s_lshr_b32 s13, s15, 1
    s_lshl_b32 s13, s13, 14
    s_and_b32 s8, s15, 1
    s_lshl_b32 s8, s8, 10
    s_add_u32 s13, s13, s8
    s_add_u32 s13, s13, {WUVL}
    v_add_u32 v{t0}, s13, v{t0}
    v_mul_u32_u24 v{t1}, 1280, v{t1}
    v_lshl_add_u32 v{t1}, v{t2}, 3, v{t1}
    v_add_u32 v{t1}, {WOL}, v{t1}
    s_mul_i32 s13, s3, 5
    """)
    for T in range(5):
        a(f"v_xor_b32 v{oW+T}, s13, v{t3}\nv_lshl_add_u32 v{oW+T}, v{oW+T}, 5, v{t1}\ns_add_u32 s13, s13, 1")
    for Td in range(4):
        a(f"v_xor_b32 v{t2}, {Td}, v{acc}\nv_lshl_add_u32 v{cf+Td}, v{t2}, 5, v{t0}")
    a(f"""
    s_lshl_b32 s8, s2, 7
    s_add_u32 s8, s8, {FO_OFF}
    s_waitcnt vmcnt(0) lgkmcnt(0)
    s_barrier
    """)
    stamp("wo", True)
    a(f"""
    s_cmp_lg_u32 s3, 0
    s_cbranch_scc1 L_nofa0
    global_load_dwordx2 {vr(ml,2)}, v{vFA}, s[40:41] sc1
    L_nofa0:
    """)
    for ks in range(2):
        for Td in range(4):
            for aa in range(2):
                a(f"ds_read_b64_tr_b16 {vr(AUV+16*ks+4*Td+2*aa,2)}, v{cf+Td} offset:{(4*ks+64*aa)*128}")
        a("s_waitcnt lgkmcnt(5)")
    for T in range(5):
        for ks in range(2):
            for aa in range(2):
                a(f"ds_read_b64_tr_b16 {vr(AO+8*T+4*ks+2*aa,2)}, v{oW+T} offset:{(2*ks+aa)*20480}")
        if T in (1, 3): a("s_waitcnt lgkmcnt(5)")
    a(f"""
    s_cmp_lg_u32 s3, 0
    s_cbranch_scc1 L_gow
    s_mov_b32 s13, 0
    s_branch L_goc
    L_gop:
    s_mov_b64 exec, vcc
    global_load_dwordx2 {vr(ml,2)}, v{vFA}, s[40:41] sc1
    s_mov_b64 exec, -1
    L_goc:
    s_add_u32 s13, s13, 1
    s_waitcnt vmcnt(0)
    """)
    tagcheck([ml])
    spin_tail("L_gop", "L_goo")
    a(f"""
    L_gow:
    v_mov_b32 v{vFA}, s8
    s_cmp_eq_u32 s3, 0
    s_cselect_b32 s42, 1, 0
    s_mov_b32 s43, 0
    s_waitcnt lgkmcnt(0)
    s_barrier
    s_mov_b32 s13, 0
    """)
    stamp("go")
    FO1 = 0 if o.get("folate") else 1
    pbl = [f"global_load_dwordx4 {vr(PBR+4*u,4)}, v{vPB}, s[40:41] offset:{1024*u} sc1" for u in range(4)]
    mll = f"global_load_dwordx4 {vr(ml,4)}, v{vML}, s[40:41] sc1"
    a(mll)
    for l in pbl: a(l)
    fost = f"s_mov_b64 exec, s[42:43]\nglobal_store_dwordx2 v{vFA}, {vr(pub+2,2)}, s[40:41] sc1\ns_mov_b64 exec, -1\ns_mov_b32 s42, 0"
    a("s_branch L_pbc\nL_pbp:")
    a(f"s_mov_b64 exec, {MK[4]}\n{mll}")
    masked(pbl)
    a("L_pbc:")
    if FO1: a(fost)
    a(f"s_add_u32 s13, s13, 1\ns_waitcnt vmcnt({4+FO1})")
    allred("v_max_f32", t0, ml, t1)
    a(f"""
    v_sub_f32 v{t3}, v{ml}, v{t0}
    v_exp_f32 v{t3}, v{t3}
    s_cmp_ge_u32 s3, 4
    v_cvt_pk_bf16_f32 v{t2}, v{t3}, v{t3}
    v_mul_f32 v{t3}, v{t3}, v{ml+1}
    s_cbranch_scc1 L_hh1
    v_mov_b32_dpp v{t2}, v{t2} row_shr:4 row_mask:0xf bank_mask:0xa
    s_branch L_hh2
    L_hh1:
    v_mov_b32_dpp v{t2}, v{t2} row_shl:4 row_mask:0xf bank_mask:0x5
    L_hh2:
    v_cmp_ne_u64 {MK[4]}, {TAG}, {vr(ml+2,2)}
    """)
    for u in range(4):
        for r in range(4):
            a(f"v_and_b32_dpp v{YW+4*u+r}, v{t2}, v{msk+r} quad_perm:[{u},{u},{u},{u}] {DPPM}")
    allred("v_add_f32", t0, t3, t1)
    a(f"v_rcp_f32 v{vSc}, v{t0}")
    for u in range(4):
        a(f"s_waitcnt vmcnt({3-u+FO1})")
        a(f"v_mfma_f32_16x16x32_bf16 {vr(Dq,4)}, {vr(YW+4*u,4)}, {vr(PBR+4*u,4)}, {'0' if u == 0 else vr(Dq,4)}")
        sent_mask(u, PBR+4*u, t2)
    or_masks(5)
    spin_tail("L_pbp", "L_pbo")
    stamp("pb")
    if not FO1: a(fost)
    for r in range(4): a(f"v_mul_f32 v{Dq+r}, v{vSc}, v{Dq+r}")
    a(f"""
    v_cvt_pk_bf16_f32 v{qp}, v{Dq}, v{Dq+1}
    v_cvt_pk_bf16_f32 v{qp+1}, v{Dq+2}, v{Dq+3}
    """)
    setexec(0xFF00FF0000FF00FF)
    a(f"ds_write_b64 v{vCW}, {vr(qp,2)}")
    setexec(-1)
    a(f"""
    s_waitcnt lgkmcnt(0)
    ds_read_b128 {vr(cf,4)}, v{vCR}
    ds_read_b128 {vr(cf+4,4)}, v{vCR} offset:64
    """)
    for ks in range(2):
        a(f"s_waitcnt lgkmcnt({1-ks})")
        for Td in range(4):
            a(f"v_mfma_f32_16x16x32_bf16 {vr(D2+4*Td,4)}, {vr(AUV+16*ks+4*Td,4)}, {vr(cf+4*ks,4)}, {'0' if ks == 0 else vr(D2+4*Td,4)}")
    setexec(0x0003000300030003)
    for Td in range(4):
        a(f"v_cvt_pk_bf16_f32 v{qp+2*Td}, v{D2+4*Td}, v{D2+4*Td+1}\nv_cvt_pk_bf16_f32 v{qp+2*Td+1}, v{D2+4*Td+2}, v{D2+4*Td+3}")
        a(f"ds_write_b64 v{vCT}, {vr(qp+2*Td,2)} offset:{CP+512*Td}")
    setexec(-1)
    a("s_waitcnt lgkmcnt(0)\ns_barrier")
    stamp("cp", True)
    for Td in range(4): a(f"ds_read_b64_tr_b16 {vr(cf+2*Td,2)}, v{vMS} offset:{CP+512*Td}")
    for Td in range(4):
        a(f"s_waitcnt lgkmcnt({3-Td})")
        a(f"v_mfma_f32_16x16x16_bf16 {vr(D2+4*Td,4)}, {vr(cf+2*Td,2)}, {vr(ones,2)}, 0")
    for i in range(8): a(f"v_cvt_pk_bf16_f32 v{qp+i}, v{D2+2*i}, v{D2+2*i+1}")
    for ks in range(2):
        for T in range(5):
            a(f"v_mfma_f32_16x16x32_bf16 {vr(OUT+4*T,4)}, {vr(qp+4*ks,4)}, {vr(AO+8*T+4*ks,4)}, {'0' if ks == 0 else vr(OUT+4*T,4)}")
    def rowsel(R, st, va, off):
        a(f"""
        v_cndmask_b32 v{R}, v{R}, v{R+st}, s[26:27]
        v_cndmask_b32 v{R+2*st}, v{R+2*st}, v{R+3*st}, s[26:27]
        v_cndmask_b32 v{R}, v{R}, v{R+2*st}, s[28:29]
        global_store_dword v{va}, v{R}, s[40:41] offset:{off} sc1
        """)
    rowsel(OUT, 4, vPC, 0)
    a(f"s_mov_b64 exec, 0xffff\nglobal_store_dword v{vPC}, v{OUT+16}, s[40:41] offset:256 sc1\ns_mov_b64 exec, -1")
    stamp("pc")
    a("s_branch L_fin")
    po_v = V.n
    role[0] = "A"
    CK = BIG; CV = BIG + 64; QB = BIG + 128
    V = VA(BIG + 192)
    SV = QB; U = QB + 16; DP = QB + 24
    DS = Dq
    WK = BIG; QPR = BIG + 64; qf = BIG + 80; D2 = BIG + 96; acc = BIG + 112; yI = BIG + 116; qp = BIG + 118
    ba = V(8); vPBs = V(4); vMLs = V(); vq = V(); vqw = V(4); vqr = V(2); vSa = V(); vSw = V()
    QP = QB + 48
    vQs = vPBs
    ml = pub
    CKV, QAS, SL, QL, WKL, W2L = 0, 65536, 81920, 86016, 90112, 122880
    a(f"""
    L_roleA:
    s_lshl_b32 s8, s6, 10
    s_lshl_b32 s13, s7, 8
    s_add_u32 s68, s8, s13
    s_add_u32 s68, s68, {QA_OFF}
    v_mov_b32 v{vPBs}, 0xf0000
    v_mov_b32 v{vPBs+1}, 0xf0000
    v_mov_b32 v{vPBs+2}, 0xf0000
    v_mov_b32 v{vPBs+3}, 0xf0000
    s_cmp_ge_u32 s3, 4
    s_cbranch_scc1 L_aC
    s_cmp_eq_u32 s3, 0
    s_cbranch_scc1 L_aH0
    s_cmp_lg_u32 s3, 3
    s_cbranch_scc1 L_aK
    v_lshl_add_u32 v{t1}, v{vN}, 4, s68
    v_lshl_add_u32 v{t1}, v{vG}, 15, v{t1}
    v_add_u32 v{t2}, 0x20000, v{t1}
    global_store_dwordx4 v{t1}, {vr(Dq,4)}, s[40:41] sc1
    global_store_dwordx4 v{t2}, {vr(Dq,4)}, s[40:41] sc1
    s_mul_i32 s8, s69, {ROWB}
    s_add_u32 s8, s8, {PF_OFF}
    v_lshl_add_u32 v{t1}, v{vL}, 4, s8
    global_store_dwordx4 v{t1}, {vr(Dq,4)}, s[40:41] sc1
    global_store_dwordx4 v{t1}, {vr(Dq,4)}, s[40:41] offset:1024 sc1
    global_store_dwordx4 v{t1}, {vr(Dq,4)}, s[40:41] offset:2048 sc1
    s_barrier
    """)
    gettag()
    a(f"""
    s_lshl_b32 s8, s69, 7
    s_add_u32 s8, s8, {FK_OFF}
    s_waitcnt vmcnt(0)
    """)
    flag_store("s8")
    a(f"""
    s_lshl_b32 s11, s78, 13
    s_add_u32 s11, s11, {FK_OFF}
    v_lshl_add_u32 v{ba}, v{vL}, 7, s11
    s_barrier
    s_barrier
    s_mov_b32 s13, 0
    L_fap:
    global_load_dwordx2 {vr(QP,2)}, v{ba}, s[40:41] sc1
    s_add_u32 s13, s13, 1
    s_waitcnt vmcnt(0)
    """)
    tagcheck([QP])
    spin_tail("L_fap", "L_fao")
    a(f"""
    s_branch L_aJ
    L_aH0:
    s_barrier
    s_barrier
    s_branch L_aJ
    L_aK:
    """)
    srd(48, 22, SZ['wuk'])
    a(f"""
    s_sub_u32 s15, s3, 1                     ; k wave 0/1
    v_xor_b32 v{t0}, v{vN}, v{vG}
    v_lshlrev_b32 v{t1}, 15, v{vG}
    v_lshl_add_u32 v{ba}, v{t0}, 4, v{t1}
    v_xor_b32 v{ba+1}, 64, v{ba}
    v_xor_b32 v{ba+2}, 128, v{ba}
    v_xor_b32 v{ba+3}, 192, v{ba}
    s_lshl_b32 s10, s7, 20
    s_lshl_b32 s11, s15, 19
    s_add_u32 s10, s10, s11
    s_lshl_b32 s11, s6, 8
    s_add_u32 s10, s10, s11
    s_lshl_b32 s11, s15, 14
    s_add_u32 s11, s11, {WKL}
    s_barrier
    """)
    for j in range(16):
        step = 16*8192 if (j & 3) != 3 else (1 - 48) * 8192
        a(f"s_mov_b32 m0, s11\ns_add_u32 s11, s11, 1024\nbuffer_load_dwordx4 v{ba+(j&3)}, s[48:51], s10 offen{nt('wuk')} lds\ns_add_u32 s10, s10, {hex(step & 0xffffffff)}")
    gettag()
    a(f"""
    s_setprio 3
    s_lshl_b32 s13, s15, 7
    s_add_u32 s8, s68, s13
    v_lshl_add_u32 v{vQs}, v{vN}, 3, s8
    v_lshl_add_u32 v{vQs}, v{vG}, 15, v{vQs}
    v_add_u32 v{vQs+1}, 0x20000, v{vQs}
    v_and_b32 v{acc}, 1, v{vG}
    v_cmp_eq_u32 vcc, 1, v{acc}
    v_cndmask_b32 v{yI}, v{msk}, v{msk+2}, vcc
    v_cndmask_b32 v{yI+1}, v{msk+1}, v{msk+3}, vcc
    v_and_b32 v{yI}, 0x3f803f80, v{yI}
    v_and_b32 v{yI+1}, 0x3f803f80, v{yI+1}
    s_lshl_b32 s8, s15, 8
    s_add_u32 s8, s8, {QL}
    v_lshl_add_u32 v{acc+1}, v{vN}, 4, s8
    v_lshl_add_u32 v{acc+1}, v{vG}, 3, v{acc+1}
    v_lshl_add_u32 v{acc+2}, v{vG}, 4, s8
    s_lshl_b32 s8, s15, 14
    s_add_u32 s8, s8, {WKL}
    v_xor_b32 v{t0}, v{vN}, v{vG}
    v_lshl_add_u32 v{t1}, v{vN}, 8, s8
    v_lshl_add_u32 v{t0}, v{t0}, 4, v{t1}
    v_xor_b32 v{t1}, 64, v{t0}
    v_xor_b32 v{t2}, 128, v{t0}
    v_xor_b32 v{t3}, 192, v{t0}
    s_lshl_b32 s8, s6, 12
    v_lshl_add_u32 v{acc}, v{vL}, 4, s8
    s_mov_b32 s13, 0
    s_barrier
    """)
    qpl = [f"global_load_dwordx4 {vr(QPR+4*j,4)}, v{acc}, s[40:41] offset:{QP_OFF+1024*j} sc1" for j in range(4)]
    QAT = opt("qat", 3)
    for tau in range(4):
        if tau == QAT:
            for l in qpl: a(l)
        a(f"s_waitcnt vmcnt({12-4*tau+(4 if tau >= QAT else 0)}) lgkmcnt(8)")
        for ks in range(4): a(f"ds_read_b128 {vr(WK+16*tau+4*ks,4)}, v{[t0,t1,t2,t3][ks]} offset:{4096*tau}")
    if QAT == 4:
        for l in qpl: a(l)
    stamp("wuk")
    a("s_branch L_qpc\nL_qpp:")
    masked(qpl)
    a("L_qpc:\ns_add_u32 s13, s13, 1\ns_waitcnt vmcnt(0)")
    for j in range(4):
        a(f"v_mfma_f32_16x16x16_bf16 {vr(Dq,4)}, {vr(yI,2)}, {vr(QPR+4*j,2)}, {'0' if j == 0 else vr(Dq,4)}")
        a(f"v_cmp_ne_u64 {MK[j]}, {TAG}, {vr(QPR+4*j+2,2)}")
    or_masks(4)
    spin_tail("L_qpp", "L_qpo")
    stamp("qp")
    a(f"""
    v_cvt_pk_bf16_f32 v{Dq}, v{Dq}, v{Dq+1}
    v_cvt_pk_bf16_f32 v{Dq+1}, v{Dq+2}, v{Dq+3}
    s_mov_b32 exec_hi, 0
    ds_write_b64 v{acc+1}, {vr(Dq,2)}
    s_mov_b32 exec_hi, -1
    s_mov_b32 s13, {hex(f2u(128**-0.5 * math.log2(math.e)))}
    s_waitcnt lgkmcnt(0)
    """)
    for ks in range(4): a(f"ds_read_b128 {vr(qf+4*ks,4)}, v{acc+2} offset:{64*ks}")
    for ks in range(4):
        a(f"s_waitcnt lgkmcnt({3-ks})")
        for tau in range(4):
            a(f"v_mfma_f32_16x16x32_bf16 {vr(D2+4*tau,4)}, {vr(qf+4*ks,4)}, {vr(WK+16*tau+4*ks,4)}, {'0' if ks == 0 else vr(D2+4*tau,4)}")
    for tau in range(4): a(f"v_mul_f32 v{D2+4*tau}, s13, v{D2+4*tau}")
    a(f"""
    v_cvt_pk_bf16_f32 v{qp}, v{D2}, v{D2+4}
    v_cvt_pk_bf16_f32 v{qp+1}, v{D2+8}, v{D2+12}
    """)
    if REP == 8:
        a(f"global_store_dwordx2 v{vQs}, {vr(qp,2)}, s[40:41] sc1\nglobal_store_dwordx2 v{vQs+1}, {vr(qp,2)}, s[40:41] sc1")
    else:
        a(f"s_mov_b64 exec, 0xffff\nglobal_store_dwordx2 v{vQs}, {vr(qp,2)}, s[40:41] sc1\ns_mov_b64 exec, -1")
    stamp("qa")
    a("s_setprio 0\ns_barrier\ns_branch L_aJ")
    a(f"""
    L_aC:
    s_lshl_b32 s8, s79, 16
    s_lshl_b32 s9, s15, 14
    s_add_u32 s8, s8, s9
    s_lshl_b32 s10, s78, 13                  ; rotation
    v_lshlrev_b32 v{t3}, 4, v{vL}
    """)
    for k in range(8): a(f"v_xor_b32 v{ba+k}, {32*k}, v{t3}")
    srd(48, 18, SZ['ckv'])
    def ckv_ld(jj):
        if jj % 4 == 0: a("s_add_u32 s11, s9, s10\ns_add_u32 s14, s8, s10\ns_mov_b32 m0, s11\ns_add_u32 s10, s10, 4096\ns_and_b32 s10, s10, 0x3fff")
        a(f"buffer_load_dwordx4 v{ba+(jj&7)}, s[48:51], s14 offen offset:{1024*(jj&3)}{nt('ckv')} lds")
    a(f"""
    v_xor_b32 v{t0}, v{vN}, v{vG}
    v_lshlrev_b32 v{t1}, 8, v{vG}
    v_lshl_add_u32 v{vqr}, v{t0}, 4, v{t1}
    v_add_u32 v{vqr}, {QAS}, v{vqr}
    v_xor_b32 v{vqr+1}, 64, v{vqr}
    s_lshl_b32 s12, s78, 20
    s_lshl_b32 s13, s79, 10
    s_add_u32 s12, s12, s13
    s_lshl_b32 s13, s15, 8
    s_add_u32 s12, s12, s13
    s_add_u32 s12, s12, {PB_OFF}
    v_lshl_add_u32 v{vPBs}, v{vG}, 18, s12
    v_lshl_add_u32 v{vPBs}, v{vN}, 4, v{vPBs}
    v_add_u32 v{vPBs+1}, 0x10000, v{vPBs}
    v_add_u32 v{vPBs+2}, 0x20000, v{vPBs}
    v_add_u32 v{vPBs+3}, 0x30000, v{vPBs}
    s_barrier
    s_barrier
    """)
    for jj in range(EA): ckv_ld(jj)
    a("s_setprio 2\ns_barrier")
    for jj in range(EA, 16): ckv_ld(jj)
    a(f"""
    v_lshl_add_u32 v{t0}, v{vN}, 10, s9
    v_lshlrev_b32 v{t1}, 1, v{vE}
    v_xor_b32 v{t1}, v{t1}, v{vG}             ; g ^ 2(i&7)
    """)
    for q in range(4):
        a(f"v_xor_b32 v{t2}, {4*q}, v{t1}\nv_lshl_add_u32 v{ba+q}, v{t2}, 4, v{t0}")
    a("s_waitcnt vmcnt(0) lgkmcnt(0)")
    stamp("ckvl", True)
    for t in range(16):
        a(f"ds_read_b128 {vr(CK+4*t,4)}, v{ba+(t&3)} offset:{256*(t>>2)}")
        if t == 11: a("s_waitcnt lgkmcnt(6)")
    a(f"""
    v_lshrrev_b32 v{t0}, 2, v{vL}             ; 4g+r
    v_and_b32 v{t1}, 7, v{t0}                 ; key&7
    v_lshlrev_b32 v{t0}, 10, v{t0}
    v_and_b32 v{t2}, 3, v{vL}
    v_lshl_add_u32 v{t0}, v{t2}, 3, v{t0}
    s_lshl_b32 s8, s15, 8
    v_add_u32 v{t0}, s8, v{t0}
    """)
    for T in range(8):
        a(f"v_xor_b32 v{t2}, {T}, v{t1}\nv_lshl_add_u32 v{ba+T}, v{t2}, 5, v{t0}")
    a(f"""
    L_aJ:
    v_lshlrev_b32 v{vSa}, 4, v{vL}
    v_add_u32 v{vSa}, {SL}, v{vSa}
    s_lshl_b32 s8, s15, 10
    v_add_u32 v{vSw}, s8, v{vSa}
    s_lshl_b32 s10, s78, 14
    s_lshl_b32 s8, s79, 4
    s_add_u32 s10, s10, s8
    s_add_u32 s10, s10, {ML_OFF}
    v_lshl_add_u32 v{vMLs}, v{vN}, 10, s10
    s_lshl_b32 s11, s78, 14
    s_lshl_b32 s12, s15, 12
    s_add_u32 s11, s11, s12
    s_lshl_b32 s12, s4, 15
    {"s_add_u32 s11, s11, s12" if REP == 8 else ""}
    s_add_u32 s11, s11, {QA_OFF}
    v_lshl_add_u32 v{vq}, v{vL}, 4, s11
    s_lshl_b32 s9, s15, 2
    v_xor_b32 v{t0}, s9, v{vE}
    v_lshlrev_b32 v{t1}, 8, v{vL}
    v_lshl_add_u32 v{vqw}, v{t0}, 4, v{t1}
    v_add_u32 v{vqw}, {QAS}, v{vqw}
    v_xor_b32 v{vqw+1}, 16, v{vqw}
    v_xor_b32 v{vqw+2}, 32, v{vqw}
    v_xor_b32 v{vqw+3}, 48, v{vqw}
    s_lshl_b32 s12, s78, 6
    s_add_u32 s12, s12, s79
    s_lshl_b32 s12, s12, 7
    s_add_u32 s12, s12, {FA_OFF}
    s_barrier
    """)
    stamp("ckv")
    a("s_cmp_lt_u32 s3, 4\ns_cbranch_scc1 L_aH2")
    qal = [f"global_load_dwordx4 {vr(QP+4*j,4)}, v{vq}, s[40:41] offset:{1024*j} sc1" for j in range(4)]
    for l in qal: a(l)
    for T in range(8):
        if T % 2 == 0: a("s_waitcnt lgkmcnt(4)")
        for t in range(2):
            for aa in range(2):
                a(f"ds_read_b64_tr_b16 {vr(CV+8*T+4*t+2*aa,2)}, v{ba+T} offset:{(32*t+16*aa)*1024}")
    a("s_mov_b32 s13, 0\ns_branch L_qac\nL_qap:")
    masked(qal)
    a("L_qac:\ns_add_u32 s13, s13, 1")
    for j in range(4):
        a(f"s_waitcnt vmcnt({3-j})")
        a(f"ds_write_b128 v{vqw+j}, {vr(QP+4*j,4)}")
        sent_mask(j, QP+4*j, t2)
    or_masks(4)
    spin_tail("L_qap", "L_qao")
    stamp("qap")
    a(f"""
    s_waitcnt lgkmcnt(0)
    s_barrier
    """)
    stamp("st", True)
    def qread(t): a(f"ds_read_b128 {vr(QB+4*t,4)}, v{vqr+(t&1)} offset:{1024*t}")
    PRE = 12
    for t in range(PRE): qread(t)
    for t in range(16):
        issued = min(16, PRE + t)
        a(f"s_waitcnt lgkmcnt({issued - t - 1})")
        a(f"v_mfma_f32_16x16x32_bf16 {vr(DS,4)}, {vr(CK+4*t,4)}, {vr(QB+4*t,4)}, {'0' if t == 0 else vr(DS,4)}")
        if t + PRE < 16: qread(t + PRE)
    stamp("scm")
    a(f"""
    ds_write_b128 v{vSw}, {vr(DS,4)}
    s_waitcnt lgkmcnt(0)
    s_barrier
    """)
    def smax():
        for q in range(4): a(f"ds_read_b128 {vr(SV+4*q,4)}, v{vSa} offset:{1024*q}")
        a("s_waitcnt lgkmcnt(2)")
        a(f"v_max3_f32 v{t0}, v{SV}, v{SV+1}, v{SV+2}\nv_max3_f32 v{t1}, v{SV+3}, v{SV+4}, v{SV+5}\nv_max3_f32 v{t0}, v{t0}, v{SV+6}, v{SV+7}")
        a("s_waitcnt lgkmcnt(0)")
        a(f"""
        v_max3_f32 v{t1}, v{t1}, v{SV+8}, v{SV+9}
        v_max3_f32 v{t0}, v{t0}, v{SV+10}, v{SV+11}
        v_max3_f32 v{t1}, v{t1}, v{SV+12}, v{SV+13}
        v_max3_f32 v{t0}, v{t0}, v{SV+14}, v{SV+15}
        v_max_f32 v{t0}, v{t0}, v{t1}
        """)
        xrow("v_max_f32", t0, t1)
        a(f"v_ceil_f32 v{ml}, v{t0}")
    smax()
    stamp("max")
    for i in range(8): a(f"v_sub_f32 v{SV+i}, v{SV+i}, v{ml}")
    for i in range(8): a(f"v_exp_f32 v{SV+i}, v{SV+i}")
    for i in range(4): a(f"v_cvt_pk_bf16_f32 v{U+i}, v{SV+2*i}, v{SV+2*i+1}")
    for i in range(8, 10): a(f"v_sub_f32 v{SV+i}, v{SV+i}, v{ml}")
    fill = [f"v_sub_f32 v{SV+i}, v{SV+i}, v{ml}" for i in range(10, 16)]
    ex = [f"v_exp_f32 v{SV+i}, v{SV+i}" for i in range(8, 16)]
    for T in range(8):
        a(f"v_mfma_f32_16x16x32_bf16 {vr(DP+4*T,4)}, {vr(U,4)}, {vr(CV+8*T,4)}, 0")
        a(ex[T])
        if T < 6: a(fill[T])
    for i in range(4, 8): a(f"v_cvt_pk_bf16_f32 v{U+i}, v{SV+2*i}, v{SV+2*i+1}")
    OB = CK
    for T in range(8):
        a(f"v_mfma_f32_16x16x32_bf16 {vr(DP+4*T,4)}, {vr(U+4,4)}, {vr(CV+8*T+4,4)}, {vr(DP+4*T,4)}")
    for i in range(3):
        for r in range(4): a(f"v_cvt_pk_bf16_f32 v{OB+4*r+i}, v{DP+8*i+r}, v{DP+8*i+4+r}")
    for r in range(4):
        a(f"v_cvt_pk_bf16_f32 v{OB+4*r+3}, v{DP+24+r}, v{DP+28+r}")
        a(f"global_store_dwordx4 v{vPBs+r}, {vr(OB+4*r,4)}, s[40:41] sc1")
    stamp("pbst")
    a("s_barrier\ns_branch L_fin")
    FAL = o.get("falate")
    FW = opt("fw", 1)
    FQ = BIG + 180
    a("L_aH2:")
    srd(60, 30, SZ['w1']); srd(64, 32, SZ['w2'])
    a(f"""
    s_lshl_b32 s11, s78, 13
    s_add_u32 s11, s11, {FL_OFF}
    v_lshl_add_u32 v{ba+5}, v{vL}, 7, s11
    s_cmp_lg_u32 s3, 2
    s_cbranch_scc1 L_nof0
    global_load_dwordx2 {vr(FQ,2)}, v{ba+5}, s[40:41] sc1
    L_nof0:
    s_and_b32 s13, s3, 1
    s_lshl_b32 s13, s13, 3
    """)
    swz1280(ba, 5, "s13")
    a(f"""
    s_mul_i32 s42, s69, {16*1280}
    s_mul_i32 s43, s3, 5120
    s_add_u32 s42, s42, s43
    s_add_u32 s43, s43, {W2L}
    v_mul_u32_u24 v{vWo}, {20*3456}, v{vG}
    v_lshl_add_u32 v{vWo}, v{vN}, 4, v{vWo}
    s_mul_i32 s14, s4, {80*3456}
    s_lshr_b32 s9, s69, 3
    s_lshl_b32 s9, s9, 8
    s_add_u32 s14, s14, s9
    s_barrier
    s_cmp_lg_u32 s3, 2
    s_cbranch_scc1 L_nofs
    s_mov_b32 s13, 0
    s_branch L_flc
    L_flp:
    global_load_dwordx2 {vr(FQ,2)}, v{ba+5}, s[40:41] sc1
    L_flc:
    s_add_u32 s13, s13, 1
    s_waitcnt vmcnt(0)
    """)
    tagcheck([FQ])
    spin_tail("L_flp", "L_flo")
    if not FAL: flag_store("s12")
    stamp("fa")
    a("L_nofs:")
    def w1_loads():
        a("s_cmp_lg_u32 s3, 0\ns_cbranch_scc1 L_now1")
        for u in range(20):
            a(f"buffer_load_dwordx4 {vr(WQ+4*u,4)}, v{vWo}, s[60:63], s14 offen{nt('w1')}\ns_add_u32 s14, s14, 3456")
        a("L_now1:")
    if FW == 0: w1_loads()
    a("s_barrier")
    if FAL:
        a("s_cmp_lg_u32 s3, 2\ns_cbranch_scc1 L_nofs2")
        flag_store("s12")
        a("L_nofs2:")
    if FW == 1: w1_loads()
    a(f"""
    s_cmp_lg_u32 s3, 3
    s_cbranch_scc1 L_noml
    s_setprio {opt("mlprio", 2)}
    """)
    smax()
    for i in range(16): a(f"v_sub_f32 v{SV+i}, v{SV+i}, v{ml}")
    for i in range(16): a(f"v_exp_f32 v{SV+i}, v{SV+i}")
    for i in range(0, 8, 2): a(f"v_pk_add_f32 {vr(SV+i,2)}, {vr(SV+i,2)}, {vr(SV+8+i,2)}")
    for i in range(0, 4, 2): a(f"v_pk_add_f32 {vr(SV+i,2)}, {vr(SV+i,2)}, {vr(SV+4+i,2)}")
    a(f"""
    v_pk_add_f32 {vr(SV,2)}, {vr(SV,2)}, {vr(SV+2,2)}
    v_add_f32 v{ml+1}, v{SV}, v{SV+1}
    """)
    xrow("v_add_f32", ml+1, t1)
    a(f"""
    s_mov_b64 exec, 0xffff
    global_store_dwordx4 v{vMLs}, {vr(ml,4)}, s[40:41] sc1
    s_mov_b64 exec, -1
    """)
    stamp("pbst")
    A2 = WQ; FO = WQ + 20; HR = WQ + 60; HP = WQ + 64; hs = WQ + 72
    gx = Y; gg = Y + 6; vg = Y + 12; RB = Y + 16; RS = Y + 32; RC = Y + 48
    a("L_noml:\ns_setprio 0\ns_barrier")
    if FW == 2: w1_loads()
    for j in range(5):
        a(f"s_mov_b32 m0, s43\ns_add_u32 s43, s43, 1024\nbuffer_load_dwordx4 v{ba+j}, s[64:67], s42 offen{nt('w2')} lds")
    a(f"""
    s_cmp_lg_u32 s3, 0
    s_cbranch_scc1 L_nohp
    s_lshl_b32 s8, s69, 9
    s_add_u32 s8, s8, {HP_OFF}
    v_lshl_add_u32 v{t3}, v{vL}, 4, s8
    """)
    gemv20(5, t3, 0)
    stamp("hp")
    a(f"""
    L_nohp:
    s_cmp_lg_u32 s3, 1
    s_cbranch_scc1 L_nogate
    s_load_dwordx2 s[44:45], s[0:1], 0
    v_mul_u32_u24 v{t1}, 20, v{vL}
    global_load_dwordx4 {vr(gg,4)}, v{t1}, s[34:35]
    global_load_dword v{gg+4}, v{t1}, s[34:35] offset:16
    s_waitcnt lgkmcnt(0)
    global_load_dwordx4 {vr(gx,4)}, v{t1}, s[44:45]
    global_load_dword v{gx+4}, v{t1}, s[44:45] offset:16
    v_mov_b32 v{t3}, 0
    s_waitcnt vmcnt(0)
    """)
    for i in range(5):
        a(f"""
        v_lshlrev_b32 v{t0}, 16, v{gx+i}
        v_lshlrev_b32 v{t1}, 16, v{gg+i}
        v_mul_f32 v{t0}, v{t0}, v{t1}
        v_and_b32 v{t1}, 0xffff0000, v{gx+i}
        v_and_b32 v{t2}, 0xffff0000, v{gg+i}
        v_mul_f32 v{t1}, v{t1}, v{t2}
        v_cvt_pk_bf16_f32 v{t0}, v{t0}, v{t1}
        v_lshlrev_b32 v{t1}, 16, v{t0}
        v_and_b32 v{t0}, 0xffff0000, v{t0}
        v_add_f32 v{t3}, v{t3}, v{t1}
        v_add_f32 v{t3}, v{t3}, v{t0}
        """)
    allred("v_add_f32", t3, t3, t0)
    rbf(t3, t3)
    a(f"""
    v_mul_f32 v{t3}, {NLOG2E}, v{t3}
    v_exp_f32 v{t3}, v{t3}
    v_add_f32 v{t3}, 1.0, v{t3}
    v_rcp_f32 v{t3}, v{t3}
    """)
    rbf(vg, t3)
    a(f"v_sub_f32 v{vg+1}, 1.0, v{vg}")
    rbf(vg+1, vg+1)
    a(f"""
    L_nogate:
    s_lshr_b32 s8, s69, 3
    s_lshl_b32 s8, s8, 12
    s_lshl_b32 s9, s4, 5
    s_add_u32 s8, s8, s9
    s_add_u32 s8, s8, {HP_OFF}
    v_lshl_add_u32 v{t0}, v{vE}, 9, s8
    v_and_b32 v{t1}, 1, v{vG}
    v_lshl_add_u32 v{t0}, v{t1}, 8, v{t0}
    v_lshrrev_b32 v{t1}, 1, v{vG}
    v_lshl_add_u32 v{t0}, v{t1}, 4, v{t0}
    v_lshrrev_b32 v{t1}, 2, v{vL}
    v_and_b32 v{t3}, 7, v{t1}
    v_mul_u32_u24 v{t1}, 1280, v{t1}
    v_and_b32 v{t2}, 3, v{vL}
    v_lshl_add_u32 v{t1}, v{t2}, 3, v{t1}
    v_add_u32 v{t1}, {W2L}, v{t1}
    s_mul_i32 s8, s69, {ROWB}
    s_mul_i32 s9, s3, 768
    s_add_u32 s8, s8, s9
    s_add_u32 s8, s8, {PF_OFF}
    v_lshl_add_u32 v{vq}, v{vL}, 2, s8
    s_mov_b32 s26, 0xffff0000
    s_mov_b32 s27, 0xffff0000
    s_mov_b32 s28, 0
    s_mov_b32 s29, -1
    s_mul_i32 s13, s3, 10
    s_waitcnt vmcnt(0)
    s_barrier
    s_cmp_ge_u32 s69, 108
    s_cbranch_scc1 L_nofd
    global_load_dwordx4 {vr(HR,4)}, v{t0}, s[40:41] sc1
    """)
    for T in range(10):
        a(f"v_xor_b32 v{t2}, s13, v{t3}\nv_lshl_add_u32 v{t2}, v{t2}, 5, v{t1}\ns_add_u32 s13, s13, 1\nds_read_b64_tr_b16 {vr(A2+2*T,2)}, v{t2}")
    a(f"""
    s_mov_b32 s13, 0
    s_branch L_hpc
    L_hpp:
    s_mov_b64 exec, vcc
    global_load_dwordx4 {vr(HR,4)}, v{t0}, s[40:41] sc1
    s_mov_b64 exec, -1
    L_hpc:
    s_add_u32 s13, s13, 1
    s_waitcnt vmcnt(0)
    """)
    tagcheck([HR+2])
    spin_tail("L_hpp", "L_hpo")
    a(f"""
    v_lshlrev_b32 v{HP}, 16, v{HR}
    v_and_b32 v{HP+1}, 0xffff0000, v{HR}
    v_lshlrev_b32 v{HP+2}, 16, v{HR+1}
    v_and_b32 v{HP+3}, 0xffff0000, v{HR+1}
    """)
    for d in ("quad_perm:[1,0,3,2]", "quad_perm:[2,3,0,1]", "row_half_mirror"):
        for r in range(4): a(f"v_add_f32_dpp v{HP+r}, v{HP+r}, v{HP+r} {d} {DPPM}")
    for r in range(4): a(f"v_mul_f32 v{HP+4+r}, {NLOG2E}, v{HP+r}")
    for r in range(4): a(f"v_exp_f32 v{HP+4+r}, v{HP+4+r}")
    for r in range(4): a(f"v_add_f32 v{HP+4+r}, 1.0, v{HP+4+r}")
    for r in range(4): a(f"v_rcp_f32 v{HP+4+r}, v{HP+4+r}")
    for r in range(4): a(f"v_mul_f32 v{HP+r}, v{HP+r}, v{HP+4+r}")
    a(f"v_cvt_pk_bf16_f32 v{hs}, v{HP}, v{HP+1}\nv_cvt_pk_bf16_f32 v{hs+1}, v{HP+2}, v{HP+3}")
    a("s_waitcnt lgkmcnt(0)")
    for T in range(10): a(f"v_mfma_f32_16x16x16_bf16 {vr(FO+4*T,4)}, {vr(hs,2)}, {vr(A2+2*T,2)}, 0")
    rowsel(FO, 4, vq, 0); rowsel(FO+20, 4, vq, 384)
    a(f"s_mov_b64 exec, 0xffff\nglobal_store_dword v{vq}, v{FO+16}, s[40:41] offset:256 sc1\nglobal_store_dword v{vq}, v{FO+36}, s[40:41] offset:640 sc1\ns_mov_b64 exec, -1")
    stamp("pf")
    a(f"""
    L_nofd:
    s_cmp_lg_u32 s3, 1
    s_cbranch_scc1 L_fin
    s_cmp_ge_u32 s69, 80
    s_cbranch_scc1 L_fin
    s_lshr_b32 s8, s69, 3
    s_mul_i32 s15, s4, 10
    s_add_u32 s15, s15, s8
    v_lshrrev_b32 v{t2}, 1, v{vL}
    v_mul_u32_u24 v{t0}, {ROWB}, v{t2}
    v_and_b32 v{t1}, 1, v{vL}
    v_lshl_add_u32 v{t0}, v{t1}, 4, v{t0}
    s_mul_i32 s9, s4, 384
    s_lshl_b32 s8, s8, 5
    s_add_u32 s9, s9, s8
    s_add_u32 s9, s9, {PC_OFF}
    v_add_u32 v{ba}, s9, v{t0}
    v_add_u32 v{ba+1}, {32*3072}, v{ba}
    v_add_u32 v{ba+2}, {64*3072}, v{ba}
    v_add_u32 v{ba+3}, {96*3072}, v{ba}
    v_add_u32 v{vPBs}, {PF_OFF-PC_OFF}, v{ba}
    v_add_u32 v{vPBs+1}, {PF_OFF-PC_OFF}, v{ba+1}
    v_add_u32 v{vPBs+2}, {PF_OFF-PC_OFF}, v{ba+2}
    v_add_u32 v{vPBs+3}, {PF_OFF-PC_OFF}, v{ba+3}
    s_lshl_b32 s9, s15, 4
    v_lshl_add_u32 v{ba+4}, v{t1}, 3, s9
    v_lshl_add_u32 v{ba+4}, v{vG}, 1, v{ba+4}
    v_lshlrev_b32 v{ba+5}, 7, v{vL}
    v_add_u32 v{ba+5}, {FO_OFF}, v{ba+5}
    v_add_u32 v{ba+6}, 8192, v{ba+5}
    v_mov_b32 v{RB+12}, 0
    v_mov_b32 v{RB+13}, 0
    v_mov_b32 v{RB+14}, 0
    v_mov_b32 v{RB+15}, 0
    s_mov_b32 s13, 0
    s_mov_b64 {MK[0]}, -1
    s_mov_b64 {MK[1]}, -1
    L_frp:
    """)
    masked([f"global_load_dwordx2 {vr(RS,2)}, v{ba+5}, s[40:41] sc1", f"global_load_dwordx2 {vr(RS+2,2)}, v{ba+6}, s[40:41] sc1"])
    a(f"""
    s_add_u32 s13, s13, 1
    s_waitcnt vmcnt(0)
    v_cmp_ne_u64 {MK[0]}, {TAG}, {vr(RS,2)}
    v_cmp_ne_u64 {MK[1]}, {TAG}, {vr(RS+2,2)}
    """)
    or_masks(2)
    spin_tail("L_frp", "L_fro")
    stamp("fo")
    def sum4(R):
        for r in range(0, 4, 2): a(f"v_pk_add_f32 {vr(R+r,2)}, {vr(R+r,2)}, {vr(R+4+r,2)}\nv_pk_add_f32 {vr(R+8+r,2)}, {vr(R+8+r,2)}, {vr(R+12+r,2)}")
        for r in range(0, 4, 2): a(f"v_pk_add_f32 {vr(R+r,2)}, {vr(R+r,2)}, {vr(R+8+r,2)}")
    pfl = [f"global_load_dwordx4 {vr(RB+4*j,4)}, v{vPBs+j}, s[40:41] sc1" for j in range(4)]
    a(f"s_mov_b64 {MK[0]}, -1\ns_mov_b64 {MK[1]}, -1\ns_mov_b64 {MK[2]}, -1\ns_mov_b64 {MK[3]}, 0xffffff\ns_mov_b32 s13, 0\nL_pfp:")
    masked(pfl)
    a("s_add_u32 s13, s13, 1")
    for j in range(4):
        a(f"s_waitcnt vmcnt({3-j})")
        sent_mask(j, RB+4*j, t2)
    or_masks(4)
    spin_tail("L_pfp", "L_pfo")
    stamp("pfr")
    pcl = [f"global_load_dwordx4 {vr(RC+4*j,4)}, v{ba+j}, s[40:41] sc1" for j in range(4)]
    for l in pcl: a(l)
    sum4(RB)
    for r in range(4): a(f"v_mul_f32 v{RB+r}, v{vg+1}, v{RB+r}")
    a("s_mov_b32 s13, 0\ns_branch L_pcc\nL_pcp:")
    masked(pcl)
    a("L_pcc:\ns_add_u32 s13, s13, 1")
    for j in range(4):
        a(f"s_waitcnt vmcnt({3-j})")
        sent_mask(j, RC+4*j, t2)
    or_masks(4)
    spin_tail("L_pcp", "L_pco")
    stamp("pc")
    sum4(RC)
    for r in range(4): a(f"v_fmac_f32 v{RB+r}, v{vg}, v{RC+r}")
    R = RB
    a(f"""
    v_permlane32_swap_b32 v{R}, v{R+2}
    v_permlane32_swap_b32 v{R+1}, v{R+3}
    v_add_f32 v{R}, v{R}, v{R+2}
    v_add_f32 v{R+1}, v{R+1}, v{R+3}
    v_permlane16_swap_b32 v{R}, v{R+1}
    v_add_f32 v{R}, v{R}, v{R+1}
    v_add_f32_dpp v{R}, v{R}, v{R} row_ror:8 {DPPM}
    v_add_f32_dpp v{R}, v{R}, v{R} row_ror:4 {DPPM}
    v_add_f32_dpp v{R}, v{R}, v{R} row_ror:2 {DPPM}
    v_cvt_pk_bf16_f32 v{R}, v{R}, v{R}
    """)
    setexec(0x0003000300030003)
    a(f"global_store_short v{ba+4}, v{R}, s[36:37]")
    a(f"""
    s_cmp_lg_u32 s15, 0
    s_cbranch_scc1 L_noep
    s_mov_b64 exec, 1
    v_mov_b32 v{t0}, {EP_OFF}
    global_store_dwordx2 v{t0}, {vr(pub+2,2)}, s[40:41]
    L_noep:
    """)
    setexec(-1)
    stamp("out")
    a("L_fin:")
    if probe:
        prole, _, amp = probe; idx = 1
        a(f"""
        s_waitcnt lgkmcnt(0)
        s_cmp_{'ge' if prole == 'PO' else 'lt'}_u32 s2, 128
        s_cbranch_scc1 L_end
        s_cmp_eq_u32 s{80+2*idx}, 0
        s_cbranch_scc1 L_end
        s_sub_u32 s8, s{80+2*idx}, s80
        s_mul_i32 s8, s8, {amp}
        s_min_u32 s8, s8, {opt("fix", 100000)}
        L_probe:
        s_sleep 2
        s_memrealtime s[10:11]
        s_waitcnt lgkmcnt(0)
        s_sub_u32 s10, s10, s80
        s_cmp_lt_u32 s10, s8
        s_cbranch_scc1 L_probe
        """)
    if DEV:
        a(f"""
        s_waitcnt vmcnt(0)
        s_memrealtime s[100:101]
        s_waitcnt lgkmcnt(0)
        s_lshl_b32 s7, s2, 3
        s_add_u32 s7, s7, s3
        s_mul_i32 s7, s7, {NST*4}
        s_add_u32 s7, s7, {STAMP_OFF}
        s_mov_b64 exec, 1
        v_mov_b32 v3, s7
        """)
        for i in range(NST):
            a(f"v_mov_b32 v4, s{80+2*i}\nglobal_store_dword v3, v4, s[40:41] offset:{4*i}")
    a("L_end:\ns_endpgm")
    a(".fill 3600, 4, 0xbf800000")
    lines = hazard.fix(a.lines)
    nv = max(po_v, V.n, BIGEND)
    if DEV:
        for r_ in want: lines.insert(0, f"; STAMPS {r_} start " + " ".join(want[r_] + ["-"] * (NST - 2 - len(want[r_]))) + " end")
    txt = single("\n".join(lines) + "\n", 256, 512, 155648, vgpr=256, sgpr=102, accum=256)
    if o.get("pre") or o.get("post"):
        main = f"; @launch kernel={NAME}_kernel grid=(256,1,1) block=(512,1,1) lds=155648"
        tiny = f"; @launch kernel=tiny_kernel grid=({opt('tg',1)},1,1) block=({opt('tb',64)},1,1) lds={opt('tl',0)}"
        ll = ([tiny] if o.get("pre") else []) + [main] + ([tiny] if o.get("post") else [])
        txt = txt.replace("; @launch grid=(256,1,1) block=(512,1,1) lds=155648", "\n".join(ll))
        txt = txt.replace('.section .rodata,"a"', kernel_begin("tiny_kernel") + "    s_endpgm\n" + '.section .rodata,"a"')
        txt += ".p2align 6\n" + descriptor("tiny_kernel", opt('tv',8), 16, min(256, opt('tv',8)))
    return txt, nv

if __name__ == "__main__":
    out = sys.argv[1]
    DEV = "dev" in sys.argv[2:]
    txt, nv = build(DEV, {k: True for k in sys.argv[2:]})
    open(out, "w").write(txt)
    print("vgprs", nv)
```

```python
import sys, math, struct
from genlib import *
import hazard

def f2u(x): return struct.unpack("<I", struct.pack("<f", x))[0]

QP_OFF, HP_OFF, FA_OFF, FK_OFF, EP_OFF, ML_OFF, FO_OFF, PC_OFF, PF_OFF, PB_OFF, QA_OFF = 0x0, 0x20000, 0x30000, 0x34000, 0x3C000, 0x40000, 0x48000, 0x50000, 0xB0000, 0x100000, 0x200000
ROWB = 3072
SPIN = 200000
DPPM = "row_mask:0xf bank_mask:0xf"
NLOG2E = hex(f2u(-math.log2(math.e)))

def build(DEV=False, opts=None):
    o = dict(opts or {})
    def opt(name, dflt):
        for k in o:
            if k.startswith(name + "="): return int(k.split("=")[1])
        return dflt
    a = Asm()
    def nt(k): return " nt" if (o.get("nt") or o.get("nt_" + k)) else ""
    NST = 11
    probe = None
    for k in o:
        if k.startswith("probe"):
            _, role, idx, amp = k.split("_"); probe = (role, idx, int(amp))
    role = ["O"]
    want = {"O": "p1 wo go pb cp pc".split(), "K": "p1 wuk qp qa hp pf".split(), "A": "p1 ckv qap scm exp pbst fo pc out".split()}
    for k in o:
        for r_ in want:
            if k.startswith("s" + r_ + "="): want[r_] = k.split("=")[1].split(",")
    if probe: want = {"O": [], "K": [], "A": []}; want[probe[0]] = [probe[1]]
    def stamp(nm, wait=False):
        if not (DEV or probe): return
        if nm == "start": a("s_memrealtime s[80:81]"); return
        w = want[role[0]]
        if nm in w:
            i = w.index(nm) + 1
            a(f"s_memrealtime s[{80+2*i}:{81+2*i}]")
            if wait: a("s_waitcnt lgkmcnt(0)")
    class VA:
        def __init__(s, start): s.n = start
        def __call__(s, k=1, al=1):
            s.n = (s.n + al - 1) // al * al
            r = s.n; s.n += k
            assert s.n <= 254
            return r
    def vr(b, k): return f"v[{b}:{b+k-1}]"
    def srd(dst, src, size):
        a(f"s_mov_b32 s{dst}, s{src}\ns_mov_b32 s{dst+1}, s{src+1}\ns_mov_b32 s{dst+2}, {size}\ns_mov_b32 s{dst+3}, 0x20000")
    def setexec(mask):
        if mask == -1: a("s_mov_b64 exec, -1")
        elif mask < (1 << 31): a(f"s_mov_b64 exec, {hex(mask)}")
        else: a(f"s_mov_b32 exec_lo, {hex(mask & 0xffffffff)}\ns_mov_b32 exec_hi, {hex(mask >> 32)}")
    def spin_tail(Lp, Lo):
        a(f"s_cmp_gt_u32 s13, {SPIN}\ns_cbranch_scc1 {Lo}\ns_cbranch_vccnz {Lp}\n{Lo}:")
    def xrow(op, x, t):
        a(f"""
        v_mov_b32 v{t}, v{x}
        v_permlane16_swap_b32 v{x}, v{t}
        {op} v{x}, v{x}, v{t}
        v_mov_b32 v{t}, v{x}
        v_permlane32_swap_b32 v{x}, v{t}
        {op} v{x}, v{x}, v{t}
        """)
    def allred(op, dst, src, t):
        a(f"{op}_dpp v{dst}, v{src}, v{src} row_ror:1 {DPPM}")
        for d in (2, 4, 8): a(f"{op}_dpp v{dst}, v{dst}, v{dst} row_ror:{d} {DPPM}")
        xrow(op, dst, t)
    def red32(op, dst, src, t):
        a(f"{op}_dpp v{dst}, v{src}, v{src} quad_perm:[1,0,3,2] {DPPM}")
        a(f"{op}_dpp v{dst}, v{dst}, v{dst} quad_perm:[2,3,0,1] {DPPM}")
        a(f"{op}_dpp v{dst}, v{dst}, v{dst} row_ror:8 {DPPM}")
        xrow(op, dst, t)
    def rbf(dst, src):
        a(f"v_cvt_pk_bf16_f32 v{dst}, v{src}, v{src}\nv_and_b32 v{dst}, 0xffff0000, v{dst}")
    TAG = "s[70:71]"
    MK = ["s[72:73]", "s[74:75]", "s[76:77]", "s[66:67]", "s[64:65]", "s[62:63]"]
    def tagcheck(p): a(f"v_cmp_ne_u64 vcc, {TAG}, {vr(p,2)}")
    def sent_mask(k, R, t):
        a(f"v_max3_u32 v{t}, v{R}, v{R+1}, v{R+2}\nv_max_u32 v{t}, v{t}, v{R+3}\nv_cmp_eq_u32 {MK[k]}, -1, v{t}")
    def or_masks(n):
        a("s_nop 0")
        a(f"s_or_b64 vcc, {MK[0]}, {MK[1]}")
        for k in range(2, n): a(f"s_or_b64 vcc, vcc, {MK[k]}")
    def masked(loads):
        for k, l in enumerate(loads): a(f"s_mov_b64 exec, {MK[k]}\n{l}")
        a("s_mov_b64 exec, -1")
    def swz1280(dst, n, wsel):
        for j in range(n):
            a(f"""
            v_add_u32 v{t0}, {64*j}, v{vL}
            v_mul_u32_u24 v{t1}, 820, v{t0}
            v_lshrrev_b32 v{t1}, 16, v{t1}
            v_lshl_add_u32 v{t1}, v{t1}, 1, {wsel}
            v_xor_b32 v{t0}, v{t0}, v{t1}
            v_lshlrev_b32 v{dst+j}, 4, v{t0}
            """)
    def tr1280(dst, base):
        a(f"""
        v_lshrrev_b32 v{t1}, 2, v{vL}
        v_and_b32 v{t3}, 7, v{t1}
        v_and_b32 v{t2}, 3, v{vL}
        v_mul_u32_u24 v{t1}, 1280, v{t1}
        v_lshl_add_u32 v{t1}, v{t2}, 3, v{t1}
        v_add_u32 v{t1}, {base}, v{t1}
        s_mul_i32 s13, s3, 5
        """)
        for T in range(5):
            a(f"v_xor_b32 v{dst+T}, s13, v{t3}\nv_lshl_add_u32 v{dst+T}, v{dst+T}, 5, v{t1}\ns_add_u32 s13, s13, 1")
    def flag_store(sreg):
        a(f"""
        v_mov_b32 v{t0}, {sreg}
        s_mov_b64 exec, 1
        global_store_dwordx2 v{t0}, {vr(pub+2,2)}, s[40:41] sc1
        s_mov_b64 exec, -1
        """)
    def flag_wait(va, R, lab, first=True):
        if first: a(f"s_mov_b32 s13, 0\ns_mov_b64 vcc, -1")
        else: a(f"s_mov_b32 s13, 0\ns_branch {lab}c")
        a(f"""
        {lab}p:
        s_mov_b64 exec, vcc
        global_load_dwordx2 {vr(R,2)}, v{va}, s[40:41] sc1
        s_mov_b64 exec, -1
        {lab}c:
        s_add_u32 s13, s13, 1
        s_waitcnt vmcnt(0)
        """)
        tagcheck(R)
        spin_tail(lab + "p", lab + "o")
    def rowmasks():
        a("s_mov_b32 s26, 0xffff0000\ns_mov_b32 s27, 0xffff0000\ns_mov_b32 s28, 0\ns_mov_b32 s29, -1")
    def rowstore(R, va):
        a(f"""
        v_cndmask_b32 v{R}, v{R}, v{R+4}, s[26:27]
        v_cndmask_b32 v{R+8}, v{R+8}, v{R+12}, s[26:27]
        v_cndmask_b32 v{R}, v{R}, v{R+8}, s[28:29]
        global_store_dword v{va}, v{R}, s[40:41] sc1
        s_mov_b64 exec, 0xffff
        global_store_dword v{va}, v{R+16}, s[40:41] offset:256 sc1
        s_mov_b64 exec, -1
        """)
    def rowclear(sidx, off):
        a(f"""
        s_mul_i32 s8, {sidx}, {ROWB}
        s_add_u32 s8, s8, {off}
        v_lshl_add_u32 v{t0}, v{vL}, 4, s8
        global_store_dwordx4 v{t0}, {vr(Dq,4)}, s[40:41] sc1
        global_store_dwordx4 v{t0}, {vr(Dq,4)}, s[40:41] offset:1024 sc1
        global_store_dwordx4 v{t0}, {vr(Dq,4)}, s[40:41] offset:2048 sc1
        """)

    vL, vS, vE, vN, vG = 0, 1, 2, 3, 4
    t0, t1, t2, t3 = 6, 7, 8, 9
    pub = 10; msk = 14; Dq = 18; vWo = 5
    BIG = 22
    Y = BIG; WQ = BIG + 80; xd = BIG + 160; selE = BIG + 170; selO = BIG + 174
    BIGEND = BIG + 178
    if DEV or probe:
        for i in range(1, NST): a(f"s_mov_b32 s{80+2*i}, 0")
    stamp("start")
    a(f"""
    s_cmp_ge_u32 s2, 256
    s_cbranch_scc1 L_end
    s_load_dwordx16 s[16:31], s[0:1], 0
    s_load_dwordx2 s[40:41], s[0:1], 96
    s_load_dwordx8 s[32:39], s[0:1], 64
    v_lshrrev_b32 v1, 6, v0
    v_and_b32 v0, 63, v0
    v_readfirstlane_b32 s3, v1
    """)
    if not o.get("nocpf"):
        a(f"""
        s_cmp_lg_u32 s3, 3
        s_cbranch_scc1 L_nocpf
        s_cmp_ge_u32 s2, {opt("cpfn", 128)}
        s_cbranch_scc1 L_nocpf
        s_getpc_b64 s[42:43]
        v_lshlrev_b32 v{t0}, 6, v0
        v_add_u32 v{t1}, 8192, v{t0}
        global_load_dword v254, v{t0}, s[42:43]
        global_load_dword v255, v{t1}, s[42:43] offset:-4096
        global_load_dword v254, v{t1}, s[42:43]
        v_add_u32 v{t1}, 4096, v{t1}
        s_mov_b32 exec_hi, 0
        global_load_dword v255, v{t1}, s[42:43]
        s_mov_b32 exec_hi, -1
        L_nocpf:
        """)
    a(f"""
    s_and_b32 s4, s2, 7
    s_lshr_b32 s5, s2, 3
    v_and_b32 v3, 15, v0
    v_lshrrev_b32 v4, 4, v0
    v_lshrrev_b32 v1, 3, v0
    v_and_b32 v2, 7, v0
    v_mul_u32_u24 v{t0}, 40, v{vG}
    s_mul_i32 s8, s4, 160
    v_add_u32 v{t0}, s8, v{t0}
    v_mul_u32_u24 v{vWo}, {20*8192}, v{vG}
    v_lshl_add_u32 v{vWo}, v{vN}, 4, v{vWo}
    s_mul_i32 s8, s4, {80*8192}
    s_lshl_b32 s9, s5, 1
    s_add_u32 s9, s9, s3
    s_lshl_b32 s10, s9, 8
    s_add_u32 s8, s8, s10
    s_mov_b32 s46, {SZ['wq']}
    s_mov_b32 s47, 0x20000
    s_lshr_b32 s68, s2, 6             ; 0,1: O  2: K  3: A
    s_cmp_eq_u32 s68, 3
    s_cselect_b32 s14, 0, 2
    s_cmp_ge_u32 s3, s14
    s_waitcnt lgkmcnt(0)
    s_load_dwordx2 {TAG}, s[40:41], {EP_OFF}
    s_cbranch_scc1 L_noP1a
    s_mov_b32 s44, s20
    s_mov_b32 s45, s21
    global_load_dwordx4 {vr(xd,4)}, v{t0}, s[16:17]
    global_load_dwordx4 {vr(xd+4,4)}, v{t0}, s[16:17] offset:16
    global_load_dwordx2 {vr(xd+8,2)}, v{t0}, s[16:17] offset:32
    s_cmp_eq_u32 s68, 2
    s_cbranch_scc1 L_noP1a
    """)
    for u in range(20):
        a(f"buffer_load_dwordx4 {vr(WQ+4*u,4)}, v{vWo}, s[44:47], s8 offen{nt('wq')}\ns_add_u32 s8, s8, 8192")
    a(f"""
    s_barrier
    L_noP1a:
    v_and_b32 v{t0}, 1, v{vL}
    v_lshlrev_b32 v{t0}, 4, v{t0}
    v_mov_b32 v{t1}, 0xffff
    v_lshlrev_b32 v{t0}, v{t0}, v{t1}
    v_lshrrev_b32 v{t1}, 1, v{vE}
    s_and_b32 s7, s5, 3               ; O: sub
    s_bfe_u32 s6, s5, 0x20002
    s_lshl_b32 s6, s6, 3
    s_add_u32 s6, s6, s4              ; O: h
    s_and_b32 s15, s3, 3              ; cw
    s_and_b32 s78, s5, 1
    s_bfe_u32 s79, s5, 0x20001
    s_lshl_b32 s79, s79, 3
    s_add_u32 s79, s79, s4            ; K: h  A: chunk
    s_and_b32 s69, s2, 63
    """)
    for r in range(4):
        a(f"v_cmp_eq_u32 vcc, {r}, v{t1}\nv_cndmask_b32 v{msk+r}, 0, v{t0}, vcc")
    def gettag():
        a(f"s_waitcnt lgkmcnt(0)\ns_add_u32 s70, s70, 1\ns_add_u32 s71, s71, 0x9e3779b9\nv_mov_b32 v{pub+2}, s70\nv_mov_b32 v{pub+3}, s71")
    def gemv20(waits, vaddr, off):
        for u in range(20):
            if waits is not None: a(f"s_waitcnt vmcnt({19-u+waits})")
            a(f"v_mfma_f32_16x16x32_bf16 {vr(Dq,4)}, {vr(Y+4*u,4)}, {vr(WQ+4*u,4)}, {'0' if u == 0 else vr(Dq,4)}")
        a(f"""
        v_cvt_pk_bf16_f32 v{pub}, v{Dq}, v{Dq+1}
        v_cvt_pk_bf16_f32 v{pub+1}, v{Dq+2}, v{Dq+3}
        s_mov_b32 exec_hi, 0
        global_store_dwordx4 v{vaddr}, {vr(pub,4)}, s[40:41] offset:{off} sc1
        s_mov_b32 exec_hi, -1
        """)
    a(f"""
    s_cmp_ge_u32 s3, s14
    s_cbranch_scc1 L_noP1b
    v_mov_b32 v{t2}, 0x0c0c0c0c
    s_mov_b32 s12, 0x01000100
    s_mov_b32 s13, 0x03020302
    """)
    for r in range(4):
        a(f"v_bfi_b32 v{selE+r}, v{msk+r}, s12, v{t2}\nv_bfi_b32 v{selO+r}, v{msk+r}, s13, v{t2}")
    a(f"""
    s_lshl_b32 s12, s9, 3
    s_add_u32 s12, s12, s4
    s_lshl_b32 s12, s12, 9
    v_lshl_add_u32 v{t3}, v{vL}, 4, s12
    s_cmp_lg_u32 s68, 2
    s_cbranch_scc1 L_xw
    s_waitcnt vmcnt(0)
    L_xw:
    s_waitcnt vmcnt(20)
    """)
    for u in range(20):
        for r in range(4):
            a(f"v_perm_b32 v{Y+4*u+r}, v{xd+u//2}, v{xd+u//2}, v{(selO if u & 1 else selE)+r}")
    gettag()
    a("s_cmp_eq_u32 s68, 2\ns_cbranch_scc1 L_noP1b")
    gemv20(0, t3, QP_OFF)
    if DEV: a("s_memrealtime s[82:83]")
    a(f"""
    L_noP1b:
    v_mov_b32 v{Dq}, -1
    v_mov_b32 v{Dq+1}, -1
    v_mov_b32 v{Dq+2}, -1
    v_mov_b32 v{Dq+3}, -1
    s_cmp_eq_u32 s68, 3
    s_cbranch_scc1 L_roleA
    s_cmp_match_placeholder
    """.replace("s_cmp_match_placeholder", "s_cmp_lt_u32 s68, 2\ns_cbranch_scc1 L_roleO"))
    role[0] = "K"
    WK = BIG; QPR = BIG + 64; qf = BIG + 80; D2 = BIG + 96; acc = BIG + 112; yI = BIG + 116; qp = BIG + 118
    V = VA(BIGEND)
    ba = V(5); vQs = V(2); vH = V(); vPF = V(); HR = V(4, 2); HP = V(8, 2); hs = V(4, 2)
    A2 = WQ; FO = WQ + 20
    QL, WKL = 0, 1024
    a(f"""
    s_lshl_b32 s8, s79, 10
    s_lshl_b32 s13, s78, 9
    s_add_u32 s12, s8, s13
    s_add_u32 s12, s12, {QA_OFF}
    s_cmp_ge_u32 s3, 4
    s_cbranch_scc1 L_kK
    s_cmp_lt_u32 s3, 2
    s_cbranch_scc1 L_kH1
    s_cmp_lg_u32 s3, 3
    s_cbranch_scc1 L_kH0
    v_and_b32 v{t1}, 31, v{vL}
    v_lshl_add_u32 v{t1}, v{t1}, 4, s12
    v_lshrrev_b32 v{t2}, 5, v{vL}
    v_lshl_add_u32 v{t1}, v{t2}, 15, v{t1}
    """)
    for j in range(4): a(f"global_store_dwordx4 v{t1}, {vr(Dq,4)}, s[40:41] sc1\nv_add_u32 v{t1}, 0x10000, v{t1}")
    rowclear("s69", PF_OFF)
    a("L_kH0:")
    gettag()
    a(f"""
    s_cmp_lg_u32 s3, 3
    s_cbranch_scc1 L_kH1
    s_lshl_b32 s8, s69, 7
    s_add_u32 s8, s8, {FK_OFF}
    s_waitcnt vmcnt(0)
    """)
    flag_store("s8")
    a(f"""
    L_kH1:
    s_barrier
    s_branch L_kJ
    L_kK:
    """)
    srd(48, 22, SZ['wuk'])
    a(f"""
    v_xor_b32 v{t0}, v{vN}, v{vG}
    v_lshlrev_b32 v{t1}, 15, v{vG}
    v_lshl_add_u32 v{ba}, v{t0}, 4, v{t1}
    v_xor_b32 v{ba+1}, 64, v{ba}
    v_xor_b32 v{ba+2}, 128, v{ba}
    v_xor_b32 v{ba+3}, 192, v{ba}
    s_lshl_b32 s10, s78, 21
    s_lshl_b32 s11, s15, 19
    s_add_u32 s10, s10, s11
    s_lshl_b32 s11, s79, 8
    s_add_u32 s10, s10, s11
    s_lshl_b32 s11, s15, 14
    s_add_u32 s11, s11, {WKL}
    """)
    EK = opt("ek", 16)
    def wuk_ld(j):
        step = 16*8192 if (j & 3) != 3 else (1 - 48) * 8192
        a(f"s_mov_b32 m0, s11\ns_add_u32 s11, s11, 1024\nbuffer_load_dwordx4 v{ba+(j&3)}, s[48:51], s10 offen{nt('wuk')} lds\ns_add_u32 s10, s10, {hex(step & 0xffffffff)}")
    for j in range(EK): wuk_ld(j)
    gettag()
    a(f"""
    s_lshl_b32 s13, s15, 7
    s_add_u32 s8, s12, s13
    v_lshl_add_u32 v{vQs}, v{vN}, 3, s8
    v_lshl_add_u32 v{vQs}, v{vG}, 15, v{vQs}
    v_add_u32 v{vQs+1}, 0x20000, v{vQs}
    v_and_b32 v{acc}, 1, v{vG}
    v_cmp_eq_u32 vcc, 1, v{acc}
    v_cndmask_b32 v{yI}, v{msk}, v{msk+2}, vcc
    v_cndmask_b32 v{yI+1}, v{msk+1}, v{msk+3}, vcc
    v_and_b32 v{yI}, 0x3f803f80, v{yI}
    v_and_b32 v{yI+1}, 0x3f803f80, v{yI+1}
    s_lshl_b32 s8, s15, 8
    v_lshl_add_u32 v{acc+1}, v{vN}, 4, s8
    v_lshl_add_u32 v{acc+1}, v{vG}, 3, v{acc+1}
    v_lshl_add_u32 v{acc+2}, v{vG}, 4, s8
    s_lshl_b32 s8, s15, 14
    s_add_u32 s8, s8, {WKL}
    v_xor_b32 v{t0}, v{vN}, v{vG}
    v_lshl_add_u32 v{t1}, v{vN}, 8, s8
    v_lshl_add_u32 v{t0}, v{t0}, 4, v{t1}
    v_xor_b32 v{t1}, 64, v{t0}
    v_xor_b32 v{t2}, 128, v{t0}
    v_xor_b32 v{t3}, 192, v{t0}
    s_lshl_b32 s8, s79, 12
    v_lshl_add_u32 v{acc}, v{vL}, 4, s8
    s_mov_b32 s13, 0
    s_barrier
    """)
    for j in range(EK, 16): wuk_ld(j)
    qpl = [f"global_load_dwordx4 {vr(QPR+4*j,4)}, v{acc}, s[40:41] offset:{QP_OFF+1024*j} sc1" for j in range(4)]
    QAT = opt("qat", 3)
    for tau in range(4):
        if tau == QAT:
            for l in qpl: a(l)
        a(f"s_waitcnt vmcnt({12-4*tau+(4 if tau >= QAT else 0)}) lgkmcnt(8)")
        for ks in range(4): a(f"ds_read_b128 {vr(WK+16*tau+4*ks,4)}, v{[t0,t1,t2,t3][ks]} offset:{4096*tau}")
    if QAT == 4:
        for l in qpl: a(l)
    stamp("wuk")
    a("s_branch L_qpc\nL_qpp:")
    masked(qpl)
    a("L_qpc:\ns_add_u32 s13, s13, 1\ns_waitcnt vmcnt(0)")
    for j in range(4):
        a(f"v_mfma_f32_16x16x16_bf16 {vr(Dq,4)}, {vr(yI,2)}, {vr(QPR+4*j,2)}, {'0' if j == 0 else vr(Dq,4)}")
        a(f"v_cmp_ne_u64 {MK[j]}, {TAG}, {vr(QPR+4*j+2,2)}")
    or_masks(4)
    spin_tail("L_qpp", "L_qpo")
    stamp("qp")
    a(f"""
    v_cvt_pk_bf16_f32 v{Dq}, v{Dq}, v{Dq+1}
    v_cvt_pk_bf16_f32 v{Dq+1}, v{Dq+2}, v{Dq+3}
    s_mov_b32 exec_hi, 0
    ds_write_b64 v{acc+1}, {vr(Dq,2)}
    s_mov_b32 exec_hi, -1
    s_mov_b32 s13, {hex(f2u(128**-0.5 * math.log2(math.e)))}
    s_waitcnt lgkmcnt(0)
    """)
    for ks in range(4): a(f"ds_read_b128 {vr(qf+4*ks,4)}, v{acc+2} offset:{64*ks}")
    for ks in range(4):
        a(f"s_waitcnt lgkmcnt({3-ks})")
        for tau in range(4):
            a(f"v_mfma_f32_16x16x32_bf16 {vr(D2+4*tau,4)}, {vr(qf+4*ks,4)}, {vr(WK+16*tau+4*ks,4)}, {'0' if ks == 0 else vr(D2+4*tau,4)}")
    for tau in range(4): a(f"v_mul_f32 v{D2+4*tau}, s13, v{D2+4*tau}")
    a(f"""
    v_cvt_pk_bf16_f32 v{qp}, v{D2}, v{D2+4}
    v_cvt_pk_bf16_f32 v{qp+1}, v{D2+8}, v{D2+12}
    global_store_dwordx2 v{vQs}, {vr(qp,2)}, s[40:41] sc1
    global_store_dwordx2 v{vQs+1}, {vr(qp,2)}, s[40:41] sc1
    """)
    stamp("qa")
    if o.get("qack"): a("s_waitcnt vmcnt(0)")
    a("L_kJ:")
    srd(60, 30, SZ['w1']); srd(52, 32, SZ['w2'])
    a(f"s_and_b32 s13, s3, 1\ns_lshl_b32 s13, s13, 3")
    swz1280(ba, 5, "s13")
    a(f"""
    s_mul_i32 s42, s69, {32*1280}
    s_mul_i32 s43, s3, 5120
    s_add_u32 s42, s42, s43
    s_add_u32 s43, s43, {WKL}
    v_mul_u32_u24 v{vWo}, {20*3456}, v{vG}
    v_lshl_add_u32 v{vWo}, v{vN}, 4, v{vWo}
    s_and_b32 s9, s5, 7
    s_lshl_b32 s9, s9, 1
    s_add_u32 s9, s9, s3
    s_mul_i32 s14, s4, {80*3456}
    s_lshl_b32 s8, s9, 8
    s_add_u32 s14, s14, s8
    s_lshl_b32 s9, s9, 3
    s_add_u32 s9, s9, s4
    s_lshl_b32 s9, s9, 9
    s_add_u32 s9, s9, {HP_OFF}
    v_lshl_add_u32 v{vH}, v{vL}, 4, s9
    s_barrier
    s_cmp_ge_u32 s69, 56
    s_cbranch_scc1 L_fin
    s_cmp_ge_u32 s3, 2
    s_cbranch_scc1 L_now1
    """)
    for u in range(20):
        a(f"buffer_load_dwordx4 {vr(WQ+4*u,4)}, v{vWo}, s[60:63], s14 offen{nt('w1')}\ns_add_u32 s14, s14, 3456")
    a("L_now1:\ns_barrier\ns_cmp_ge_u32 s3, 2\ns_cbranch_scc1 L_now1b\ns_setprio 3")
    gemv20(0, vH, 0)
    stamp("hp")
    a("s_setprio 0\ns_branch L_w2d\nL_now1b:\ns_mov_b32 s8, s3\nL_w2l:")
    for j in range(5):
        a(f"s_mov_b32 m0, s43\ns_add_u32 s43, s43, 1024\nbuffer_load_dwordx4 v{ba+j}, s[52:55], s42 offen{nt('w2')} lds")
    a(f"""
    s_cmp_ge_u32 s8, 4
    s_cbranch_scc1 L_w2d
    s_mov_b32 s8, 4
    s_sub_u32 s42, s42, 10240
    s_sub_u32 s43, s43, 15360
    s_branch L_w2l
    L_w2d:
    """)
    tr1280(ba, WKL)
    rowmasks()
    a(f"""
    s_lshr_b32 s8, s69, 2
    s_lshl_b32 s8, s8, 12
    s_and_b32 s9, s69, 3
    s_lshl_b32 s9, s9, 6
    s_add_u32 s8, s8, s9
    s_add_u32 s8, s8, {HP_OFF}
    v_lshl_add_u32 v{vH}, v{vE}, 9, s8
    v_and_b32 v{t1}, 1, v{vG}
    v_lshl_add_u32 v{vH}, v{t1}, 8, v{vH}
    v_lshrrev_b32 v{t1}, 1, v{vG}
    v_lshl_add_u32 v{vH}, v{t1}, 4, v{vH}
    v_and_b32 v{t1}, 1, v{vS}
    v_lshl_add_u32 v{vH}, v{t1}, 5, v{vH}
    s_mul_i32 s8, s69, {ROWB}
    s_mul_i32 s9, s3, 384
    s_add_u32 s8, s8, s9
    s_add_u32 s8, s8, {PF_OFF}
    v_lshl_add_u32 v{vPF}, v{vL}, 2, s8
    s_waitcnt vmcnt(0)
    s_barrier
    s_cmp_ge_u32 s69, 54
    s_cbranch_scc1 L_fin
    global_load_dwordx4 {vr(HR,4)}, v{vH}, s[40:41] sc1
    """)
    for T in range(5):
        for aa in range(2): a(f"ds_read_b64_tr_b16 {vr(A2+4*T+2*aa,2)}, v{ba+T} offset:{aa*20480}")
    a(f"""
    s_mov_b32 s13, 0
    s_branch L_hpc
    L_hpp:
    s_mov_b64 exec, vcc
    global_load_dwordx4 {vr(HR,4)}, v{vH}, s[40:41] sc1
    s_mov_b64 exec, -1
    L_hpc:
    s_add_u32 s13, s13, 1
    s_waitcnt vmcnt(0)
    """)
    tagcheck(HR+2)
    spin_tail("L_hpp", "L_hpo")
    a(f"""
    v_lshlrev_b32 v{HP}, 16, v{HR}
    v_and_b32 v{HP+1}, 0xffff0000, v{HR}
    v_lshlrev_b32 v{HP+2}, 16, v{HR+1}
    v_and_b32 v{HP+3}, 0xffff0000, v{HR+1}
    """)
    for d in ("quad_perm:[1,0,3,2]", "quad_perm:[2,3,0,1]", "row_half_mirror"):
        for r in range(4): a(f"v_add_f32_dpp v{HP+r}, v{HP+r}, v{HP+r} {d} {DPPM}")
    for r in range(4): a(f"v_mul_f32 v{HP+4+r}, {NLOG2E}, v{HP+r}")
    for r in range(4): a(f"v_exp_f32 v{HP+4+r}, v{HP+4+r}")
    for r in range(4): a(f"v_add_f32 v{HP+4+r}, 1.0, v{HP+4+r}")
    for r in range(4): a(f"v_rcp_f32 v{HP+4+r}, v{HP+4+r}")
    for r in range(4): a(f"v_mul_f32 v{HP+r}, v{HP+r}, v{HP+4+r}")
    a(f"""
    v_cvt_pk_bf16_f32 v{hs}, v{HP}, v{HP+1}
    v_cvt_pk_bf16_f32 v{hs+1}, v{HP+2}, v{HP+3}
    v_mov_b32 v{hs+2}, v{hs}
    v_mov_b32 v{hs+3}, v{hs+1}
    v_mov_b32_dpp v{hs}, v{hs} row_ror:8 row_mask:0xf bank_mask:0xc
    v_mov_b32_dpp v{hs+1}, v{hs+1} row_ror:8 row_mask:0xf bank_mask:0xc
    v_mov_b32_dpp v{hs+2}, v{hs+2} row_ror:8 row_mask:0xf bank_mask:0x3
    v_mov_b32_dpp v{hs+3}, v{hs+3} row_ror:8 row_mask:0xf bank_mask:0x3
    s_waitcnt lgkmcnt(0)
    """)
    for T in range(5): a(f"v_mfma_f32_16x16x32_bf16 {vr(FO+4*T,4)}, {vr(hs,4)}, {vr(A2+4*T,4)}, 0")
    rowstore(FO, vPF)
    stamp("pf")
    a("s_branch L_fin")
    k_v = V.n
    role[0] = "O"
    V = VA(BIG)
    AO = V(40, 2); AUV = V(32, 2); YW = V(8, 2); PBR = V(8, 2); OUT = V(20, 2); D2 = V(16, 2)
    acc = V(4, 2); ml = V(4, 2); qp = V(8, 2); cf = V(8, 2)
    oW = V(5); ones = V(2, 2)
    vML, vPB, vCW, vCR, vCT, vPC, vMS, vFA, vSc, vM2 = [V() for _ in range(10)]; vUo = V(2)
    MLS, SCL, CP, CC, WUVL, WOL = 0, 1024, 2048, 4096, 8192, 40960
    a(f"""
    L_roleO:
    s_cmp_lg_u32 s3, 2
    s_cbranch_scc1 L_o1
    """)
    rowclear("s2", PC_OFF)
    a("L_o1:")
    srd(52, 24, SZ['wuv']); srd(56, 26, SZ['wo'])
    a(f"""
    s_lshr_b32 s13, s7, 1             ; ch
    s_and_b32 s10, s3, 1
    s_lshl_b32 s10, s10, 2
    v_xor_b32 v{t0}, s10, v{vE}
    v_and_b32 v{t1}, 4, v{vS}
    v_and_b32 v{t2}, 1, v{vS}
    v_lshl_add_u32 v{t1}, v{t2}, 1, v{t1}
    v_bfe_u32 v{t2}, v{vS}, 1, 1
    v_add_u32 v{t1}, v{t1}, v{t2}
    v_lshlrev_b32 v{vUo}, 13, v{t1}
    v_lshl_add_u32 v{vUo}, v{t0}, 4, v{vUo}
    v_xor_b32 v{vUo+1}, 32, v{vUo}
    s_lshl_b32 s10, s13, 21
    s_lshl_b32 s11, s3, 18
    s_add_u32 s10, s10, s11
    s_lshl_b32 s11, s6, 8
    s_add_u32 s10, s10, s11
    s_and_b32 s11, s7, 1
    s_lshl_b32 s11, s11, 7
    s_add_u32 s10, s10, s11
    s_lshl_b32 s11, s3, 12
    s_add_u32 s11, s11, {WUVL}
    s_cmp_lt_u32 s3, 2
    s_cbranch_scc1 L_o2
    s_barrier
    L_o2:
    """)
    EO = opt("eo", 0)
    def wuv_load(j):
        a(f"s_mov_b32 m0, s11\ns_add_u32 s11, s11, 1024\nbuffer_load_dwordx4 v{vUo+(j>>1)}, s[52:55], s10 offen{nt('wuv')} lds\ns_add_u32 s10, s10, 65536")
    if o.get("opk"):
        a(f"""
        s_cmp_lt_u32 s3, 4
        s_cbranch_scc1 L_nopk
        v_lshrrev_b32 v{t0}, 2, v{vL}
        v_and_b32 v{t1}, 1, v{t0}
        v_lshl_add_u32 v{t1}, v{vS}, 2, v{t1}
        v_and_b32 v{t2}, 3, v{vL}
        v_lshlrev_b32 v{t2}, 6, v{t2}
        v_lshl_add_u32 v{t1}, v{t1}, 13, v{t2}
        s_lshl_b32 s12, s7, 20
        s_lshl_b32 s8, s15, 18
        s_add_u32 s12, s12, s8
        s_lshl_b32 s8, s6, 8
        s_add_u32 s12, s12, s8
        s_add_u32 s12, s12, 16384
        v_add_u32 v{t1}, s12, v{t1}
        global_load_dword v254, v{t1}, s[22:23]
        L_nopk:
        """)
    for j in range(EO): wuv_load(j)
    a("s_cmp_lt_u32 s3, 2\ns_cbranch_scc1 L_o3")
    gettag()
    a("L_o3:")
    if o.get("bback"): a("s_cmp_ge_u32 s3, 2\ns_cbranch_scc1 L_o2b\ns_waitcnt vmcnt(0)\nL_o2b:")
    a(f"s_and_b32 s8, s3, 1\ns_lshl_b32 s8, s8, 3")
    swz1280(oW, 5, "s8")
    a(f"""
    s_and_b32 s12, s7, 1
    s_lshl_b32 s8, s6, 1
    s_add_u32 s12, s12, s8
    s_mul_i32 s12, s12, {64*1280}
    s_mul_i32 s14, s13, 40960
    s_mul_i32 s9, s3, 5120
    s_add_u32 s14, s14, s9
    s_add_u32 s12, s12, s14
    s_add_u32 s14, s14, {WOL}
    s_mul_i32 s9, s13, 81920
    s_sub_u32 s9, 40960, s9
    s_barrier
    """)
    OPF = opt("opf", 0)
    if OPF:
        a(f"""
        s_cmp_ge_u32 s3, {OPF}
        s_cbranch_scc1 L_nopf
        s_lshl_b32 s8, s6, 17
        s_lshl_b32 s42, s7, 15
        s_add_u32 s8, s8, s42
        s_and_b32 s42, s3, 3
        s_lshl_b32 s42, s42, 13
        s_add_u32 s8, s8, s42
        s_lshr_b32 s42, s3, 2
        s_lshl_b32 s42, s42, 12
        s_sub_u32 s8, s8, s42
        s_add_u32 s8, s8, 4096
        v_lshl_add_u32 v{t0}, v{vL}, 6, s8
        global_load_dword v254, v{t0}, s[18:19]
        L_nopf:
        """)
    TH = opt("th", 0); THN = opt("thn", 9)
    def wo_load(j):
        a(f"s_mov_b32 m0, s14\ns_add_u32 s14, s14, 1024\nbuffer_load_dwordx4 v{oW+j}, s[56:59], s12 offen{nt('wo')} lds")
    cold = [lambda j=j: wuv_load(j) for j in range(EO, 4)] + [lambda j=j: wo_load(j) for j in range(5)]
    for n_, f in enumerate(cold):
        f()
        if TH and n_ < THN: a(f"s_waitcnt vmcnt({TH-1})")
    a(f"s_add_u32 s12, s12, s9\ns_add_u32 s14, s14, s9\ns_sub_u32 s14, s14, 5120")
    for j in range(5): wo_load(j)
    a(f"""
    v_mov_b32 v{ones}, 0x3f803f80
    v_mov_b32 v{ones+1}, 0x3f803f80
    s_lshr_b32 s8, s6, 4
    s_lshl_b32 s8, s8, 14
    s_and_b32 s42, s6, 15
    s_lshl_b32 s42, s42, 4
    s_add_u32 s8, s8, s42
    s_add_u32 s8, s8, {ML_OFF}
    v_and_b32 v{t0}, 3, v{vL}
    v_lshl_add_u32 v{t0}, v{vS}, 2, v{t0}
    v_lshl_add_u32 v{vML}, v{t0}, 9, s8
    s_lshr_b32 s42, s3, 2             ; hh
    s_lshl_b32 s43, s42, 3
    v_lshlrev_b32 v{vM2}, 2, v{vL}
    v_xor_b32 v{vM2}, s43, v{vM2}
    s_lshl_b32 s8, s6, 15
    s_lshl_b32 s43, s13, 9
    s_add_u32 s8, s8, s43
    s_lshl_b32 s43, s15, 7
    s_add_u32 s8, s8, s43
    s_lshl_b32 s43, s42, 11
    s_add_u32 s8, s8, s43
    s_add_u32 s8, s8, {PB_OFF}
    v_lshl_add_u32 v{vPB}, v{vS}, 12, s8
    v_lshl_add_u32 v{vPB}, v{vE}, 4, v{vPB}
    s_lshl_b32 s8, s3, 8
    s_add_u32 s8, s8, {CC}
    v_lshrrev_b32 v{t2}, 1, v{vG}
    v_lshl_add_u32 v{vCW}, v{t2}, 7, s8
    v_lshl_add_u32 v{vCW}, v{vE}, 4, v{vCW}
    v_lshlrev_b32 v{t0}, 9, v{t2}             ; 4*(g>>1) rows
    v_and_b32 v{t2}, 1, v{vG}
    v_lshl_add_u32 v{vCW}, v{t2}, 3, v{vCW}
    v_lshl_add_u32 v{t0}, v{t2}, 7, v{t0}     ; + (g&1) rows
    v_and_b32 v{t2}, 1, v{vL}
    v_lshl_add_u32 v{vCR}, v{t2}, 7, s8
    v_lshl_add_u32 v{vCR}, v{vG}, 4, v{vCR}
    s_lshl_b32 s8, s3, 6
    v_lshl_add_u32 v{vCT}, v{t2}, 5, s8
    v_lshl_add_u32 v{vCT}, v{vG}, 3, v{vCT}
    s_mul_i32 s8, s2, {ROWB}
    s_mul_i32 s42, s3, 384
    s_add_u32 s8, s8, s42
    s_add_u32 s8, s8, {PC_OFF}
    v_lshl_add_u32 v{vPC}, v{vL}, 2, s8
    v_lshlrev_b32 v{vMS}, 3, v{vL}
    v_bfe_u32 v{acc}, v{vL}, 2, 2             ; r
    v_lshl_add_u32 v{t0}, v{acc}, 11, v{t0}
    v_and_b32 v{t2}, 3, v{vL}
    v_lshl_add_u32 v{t0}, v{t2}, 3, v{t0}
    s_lshl_b32 s8, s15, 13
    s_add_u32 s8, s8, {WUVL}
    v_add_u32 v{t0}, s8, v{t0}
    """)
    for Td in range(4):
        a(f"v_xor_b32 v{t2}, {Td}, v{acc}\nv_lshl_add_u32 v{cf+Td}, v{t2}, 5, v{t0}")
    tr1280(oW, WOL)
    rowmasks()
    a(f"""
    s_lshl_b32 s8, s2, 7
    s_add_u32 s8, s8, {FO_OFF}
    s_waitcnt vmcnt(0) lgkmcnt(0)
    s_barrier
    """)
    stamp("wo", True)
    a(f"""
    s_cmp_lg_u32 s3, 0
    s_cbranch_scc1 L_nofa0
    global_load_dwordx4 {vr(ml,4)}, v{vML}, s[40:41] sc1
    L_nofa0:
    """)
    for ks in range(2):
        for Td in range(4):
            for aa in range(2):
                a(f"ds_read_b64_tr_b16 {vr(AUV+16*ks+4*Td+2*aa,2)}, v{cf+Td} offset:{(8*ks+2*aa)*128}")
        a("s_waitcnt lgkmcnt(5)")
    for T in range(5):
        for ks in range(2):
            for aa in range(2):
                a(f"ds_read_b64_tr_b16 {vr(AO+8*T+4*ks+2*aa,2)}, v{oW+T} offset:{(2*ks+aa)*20480}")
        if T in (1, 3): a("s_waitcnt lgkmcnt(5)")
    a(f"""
    v_mov_b32 v{vFA}, s8
    s_cmp_eq_u32 s3, 0
    s_cselect_b32 s42, 1, 0
    s_mov_b32 s43, 0
    s_cselect_b64 s[44:45], -1, 0
    s_cbranch_scc0 L_gow
    s_mov_b32 s13, 0
    s_branch L_goc
    L_gop:
    s_mov_b64 exec, vcc
    global_load_dwordx4 {vr(ml,4)}, v{vML}, s[40:41] sc1
    s_mov_b64 exec, -1
    L_goc:
    s_add_u32 s13, s13, 1
    s_waitcnt vmcnt(0)
    """)
    tagcheck(ml+2)
    spin_tail("L_gop", "L_goo")
    a(f"""
    ds_write_b32 v{vM2}, v{ml} offset:{MLS}
    L_gow:
    s_waitcnt lgkmcnt(0)
    s_barrier
    """)
    stamp("go")
    FO1 = 0 if o.get("folate") else 1
    pbl = [f"global_load_dwordx4 {vr(PBR+4*u,4)}, v{vPB}, s[40:41] offset:{1024*u} sc1" for u in range(2)]
    lrl = f"global_load_dwordx4 {vr(ml,4)}, v{vML}, s[40:41] offset:256 sc1"
    fost = f"s_mov_b64 exec, s[42:43]\nglobal_store_dwordx2 v{vFA}, {vr(pub+2,2)}, s[40:41] sc1\ns_mov_b64 exec, -1"
    for l in pbl: a(l)
    a(f"ds_read_b32 v{t3}, v{vM2} offset:{MLS}")
    a(f"s_mov_b64 exec, s[44:45]\n{lrl}")
    if FO1: a(fost)
    else: a("s_mov_b64 exec, -1")
    a("s_waitcnt lgkmcnt(0)")
    red32("v_max_f32", t0, t3, t1)
    a(f"""
    v_sub_f32 v{t3}, v{t3}, v{t0}
    v_exp_f32 v{t3}, v{t3}
    s_mov_b32 s13, 0
    v_cvt_pk_bf16_f32 v{t2}, v{t3}, v{t3}
    """)
    for u in range(2):
        for r in range(4):
            a(f"v_and_b32_dpp v{YW+4*u+r}, v{t2}, v{msk+r} quad_perm:[{u},{u},{u},{u}] {DPPM}")
    a(f"s_waitcnt vmcnt({1+FO1})\ns_branch L_pbc\nL_pbp:")
    masked(pbl)
    a("s_waitcnt vmcnt(0)\nL_pbc:\ns_add_u32 s13, s13, 1")
    for u in range(2):
        a(f"v_mfma_f32_16x16x32_bf16 {vr(Dq,4)}, {vr(YW+4*u,4)}, {vr(PBR+4*u,4)}, {'0' if u == 0 else vr(Dq,4)}")
        sent_mask(u, PBR+4*u, t2)
    or_masks(2)
    spin_tail("L_pbp", "L_pbo")
    stamp("pb")
    if not FO1: a(fost)
    a(f"""
    v_cvt_pk_bf16_f32 v{qp}, v{Dq}, v{Dq+1}
    v_cvt_pk_bf16_f32 v{qp+1}, v{Dq+2}, v{Dq+3}
    """)
    setexec(0xFF00FF0000FF00FF)
    a(f"ds_write_b64 v{vCW}, {vr(qp,2)}")
    setexec(-1)
    a(f"""
    s_waitcnt lgkmcnt(0)
    ds_read_b128 {vr(cf,4)}, v{vCR}
    ds_read_b128 {vr(cf+4,4)}, v{vCR} offset:64
    """)
    for ks in range(2):
        a(f"s_waitcnt lgkmcnt({1-ks})")
        for Td in range(4):
            a(f"v_mfma_f32_16x16x32_bf16 {vr(D2+4*Td,4)}, {vr(AUV+16*ks+4*Td,4)}, {vr(cf+4*ks,4)}, {'0' if ks == 0 else vr(D2+4*Td,4)}")
    setexec(0x0003000300030003)
    for Td in range(4):
        a(f"v_cvt_pk_bf16_f32 v{qp+2*Td}, v{D2+4*Td}, v{D2+4*Td+1}\nv_cvt_pk_bf16_f32 v{qp+2*Td+1}, v{D2+4*Td+2}, v{D2+4*Td+3}")
        a(f"ds_write_b64 v{vCT}, {vr(qp+2*Td,2)} offset:{CP+512*Td}")
    setexec(-1)
    a(f"""
    v_mov_b32 v{t2}, {SCL}
    s_cmp_lg_u32 s3, 0
    s_cbranch_scc1 L_nolr
    s_mov_b32 s13, 0
    s_waitcnt vmcnt(1)
    s_branch L_lrc
    L_lrp:
    s_mov_b64 exec, vcc
    {lrl}
    s_mov_b64 exec, -1
    s_waitcnt vmcnt(0)
    L_lrc:
    s_add_u32 s13, s13, 1
    """)
    tagcheck(ml+2)
    spin_tail("L_lrp", "L_lro")
    a(f"v_mul_f32 v{t3}, v{t3}, v{ml}")
    red32("v_add_f32", t0, t3, t1)
    a(f"v_rcp_f32 v{t0}, v{t0}\ns_nop 0\nds_write_b32 v{t2}, v{t0}\nL_nolr:")
    a("s_waitcnt lgkmcnt(0)\ns_barrier")
    stamp("cp", True)
    for Td in range(4): a(f"ds_read_b64_tr_b16 {vr(cf+2*Td,2)}, v{vMS} offset:{CP+512*Td}")
    a(f"ds_read_b32 v{vSc}, v{t2}")
    for Td in range(4):
        a(f"s_waitcnt lgkmcnt({4-Td})")
        a(f"v_mfma_f32_16x16x16_bf16 {vr(D2+4*Td,4)}, {vr(cf+2*Td,2)}, {vr(ones,2)}, 0")
    for i in range(8): a(f"v_cvt_pk_bf16_f32 v{qp+i}, v{D2+2*i}, v{D2+2*i+1}")
    for ks in range(2):
        for T in range(5):
            a(f"v_mfma_f32_16x16x32_bf16 {vr(OUT+4*T,4)}, {vr(qp+4*ks,4)}, {vr(AO+8*T+4*ks,4)}, {'0' if ks == 0 else vr(OUT+4*T,4)}")
    R = OUT
    a(f"""
    s_waitcnt lgkmcnt(0)
    v_cndmask_b32 v{R}, v{R}, v{R+4}, s[26:27]
    v_cndmask_b32 v{R+8}, v{R+8}, v{R+12}, s[26:27]
    v_cndmask_b32 v{R}, v{R}, v{R+8}, s[28:29]
    v_mul_f32 v{R+16}, v{vSc}, v{R+16}
    v_mul_f32 v{R}, v{vSc}, v{R}
    global_store_dword v{vPC}, v{R}, s[40:41] sc1
    s_mov_b64 exec, 0xffff
    global_store_dword v{vPC}, v{R+16}, s[40:41] offset:256 sc1
    s_mov_b64 exec, -1
    """)
    stamp("pc")
    a("s_branch L_fin")
    po_v = V.n
    role[0] = "A"
    CK = BIG; CV = BIG + 64; QB = BIG + 128
    V = VA(BIG + 192)
    MXR = QB; U = QB + 8; DP = QB + 24; DL = QB + 40; on4 = QB + 44
    DS = Dq
    ba = V(8); vPBs = V(4); vMLs = V(); vq = V(); vqw = V(2); vqr = V(2); vPr = V(); vPw = V(); vMw = V(); vMr = V()
    QP = V(8, 2)
    ml = pub
    CKV, QAS, PL, MX = 0, 131072, 147456, 151552
    EA = opt("ea", 4); CLR = opt("clr", 1)
    def pbclear():
        a(f"""
        s_lshl_b32 s12, s78, 4
        s_lshl_b32 s13, s3, 1
        s_add_u32 s12, s12, s13
        s_lshl_b32 s12, s12, 15
        s_lshl_b32 s13, s79, 10
        s_add_u32 s12, s12, s13
        s_add_u32 s12, s12, {PB_OFF}
        v_lshl_add_u32 v{t0}, v{vL}, 4, s12
        v_add_u32 v{t1}, 0x8000, v{t0}
        global_store_dwordx4 v{t0}, {vr(Dq,4)}, s[40:41] sc1
        global_store_dwordx4 v{t1}, {vr(Dq,4)}, s[40:41] sc1
        """)
    a("L_roleA:")
    if CLR == 0: pbclear()
    a(f"""
    s_lshl_b32 s8, s79, 17
    s_lshl_b32 s9, s3, 14
    s_add_u32 s8, s8, s9
    s_lshl_b32 s10, s78, 13                  ; rotation
    v_lshlrev_b32 v{t3}, 4, v{vL}
    """)
    for k in range(8): a(f"v_xor_b32 v{ba+k}, {32*k}, v{t3}")
    srd(48, 18, SZ['ckv'])
    def ckv_ld(jj):
        if jj % 4 == 0: a("s_add_u32 s11, s9, s10\ns_add_u32 s14, s8, s10\ns_mov_b32 m0, s11\ns_add_u32 s10, s10, 4096\ns_and_b32 s10, s10, 0x3fff")
        a(f"buffer_load_dwordx4 v{ba+(jj&7)}, s[48:51], s14 offen offset:{1024*(jj&3)}{nt('ckv')} lds")
    if o.get("apf"):
        a(f"""
        v_lshrrev_b32 v{t0}, 2, v{vL}
        v_and_b32 v{t1}, 1, v{t0}
        v_lshl_add_u32 v{t1}, v{vS}, 2, v{t1}
        v_and_b32 v{t2}, 3, v{vL}
        v_lshlrev_b32 v{t2}, 6, v{t2}
        v_lshl_add_u32 v{t1}, v{t1}, 13, v{t2}
        s_lshl_b32 s12, s78, 21
        s_lshl_b32 s13, s3, 18
        s_add_u32 s12, s12, s13
        s_lshl_b32 s13, s79, 8
        s_add_u32 s12, s12, s13
        s_add_u32 s12, s12, 16384
        v_add_u32 v{t1}, s12, v{t1}
        global_load_dword v254, v{t1}, s[22:23]
        s_barrier
        """)
    ATH = opt("ath", 0); ATN = opt("atn", 4)
    for jj in range(8):
        ckv_ld(jj)
        if ATH and jj < ATN: a(f"s_waitcnt vmcnt({ATH-1})")
    gettag()
    if CLR == 1: pbclear()
    QE = o.get("qe")
    if QE:
        a(f"""
        s_lshl_b32 s12, s78, 5
        s_lshr_b32 s13, s3, 2
        s_lshl_b32 s13, s13, 4
        s_add_u32 s12, s12, s13
        s_lshl_b32 s13, s15, 1
        s_add_u32 s12, s12, s13
        s_lshl_b32 s12, s12, 7
        s_add_u32 s12, s12, {FK_OFF}
        v_and_b32 v{t0}, 1, v{vL}
        v_lshl_add_u32 v{vWo}, v{t0}, 7, s12
        v_bfe_u32 v{t0}, v{vL}, 1, 1
        v_lshl_add_u32 v{vWo}, v{t0}, 10, v{vWo}
        global_load_dwordx2 {vr(QP,2)}, v{vWo}, s[40:41] sc1
        """)
    if not o.get("nocb"): a("s_barrier")
    for jj in range(8, 16): ckv_ld(jj)
    if CLR == 2: pbclear()
    a(f"""
    v_lshl_add_u32 v{t0}, v{vN}, 10, s9
    v_lshlrev_b32 v{t1}, 1, v{vE}
    v_xor_b32 v{t1}, v{t1}, v{vG}             ; g ^ 2(i&7)
    """)
    for q in range(4):
        a(f"v_xor_b32 v{t2}, {4*q}, v{t1}\nv_lshl_add_u32 v{ba+q}, v{t2}, 4, v{t0}")
    a(f"""
    v_xor_b32 v{t0}, v{vN}, v{vG}
    v_lshlrev_b32 v{t1}, 8, v{vG}
    v_lshl_add_u32 v{vqr}, v{t0}, 4, v{t1}
    v_add_u32 v{vqr}, {QAS}, v{vqr}
    v_xor_b32 v{vqr+1}, 64, v{vqr}
    s_lshl_b32 s12, s78, 19
    s_lshl_b32 s13, s79, 10
    s_add_u32 s12, s12, s13
    s_lshl_b32 s13, s3, 7
    s_add_u32 s12, s12, s13
    s_add_u32 s12, s12, {PB_OFF}
    v_lshl_add_u32 v{vPBs}, v{vG}, 17, s12
    v_lshl_add_u32 v{vPBs}, v{vN}, 3, v{vPBs}
    v_add_u32 v{vPBs+1}, 0x8000, v{vPBs}
    v_add_u32 v{vPBs+2}, 0x10000, v{vPBs}
    v_add_u32 v{vPBs+3}, 0x18000, v{vPBs}
    v_lshlrev_b32 v{vPr}, 4, v{vL}
    v_add_u32 v{vPr}, {PL}, v{vPr}
    s_lshr_b32 s8, s3, 1
    s_lshl_b32 s8, s8, 10
    s_and_b32 s13, s3, 1
    s_lshl_b32 s13, s13, 3
    s_add_u32 s8, s8, s13
    v_add_u32 v{vPw}, s8, v{vPr}
    v_lshlrev_b32 v{vMr}, 5, v{vN}
    v_add_u32 v{vMr}, {MX}, v{vMr}
    s_lshl_b32 s8, s3, 2
    v_add_u32 v{vMw}, s8, v{vMr}
    s_lshl_b32 s10, s78, 14
    s_lshl_b32 s8, s79, 9
    s_add_u32 s10, s10, s8
    s_add_u32 s10, s10, {ML_OFF}
    v_lshl_add_u32 v{vMLs}, v{vN}, 4, s10
    s_lshl_b32 s11, s78, 14
    s_lshl_b32 s12, s3, 11
    s_add_u32 s11, s11, s12
    s_lshl_b32 s12, s4, 15
    s_add_u32 s11, s11, s12
    s_add_u32 s11, s11, {QA_OFF}
    v_lshl_add_u32 v{vq}, v{vL}, 4, s11
    s_lshl_b32 s8, s3, 1
    v_xor_b32 v{t0}, s8, v{vE}
    v_lshlrev_b32 v{t1}, 8, v{vL}
    v_lshl_add_u32 v{vqw}, v{t0}, 4, v{t1}
    v_add_u32 v{vqw}, {QAS}, v{vqw}
    v_xor_b32 v{vqw+1}, 16, v{vqw}
    s_cmp_eq_u32 s3, 3
    s_cselect_b32 s42, 0xffff, 0
    s_mov_b32 s43, 0
    """)
    qal = [f"global_load_dwordx4 {vr(QP+4*j,4)}, v{vq}, s[40:41] offset:{1024*j} sc1" for j in range(2)]
    if QE:
        a(f"""
        s_mov_b32 s13, 0
        s_waitcnt vmcnt({opt("qew", 4)})
        s_branch L_fkc
        L_fkp:
        global_load_dwordx2 {vr(QP,2)}, v{vWo}, s[40:41] sc1
        s_waitcnt vmcnt(0)
        L_fkc:
        s_add_u32 s13, s13, 1
        """)
        tagcheck(QP)
        spin_tail("L_fkp", "L_fko")
        for l in qal: a(l)
        a("s_waitcnt vmcnt(2) lgkmcnt(0)")
    else:
        a(f"""
        s_cmp_lg_u32 s3, 1
        s_cbranch_scc1 L_fko
        s_lshl_b32 s11, s78, 12
        s_add_u32 s11, s11, {FK_OFF}
        v_and_b32 v{t0}, 31, v{vL}
        v_lshl_add_u32 v{t3}, v{t0}, 7, s11
        """)
        flag_wait(t3, QP, "L_fk")
        a("s_waitcnt vmcnt(0) lgkmcnt(0)")
    stamp("ckvl", True)
    for t in range(16):
        a(f"ds_read_b128 {vr(CK+4*t,4)}, v{ba+(t&3)} offset:{256*(t>>2)}")
        if t == 11: a("s_waitcnt lgkmcnt(6)")
    a(f"""
    v_lshrrev_b32 v{t0}, 2, v{vL}             ; 4g+r
    v_and_b32 v{t1}, 7, v{t0}                 ; key&7
    v_lshlrev_b32 v{t0}, 10, v{t0}
    v_and_b32 v{t2}, 3, v{vL}
    v_lshl_add_u32 v{t0}, v{t2}, 3, v{t0}
    s_lshr_b32 s8, s3, 1
    s_lshl_b32 s8, s8, 8
    v_add_u32 v{t0}, s8, v{t0}
    s_and_b32 s8, s3, 1
    s_lshl_b32 s8, s8, 2
    v_xor_b32 v{t1}, s8, v{t1}
    """)
    for T in range(4):
        a(f"v_xor_b32 v{t2}, {T}, v{t1}\nv_lshl_add_u32 v{ba+T}, v{t2}, 5, v{t0}\nv_add_u32 v{ba+4+T}, 0x10000, v{ba+T}")
    a("s_barrier")
    stamp("ckv")
    if not QE:
        for l in qal: a(l)
    for T in range(4):
        a("s_waitcnt lgkmcnt(4)")
        for t in range(4):
            for aa in range(2):
                off = (32*t + 16*aa) * 1024
                a(f"ds_read_b64_tr_b16 {vr(CV+16*T+4*t+2*aa,2)}, v{ba+T+4*(off>>16)} offset:{off & 0xffff}")
    a("s_mov_b32 s13, 0\ns_branch L_qac\nL_qap:")
    masked(qal)
    a("L_qac:\ns_add_u32 s13, s13, 1")
    for j in range(2):
        a(f"s_waitcnt vmcnt({1-j})")
        a(f"ds_write_b128 v{vqw+j}, {vr(QP+4*j,4)}")
        sent_mask(j, QP+4*j, t2)
    or_masks(2)
    spin_tail("L_qap", "L_qao")
    stamp("qap")
    a("s_waitcnt lgkmcnt(0)\ns_barrier")
    def qread(t): a(f"ds_read_b128 {vr(QB+4*t,4)}, v{vqr+(t&1)} offset:{1024*t}")
    PRE = 12
    for t in range(PRE): qread(t)
    for t in range(16):
        issued = min(16, PRE + t)
        a(f"s_waitcnt lgkmcnt({issued - t - 1})")
        a(f"v_mfma_f32_16x16x32_bf16 {vr(DS,4)}, {vr(CK+4*t,4)}, {vr(QB+4*t,4)}, {'0' if t == 0 else vr(DS,4)}")
        if t + PRE < 16: qread(t + PRE)
    stamp("scm")
    a(f"""
    v_max3_f32 v{t0}, v{DS}, v{DS+1}, v{DS+2}
    v_max_f32 v{t0}, v{t0}, v{DS+3}
    """)
    xrow("v_max_f32", t0, t1)
    a(f"""
    s_mov_b64 exec, 0xffff
    ds_write_b32 v{vMw}, v{t0}
    s_mov_b64 exec, -1
    v_mov_b32 v{on4}, 0x3f803f80
    v_mov_b32 v{on4+1}, 0x3f803f80
    v_mov_b32 v{on4+2}, 0x3f803f80
    v_mov_b32 v{on4+3}, 0x3f803f80
    s_waitcnt lgkmcnt(0)
    s_barrier
    ds_read_b128 {vr(MXR,4)}, v{vMr}
    ds_read_b128 {vr(MXR+4,4)}, v{vMr} offset:16
    """)
    a(f"""
    s_waitcnt lgkmcnt(1)
    v_max3_f32 v{t0}, v{MXR}, v{MXR+1}, v{MXR+2}
    s_waitcnt lgkmcnt(0)
    v_max3_f32 v{t1}, v{MXR+3}, v{MXR+4}, v{MXR+5}
    v_max3_f32 v{t0}, v{t0}, v{MXR+6}, v{MXR+7}
    v_max_f32 v{t0}, v{t0}, v{t1}
    v_ceil_f32 v{ml}, v{t0}
    s_mov_b64 exec, s[42:43]
    global_store_dwordx4 v{vMLs}, {vr(ml,4)}, s[40:41] sc1
    s_mov_b64 exec, -1
    """)
    for r in range(4): a(f"v_sub_f32 v{DS+r}, v{DS+r}, v{ml}")
    for r in range(4): a(f"v_exp_f32 v{DS+r}, v{DS+r}")
    a(f"""
    v_cvt_pk_bf16_f32 v{DS}, v{DS}, v{DS+1}
    v_cvt_pk_bf16_f32 v{DS+1}, v{DS+2}, v{DS+3}
    ds_write_b64 v{vPw}, {vr(DS,2)}
    s_waitcnt lgkmcnt(0)
    s_barrier
    """)
    stamp("exp", True)
    for t in range(4): a(f"ds_read_b128 {vr(U+4*t,4)}, v{vPr} offset:{1024*t}")
    a("s_cmp_lg_u32 s3, 0\ns_cbranch_scc1 L_nol")
    for t in range(4):
        a(f"s_waitcnt lgkmcnt({3-t})")
        a(f"v_mfma_f32_16x16x32_bf16 {vr(DL,4)}, {vr(on4,4)}, {vr(U+4*t,4)}, {'0' if t == 0 else vr(DL,4)}")
    a("L_nol:")
    for t in range(4):
        a(f"s_waitcnt lgkmcnt({3-t})")
        for T in range(4):
            a(f"v_mfma_f32_16x16x32_bf16 {vr(DP+4*T,4)}, {vr(U+4*t,4)}, {vr(CV+16*T+4*t,4)}, {'0' if t == 0 else vr(DP+4*T,4)}")
        if t == 1:
            a(f"""
            s_cmp_lg_u32 s3, 0
            s_cbranch_scc1 L_nol2
            v_mov_b32 v{ml}, v{DL}
            s_mov_b64 exec, 0xffff
            global_store_dwordx4 v{vMLs}, {vr(ml,4)}, s[40:41] offset:256 sc1
            s_mov_b64 exec, -1
            L_nol2:
            """)
    OB = CK
    for r in range(4): a(f"v_cvt_pk_bf16_f32 v{OB+2*r}, v{DP+r}, v{DP+4+r}")
    for r in range(4):
        a(f"v_cvt_pk_bf16_f32 v{OB+2*r+1}, v{DP+8+r}, v{DP+12+r}")
        a(f"global_store_dwordx2 v{vPBs+r}, {vr(OB+2*r,2)}, s[40:41] sc1")
    stamp("pbst")
    gx = CV; gg = CV + 6; vg = CV + 12; RB = CV + 16; RS = CV + 32; RC = CV + 48
    a(f"""
    s_lshr_b32 s8, s3, 1
    s_cmp_lg_u32 s8, 1
    s_cbranch_scc1 L_fin
    s_cmp_ge_u32 s69, 40
    s_cbranch_scc1 L_fin
    v_mul_u32_u24 v{t1}, 20, v{vL}
    global_load_dwordx4 {vr(gx,4)}, v{t1}, s[16:17]
    global_load_dword v{gx+4}, v{t1}, s[16:17] offset:16
    global_load_dwordx4 {vr(gg,4)}, v{t1}, s[34:35]
    global_load_dword v{gg+4}, v{t1}, s[34:35] offset:16
    s_lshr_b32 s8, s69, 3
    s_lshl_b32 s8, s8, 1
    s_and_b32 s9, s3, 1
    s_add_u32 s8, s8, s9
    s_mul_i32 s15, s4, 10
    s_add_u32 s15, s15, s8
    v_lshrrev_b32 v{t2}, 1, v{vL}
    v_mul_u32_u24 v{t0}, {ROWB}, v{t2}
    v_and_b32 v{t1}, 1, v{vL}
    v_lshl_add_u32 v{t0}, v{t1}, 4, v{t0}
    s_mul_i32 s9, s4, 384
    s_lshl_b32 s8, s8, 5
    s_add_u32 s9, s9, s8
    s_add_u32 s9, s9, {PC_OFF}
    v_add_u32 v{ba}, s9, v{t0}
    v_add_u32 v{ba+1}, {32*ROWB}, v{ba}
    v_add_u32 v{ba+2}, {64*ROWB}, v{ba}
    v_add_u32 v{ba+3}, {96*ROWB}, v{ba}
    v_add_u32 v{vPBs}, {PF_OFF-PC_OFF}, v{ba}
    v_add_u32 v{vPBs+1}, {PF_OFF-PC_OFF}, v{ba+1}
    s_lshl_b32 s9, s15, 4
    v_lshl_add_u32 v{ba+4}, v{t1}, 3, s9
    v_lshl_add_u32 v{ba+4}, v{vG}, 1, v{ba+4}
    v_lshlrev_b32 v{ba+5}, 7, v{vL}
    v_add_u32 v{ba+7}, {FK_OFF}, v{ba+5}
    v_add_u32 v{ba+5}, {FO_OFF}, v{ba+5}
    v_add_u32 v{ba+6}, 8192, v{ba+5}
    v_mov_b32 v{RB+4}, 0
    v_mov_b32 v{RB+5}, 0
    v_mov_b32 v{RB+6}, 0
    v_mov_b32 v{RB+7}, 0
    """)
    a(f"v_mov_b32 v{t3}, 0\ns_waitcnt vmcnt(0)")
    for i in range(5):
        a(f"""
        v_lshlrev_b32 v{t0}, 16, v{gx+i}
        v_lshlrev_b32 v{t1}, 16, v{gg+i}
        v_mul_f32 v{t0}, v{t0}, v{t1}
        v_and_b32 v{t1}, 0xffff0000, v{gx+i}
        v_and_b32 v{t2}, 0xffff0000, v{gg+i}
        v_mul_f32 v{t1}, v{t1}, v{t2}
        v_cvt_pk_bf16_f32 v{t0}, v{t0}, v{t1}
        v_lshlrev_b32 v{t1}, 16, v{t0}
        v_and_b32 v{t0}, 0xffff0000, v{t0}
        v_add_f32 v{t3}, v{t3}, v{t1}
        v_add_f32 v{t3}, v{t3}, v{t0}
        """)
    allred("v_add_f32", t3, t3, t0)
    rbf(t3, t3)
    a(f"""
    v_mul_f32 v{t3}, {NLOG2E}, v{t3}
    v_exp_f32 v{t3}, v{t3}
    v_add_f32 v{t3}, 1.0, v{t3}
    v_rcp_f32 v{t3}, v{t3}
    """)
    rbf(vg, t3)
    a(f"v_sub_f32 v{vg+1}, 1.0, v{vg}")
    rbf(vg+1, vg+1)
    a(f"""
    s_mov_b32 s13, 0
    s_mov_b64 {MK[0]}, -1
    s_mov_b64 {MK[1]}, -1
    L_frp:
    """)
    masked([f"global_load_dwordx2 {vr(RS,2)}, v{ba+5}, s[40:41] sc1", f"global_load_dwordx2 {vr(RS+2,2)}, v{ba+6}, s[40:41] sc1"])
    a(f"""
    s_add_u32 s13, s13, 1
    s_waitcnt vmcnt(0)
    v_cmp_ne_u64 {MK[0]}, {TAG}, {vr(RS,2)}
    v_cmp_ne_u64 {MK[1]}, {TAG}, {vr(RS+2,2)}
    """)
    or_masks(2)
    spin_tail("L_frp", "L_fro")
    stamp("fo")
    pcl = [f"global_load_dwordx4 {vr(RB+4*j,4)}, v{vPBs+j}, s[40:41] sc1" for j in range(2)] + [f"global_load_dwordx4 {vr(RC+4*j,4)}, v{ba+j}, s[40:41] sc1" for j in range(4)]
    regs = [RB, RB+4, RC, RC+4, RC+8, RC+12]
    a(pcl[0])
    a(f"s_mov_b32 exec_hi, 0xfff\n{pcl[1]}\ns_mov_b32 exec_hi, -1")
    for l in pcl[2:]: a(l)
    a("s_mov_b32 s13, 0\ns_branch L_pcc\nL_pcp:")
    masked(pcl)
    a("L_pcc:\ns_add_u32 s13, s13, 1")
    for j in range(6):
        a(f"s_waitcnt vmcnt({5-j})")
        sent_mask(j, regs[j], t2)
        if j == 1:
            for r in range(4): a(f"v_add_f32 v{RB+8+r}, v{RB+r}, v{RB+4+r}")
            for r in range(4): a(f"v_mul_f32 v{RB+8+r}, v{vg+1}, v{RB+8+r}")
    or_masks(6)
    spin_tail("L_pcp", "L_pco")
    stamp("pc")
    RB = RB + 8
    R = RC
    for r in range(0, 4, 2): a(f"v_pk_add_f32 {vr(R+r,2)}, {vr(R+r,2)}, {vr(R+4+r,2)}\nv_pk_add_f32 {vr(R+8+r,2)}, {vr(R+8+r,2)}, {vr(R+12+r,2)}")
    for r in range(0, 4, 2): a(f"v_pk_add_f32 {vr(R+r,2)}, {vr(R+r,2)}, {vr(R+8+r,2)}")
    for r in range(4): a(f"v_fmac_f32 v{RB+r}, v{vg}, v{RC+r}")
    R = RB
    a(f"""
    v_permlane32_swap_b32 v{R}, v{R+2}
    v_permlane32_swap_b32 v{R+1}, v{R+3}
    v_add_f32 v{R}, v{R}, v{R+2}
    v_add_f32 v{R+1}, v{R+1}, v{R+3}
    v_permlane16_swap_b32 v{R}, v{R+1}
    v_add_f32 v{R}, v{R}, v{R+1}
    v_add_f32_dpp v{R}, v{R}, v{R} row_ror:8 {DPPM}
    v_add_f32_dpp v{R}, v{R}, v{R} row_ror:4 {DPPM}
    v_add_f32_dpp v{R}, v{R}, v{R} row_ror:2 {DPPM}
    v_cvt_pk_bf16_f32 v{R}, v{R}, v{R}
    """)
    setexec(0x0003000300030003)
    a(f"global_store_short v{ba+4}, v{R}, s[36:37]{' sc1' if o.get('osc') else ''}")
    a(f"""
    s_cmp_lg_u32 s15, 0
    s_cbranch_scc1 L_noep
    s_mov_b64 exec, 1
    v_mov_b32 v{t0}, {EP_OFF}
    global_store_dwordx2 v{t0}, {vr(pub+2,2)}, s[40:41]{' sc1' if o.get('osc') else ''}
    L_noep:
    """)
    setexec(-1)
    stamp("out")
    a("L_fin:")
    if probe:
        prole, _, amp = probe; idx = 1
        a(f"""
        s_waitcnt lgkmcnt(0)
        s_cmp_eq_u32 s{80+2*idx}, 0
        s_cbranch_scc1 L_end
        s_sub_u32 s8, s{80+2*idx}, s80
        s_mul_i32 s8, s8, {amp}
        s_min_u32 s8, s8, {opt("fix", 100000)}
        L_probe:
        s_sleep 2
        s_memrealtime s[10:11]
        s_waitcnt lgkmcnt(0)
        s_sub_u32 s10, s10, s80
        s_cmp_lt_u32 s10, s8
        s_cbranch_scc1 L_probe
        """)
    if DEV:
        a(f"""
        s_waitcnt vmcnt(0)
        s_memrealtime s[100:101]
        s_waitcnt lgkmcnt(0)
        s_lshl_b32 s7, s2, 3
        s_add_u32 s7, s7, s3
        s_mul_i32 s7, s7, {NST*4}
        s_add_u32 s7, s7, {STAMP_OFF}
        s_mov_b64 exec, 1
        v_mov_b32 v3, s7
        """)
        for i in range(NST):
            a(f"v_mov_b32 v4, s{80+2*i}\nglobal_store_dword v3, v4, s[40:41] offset:{4*i}")
    a("L_end:\ns_endpgm")
    a(".fill 3600, 4, 0xbf800000")
    lines = hazard.fix(a.lines)
    nv = max(po_v, V.n, BIGEND, k_v)
    if DEV:
        for r_ in want: lines.insert(0, f"; STAMPS {r_} start " + " ".join(want[r_] + ["-"] * (NST - 2 - len(want[r_]))) + " end")
    return single("\n".join(lines) + "\n", 256, 512, 152064, vgpr=256, sgpr=102, accum=256), nv

if __name__ == "__main__":
    out = sys.argv[1]
    DEV = "dev" in sys.argv[2:]
    txt, nv = build(DEV, {k: True for k in sys.argv[2:]})
    open(out, "w").write(txt)
    print("vgprs", nv)
```

```python
import sys, math, struct
from genlib import *
import hazard

def f2u(x): return struct.unpack("<I", struct.pack("<f", x))[0]

QP_OFF, HP_OFF, FA_OFF, FK_OFF, EP_OFF, ML_OFF, FO_OFF, PC_OFF, PF_OFF, PB_OFF, QA_OFF = 0x0, 0x20000, 0x30000, 0x34000, 0x3C000, 0x40000, 0x48000, 0x50000, 0xB0000, 0x100000, 0x200000
ROWB = 3072
SPIN = 200000
DPPM = "row_mask:0xf bank_mask:0xf"
NLOG2E = hex(f2u(-math.log2(math.e)))

def build(DEV=False, opts=None):
    o = dict(opts or {})
    def opt(name, dflt):
        for k in o:
            if k.startswith(name + "="): return int(k.split("=")[1])
        return dflt
    a = Asm()
    def nt(k): return " nt" if (o.get("nt") or o.get("nt_" + k)) else ""
    NST = 11
    probe = None
    for k in o:
        if k.startswith("probe"):
            _, role, idx, amp = k.split("_"); probe = (role, idx, int(amp))
    role = ["O"]
    want = {"O": "p1 wo go pb cp pc".split(), "K": "p1 wuk qp qa hp pf".split(), "A": "p1 ckv qap scm exp pbst fo pc out".split()}
    for k in o:
        for r_ in want:
            if k.startswith("s" + r_ + "="): want[r_] = k.split("=")[1].split(",")
    if probe: want = {"O": [], "K": [], "A": []}; want[probe[0]] = [probe[1]]
    def stamp(nm, wait=False):
        if not (DEV or probe): return
        if nm == "start": a("s_memrealtime s[80:81]"); return
        w = want[role[0]]
        if nm in w:
            i = w.index(nm) + 1
            a(f"s_memrealtime s[{80+2*i}:{81+2*i}]")
            if wait: a("s_waitcnt lgkmcnt(0)")
    class VA:
        def __init__(s, start): s.n = start
        def __call__(s, k=1, al=1):
            s.n = (s.n + al - 1) // al * al
            r = s.n; s.n += k
            assert s.n <= 254
            return r
    def vr(b, k): return f"v[{b}:{b+k-1}]"
    def srd(dst, src, size):
        a(f"s_mov_b32 s{dst}, s{src}\ns_mov_b32 s{dst+1}, s{src+1}\ns_mov_b32 s{dst+2}, {size}\ns_mov_b32 s{dst+3}, 0x20000")
    def setexec(mask):
        if mask == -1: a("s_mov_b64 exec, -1")
        elif mask < (1 << 31): a(f"s_mov_b64 exec, {hex(mask)}")
        else: a(f"s_mov_b32 exec_lo, {hex(mask & 0xffffffff)}\ns_mov_b32 exec_hi, {hex(mask >> 32)}")
    def spin_tail(Lp, Lo):
        a(f"s_cmp_gt_u32 s13, {SPIN}\ns_cbranch_scc1 {Lo}\ns_cbranch_vccnz {Lp}\n{Lo}:")
    def xrow(op, x, t):
        a(f"""
        v_mov_b32 v{t}, v{x}
        v_permlane16_swap_b32 v{x}, v{t}
        {op} v{x}, v{x}, v{t}
        v_mov_b32 v{t}, v{x}
        v_permlane32_swap_b32 v{x}, v{t}
        {op} v{x}, v{x}, v{t}
        """)
    def allred(op, dst, src, t):
        a(f"{op}_dpp v{dst}, v{src}, v{src} row_ror:1 {DPPM}")
        for d in (2, 4, 8): a(f"{op}_dpp v{dst}, v{dst}, v{dst} row_ror:{d} {DPPM}")
        xrow(op, dst, t)
    def red32(op, dst, src, t):
        a(f"{op}_dpp v{dst}, v{src}, v{src} quad_perm:[1,0,3,2] {DPPM}")
        a(f"{op}_dpp v{dst}, v{dst}, v{dst} quad_perm:[2,3,0,1] {DPPM}")
        a(f"{op}_dpp v{dst}, v{dst}, v{dst} row_ror:8 {DPPM}")
        xrow(op, dst, t)
    def rbf(dst, src):
        a(f"v_cvt_pk_bf16_f32 v{dst}, v{src}, v{src}\nv_and_b32 v{dst}, 0xffff0000, v{dst}")
    TAG = "s[70:71]"
    MK = ["s[72:73]", "s[74:75]", "s[76:77]", "s[66:67]", "s[64:65]", "s[62:63]"]
    def tagcheck(p): a(f"v_cmp_ne_u64 vcc, {TAG}, {vr(p,2)}")
    def sent_mask(k, R, t):
        a(f"v_max3_u32 v{t}, v{R}, v{R+1}, v{R+2}\nv_max_u32 v{t}, v{t}, v{R+3}\nv_cmp_eq_u32 {MK[k]}, -1, v{t}")
    def or_masks(n):
        a("s_nop 0")
        a(f"s_or_b64 vcc, {MK[0]}, {MK[1]}")
        for k in range(2, n): a(f"s_or_b64 vcc, vcc, {MK[k]}")
    def masked(loads):
        for k, l in enumerate(loads): a(f"s_mov_b64 exec, {MK[k]}\n{l}")
        a("s_mov_b64 exec, -1")
    def swz1280(dst, n, wsel):
        for j in range(n):
            a(f"""
            v_add_u32 v{t0}, {64*j}, v{vL}
            v_mul_u32_u24 v{t1}, 820, v{t0}
            v_lshrrev_b32 v{t1}, 16, v{t1}
            v_lshl_add_u32 v{t1}, v{t1}, 1, {wsel}
            v_xor_b32 v{t0}, v{t0}, v{t1}
            v_lshlrev_b32 v{dst+j}, 4, v{t0}
            """)
    def tr1280(dst, base):
        a(f"""
        v_lshrrev_b32 v{t1}, 2, v{vL}
        v_and_b32 v{t3}, 7, v{t1}
        v_and_b32 v{t2}, 3, v{vL}
        v_mul_u32_u24 v{t1}, 1280, v{t1}
        v_lshl_add_u32 v{t1}, v{t2}, 3, v{t1}
        v_add_u32 v{t1}, {base}, v{t1}
        s_mul_i32 s13, s3, 5
        """)
        for T in range(5):
            a(f"v_xor_b32 v{dst+T}, s13, v{t3}\nv_lshl_add_u32 v{dst+T}, v{dst+T}, 5, v{t1}\ns_add_u32 s13, s13, 1")
    def flag_store(sreg):
        a(f"""
        v_mov_b32 v{t0}, {sreg}
        s_mov_b64 exec, 1
        global_store_dwordx2 v{t0}, {vr(pub+2,2)}, s[40:41] sc1
        s_mov_b64 exec, -1
        """)
    def flag_wait(va, R, lab, first=True):
        if first: a(f"s_mov_b32 s13, 0\ns_mov_b64 vcc, -1")
        else: a(f"s_mov_b32 s13, 0\ns_branch {lab}c")
        a(f"""
        {lab}p:
        s_mov_b64 exec, vcc
        global_load_dwordx2 {vr(R,2)}, v{va}, s[40:41] sc1
        s_mov_b64 exec, -1
        {lab}c:
        s_add_u32 s13, s13, 1
        s_waitcnt vmcnt(0)
        """)
        tagcheck(R)
        spin_tail(lab + "p", lab + "o")
    def rowmasks():
        a("s_mov_b32 s26, 0xffff0000\ns_mov_b32 s27, 0xffff0000\ns_mov_b32 s28, 0\ns_mov_b32 s29, -1")
    def rowstore(R, va):
        a(f"""
        v_cndmask_b32 v{R}, v{R}, v{R+4}, s[26:27]
        v_cndmask_b32 v{R+8}, v{R+8}, v{R+12}, s[26:27]
        v_cndmask_b32 v{R}, v{R}, v{R+8}, s[28:29]
        global_store_dword v{va}, v{R}, s[40:41] sc1
        s_mov_b64 exec, 0xffff
        global_store_dword v{va}, v{R+16}, s[40:41] offset:256 sc1
        s_mov_b64 exec, -1
        """)
    def rowclear(sidx, off):
        a(f"""
        s_mul_i32 s8, {sidx}, {ROWB}
        s_add_u32 s8, s8, {off}
        v_lshl_add_u32 v{t0}, v{vL}, 4, s8
        global_store_dwordx4 v{t0}, {vr(Dq,4)}, s[40:41] sc1
        global_store_dwordx4 v{t0}, {vr(Dq,4)}, s[40:41] offset:1024 sc1
        global_store_dwordx4 v{t0}, {vr(Dq,4)}, s[40:41] offset:2048 sc1
        """)

    vL, vS, vE, vN, vG = 0, 1, 2, 3, 4
    t0, t1, t2, t3 = 6, 7, 8, 9
    pub = 10; msk = 14; Dq = 18; vWo = 5
    BIG = 22
    Y = BIG; WQ = BIG + 80; xd = BIG + 160; selE = BIG + 170; selO = BIG + 174
    BIGEND = BIG + 178
    if DEV or probe:
        for i in range(1, NST): a(f"s_mov_b32 s{80+2*i}, 0")
    stamp("start")
    a(f"""
    s_cmp_ge_u32 s2, 256
    s_cbranch_scc1 L_end
    s_load_dwordx16 s[16:31], s[0:1], 0
    s_load_dwordx2 s[40:41], s[0:1], 96
    s_load_dwordx8 s[32:39], s[0:1], 64
    v_lshrrev_b32 v1, 6, v0
    v_and_b32 v0, 63, v0
    v_readfirstlane_b32 s3, v1
    """)
    if not o.get("nocpf"):
        a(f"""
        s_cmp_lg_u32 s3, 3
        s_cbranch_scc1 L_nocpf
        s_cmp_ge_u32 s2, {opt("cpfn", 128)}
        s_cbranch_scc1 L_nocpf
        s_getpc_b64 s[42:43]
        v_lshlrev_b32 v{t0}, 6, v0
        v_add_u32 v{t1}, 8192, v{t0}
        global_load_dword v254, v{t0}, s[42:43]
        global_load_dword v255, v{t1}, s[42:43] offset:-4096
        global_load_dword v254, v{t1}, s[42:43]
        v_add_u32 v{t1}, 4096, v{t1}
        s_mov_b32 exec_hi, 0
        global_load_dword v255, v{t1}, s[42:43]
        s_mov_b32 exec_hi, -1
        L_nocpf:
        """)
    a(f"""
    s_and_b32 s4, s2, 7
    s_lshr_b32 s5, s2, 3
    v_and_b32 v3, 15, v0
    v_lshrrev_b32 v4, 4, v0
    v_lshrrev_b32 v1, 3, v0
    v_and_b32 v2, 7, v0
    v_mul_u32_u24 v{t0}, 40, v{vG}
    s_mul_i32 s8, s4, 160
    v_add_u32 v{t0}, s8, v{t0}
    v_mul_u32_u24 v{vWo}, {20*8192}, v{vG}
    v_lshl_add_u32 v{vWo}, v{vN}, 4, v{vWo}
    s_mul_i32 s8, s4, {80*8192}
    s_mov_b32 s9, s5                  ; q head
    s_lshl_b32 s10, s9, 8
    s_add_u32 s8, s8, s10
    s_mov_b32 s46, {SZ['wq']}
    s_mov_b32 s47, 0x20000
    s_lshr_b32 s68, s2, 6             ; 0,1: O  2: K  3: A
    s_cmp_eq_u32 s68, 2
    s_cselect_b32 s14, 2, 1
    s_cmp_ge_u32 s3, s14
    s_waitcnt lgkmcnt(0)
    s_load_dwordx2 {TAG}, s[40:41], {EP_OFF}
    s_cbranch_scc1 L_noP1a
    s_mov_b32 s44, s20
    s_mov_b32 s45, s21
    global_load_dwordx4 {vr(xd,4)}, v{t0}, s[16:17]
    global_load_dwordx4 {vr(xd+4,4)}, v{t0}, s[16:17] offset:16
    global_load_dwordx2 {vr(xd+8,2)}, v{t0}, s[16:17] offset:32
    s_cmp_lg_u32 s3, 0
    s_cbranch_scc1 L_nowq
    """)
    for u in range(20):
        a(f"buffer_load_dwordx4 {vr(WQ+4*u,4)}, v{vWo}, s[44:47], s8 offen{nt('wq')}\ns_add_u32 s8, s8, 8192")
    a(f"""
    L_nowq:
    s_barrier
    L_noP1a:
    v_and_b32 v{t0}, 1, v{vL}
    v_lshlrev_b32 v{t0}, 4, v{t0}
    v_mov_b32 v{t1}, 0xffff
    v_lshlrev_b32 v{t0}, v{t0}, v{t1}
    v_lshrrev_b32 v{t1}, 1, v{vE}
    s_and_b32 s7, s5, 3               ; O: sub
    s_bfe_u32 s6, s5, 0x20002
    s_lshl_b32 s6, s6, 3
    s_add_u32 s6, s6, s4              ; O: h
    s_and_b32 s15, s3, 3              ; cw
    s_and_b32 s78, s5, 1
    s_bfe_u32 s79, s5, 0x20001
    s_lshl_b32 s79, s79, 3
    s_add_u32 s79, s79, s4            ; K: h  A: chunk
    s_and_b32 s69, s2, 63
    """)
    for r in range(4):
        a(f"v_cmp_eq_u32 vcc, {r}, v{t1}\nv_cndmask_b32 v{msk+r}, 0, v{t0}, vcc")
    def gettag():
        a(f"s_waitcnt lgkmcnt(0)\ns_add_u32 s70, s70, 1\ns_add_u32 s71, s71, 0x9e3779b9\nv_mov_b32 v{pub+2}, s70\nv_mov_b32 v{pub+3}, s71")
    def gemv20(waits, vaddr, off):
        for u in range(20):
            if waits is not None: a(f"s_waitcnt vmcnt({19-u+waits})")
            a(f"v_mfma_f32_16x16x32_bf16 {vr(Dq,4)}, {vr(Y+4*u,4)}, {vr(WQ+4*u,4)}, {'0' if u == 0 else vr(Dq,4)}")
        a(f"""
        v_cvt_pk_bf16_f32 v{pub}, v{Dq}, v{Dq+1}
        v_cvt_pk_bf16_f32 v{pub+1}, v{Dq+2}, v{Dq+3}
        s_mov_b32 exec_hi, 0
        global_store_dwordx4 v{vaddr}, {vr(pub,4)}, s[40:41] offset:{off} sc1
        s_mov_b32 exec_hi, -1
        """)
    a(f"""
    s_cmp_ge_u32 s3, s14
    s_cbranch_scc1 L_noP1b
    v_mov_b32 v{t2}, 0x0c0c0c0c
    s_mov_b32 s12, 0x01000100
    s_mov_b32 s13, 0x03020302
    """)
    for r in range(4):
        a(f"v_bfi_b32 v{selE+r}, v{msk+r}, s12, v{t2}\nv_bfi_b32 v{selO+r}, v{msk+r}, s13, v{t2}")
    a(f"""
    s_lshl_b32 s12, s9, 3
    s_add_u32 s12, s12, s4
    s_lshl_b32 s12, s12, 9
    v_lshl_add_u32 v{t3}, v{vL}, 4, s12
    s_cmp_eq_u32 s3, 0
    s_cbranch_scc1 L_xw
    s_waitcnt vmcnt(0)
    L_xw:
    s_waitcnt vmcnt(20)
    """)
    for u in range(20):
        for r in range(4):
            a(f"v_perm_b32 v{Y+4*u+r}, v{xd+u//2}, v{xd+u//2}, v{(selO if u & 1 else selE)+r}")
    gettag()
    a("s_cmp_lg_u32 s3, 0\ns_cbranch_scc1 L_noP1b")
    gemv20(0, t3, QP_OFF)
    if DEV: a("s_memrealtime s[82:83]")
    a(f"""
    L_noP1b:
    v_mov_b32 v{Dq}, -1
    v_mov_b32 v{Dq+1}, -1
    v_mov_b32 v{Dq+2}, -1
    v_mov_b32 v{Dq+3}, -1
    s_cmp_eq_u32 s68, 3
    s_cbranch_scc1 L_roleA
    s_cmp_match_placeholder
    """.replace("s_cmp_match_placeholder", "s_cmp_lt_u32 s68, 2\ns_cbranch_scc1 L_roleO"))
    role[0] = "K"
    WK = BIG; QPR = BIG + 64; qf = BIG + 80; D2 = BIG + 96; acc = BIG + 112; yI = BIG + 116; qp = BIG + 118
    V = VA(BIGEND)
    ba = V(5); vQs = V(2); vH = V(); vPF = V(); HR = V(4, 2); HP = V(8, 2); hs = V(4, 2)
    A2 = WQ; FO = WQ + 20
    QL, WKL = 0, 1024
    a(f"""
    s_lshl_b32 s8, s79, 10
    s_lshl_b32 s13, s78, 9
    s_add_u32 s12, s8, s13
    s_add_u32 s12, s12, {QA_OFF}
    s_cmp_ge_u32 s3, 4
    s_cbranch_scc1 L_kK
    s_cmp_lt_u32 s3, 2
    s_cbranch_scc1 L_kH1
    s_cmp_lg_u32 s3, 3
    s_cbranch_scc1 L_kH0
    v_and_b32 v{t1}, 31, v{vL}
    v_lshl_add_u32 v{t1}, v{t1}, 4, s12
    v_lshrrev_b32 v{t2}, 5, v{vL}
    v_lshl_add_u32 v{t1}, v{t2}, 15, v{t1}
    """)
    for j in range(4): a(f"global_store_dwordx4 v{t1}, {vr(Dq,4)}, s[40:41] sc1\nv_add_u32 v{t1}, 0x10000, v{t1}")
    rowclear("s69", PF_OFF)
    a("L_kH0:\ns_barrier")
    gettag()
    a(f"""
    s_cmp_lg_u32 s3, 3
    s_cbranch_scc1 L_kH1
    s_lshl_b32 s8, s69, 7
    s_add_u32 s8, s8, {FK_OFF}
    s_waitcnt vmcnt(0)
    """)
    flag_store("s8")
    a(f"""
    L_kH1:
    s_barrier
    s_branch L_kJ
    L_kK:
    """)
    srd(48, 22, SZ['wuk'])
    a(f"""
    v_xor_b32 v{t0}, v{vN}, v{vG}
    v_lshlrev_b32 v{t1}, 15, v{vG}
    v_lshl_add_u32 v{ba}, v{t0}, 4, v{t1}
    v_xor_b32 v{ba+1}, 64, v{ba}
    v_xor_b32 v{ba+2}, 128, v{ba}
    v_xor_b32 v{ba+3}, 192, v{ba}
    s_lshl_b32 s10, s78, 21
    s_lshl_b32 s11, s15, 19
    s_add_u32 s10, s10, s11
    s_lshl_b32 s11, s79, 8
    s_add_u32 s10, s10, s11
    s_lshl_b32 s11, s15, 14
    s_add_u32 s11, s11, {WKL}
    s_barrier
    """)
    EK = opt("ek", 8)
    def wuk_ld(j):
        step = 16*8192 if (j & 3) != 3 else (1 - 48) * 8192
        a(f"s_mov_b32 m0, s11\ns_add_u32 s11, s11, 1024\nbuffer_load_dwordx4 v{ba+(j&3)}, s[48:51], s10 offen{nt('wuk')} lds\ns_add_u32 s10, s10, {hex(step & 0xffffffff)}")
    for j in range(EK): wuk_ld(j)
    gettag()
    a(f"""
    s_lshl_b32 s13, s15, 7
    s_add_u32 s8, s12, s13
    v_lshl_add_u32 v{vQs}, v{vN}, 3, s8
    v_lshl_add_u32 v{vQs}, v{vG}, 15, v{vQs}
    v_add_u32 v{vQs+1}, 0x20000, v{vQs}
    v_and_b32 v{acc}, 1, v{vG}
    v_cmp_eq_u32 vcc, 1, v{acc}
    v_cndmask_b32 v{yI}, v{msk}, v{msk+2}, vcc
    v_cndmask_b32 v{yI+1}, v{msk+1}, v{msk+3}, vcc
    v_and_b32 v{yI}, 0x3f803f80, v{yI}
    v_and_b32 v{yI+1}, 0x3f803f80, v{yI+1}
    s_lshl_b32 s8, s15, 8
    v_lshl_add_u32 v{acc+1}, v{vN}, 4, s8
    v_lshl_add_u32 v{acc+1}, v{vG}, 3, v{acc+1}
    v_lshl_add_u32 v{acc+2}, v{vG}, 4, s8
    s_lshl_b32 s8, s15, 14
    s_add_u32 s8, s8, {WKL}
    v_xor_b32 v{t0}, v{vN}, v{vG}
    v_lshl_add_u32 v{t1}, v{vN}, 8, s8
    v_lshl_add_u32 v{t0}, v{t0}, 4, v{t1}
    v_xor_b32 v{t1}, 64, v{t0}
    v_xor_b32 v{t2}, 128, v{t0}
    v_xor_b32 v{t3}, 192, v{t0}
    s_lshl_b32 s8, s79, 12
    v_lshl_add_u32 v{acc}, v{vL}, 4, s8
    s_mov_b32 s13, 0
    s_barrier
    """)
    for j in range(EK, 16): wuk_ld(j)
    qpl = [f"global_load_dwordx4 {vr(QPR+4*j,4)}, v{acc}, s[40:41] offset:{QP_OFF+1024*j} sc1" for j in range(4)]
    QAT = opt("qat", 3)
    for tau in range(4):
        if tau == QAT:
            for l in qpl: a(l)
        a(f"s_waitcnt vmcnt({12-4*tau+(4 if tau >= QAT else 0)}) lgkmcnt(8)")
        for ks in range(4): a(f"ds_read_b128 {vr(WK+16*tau+4*ks,4)}, v{[t0,t1,t2,t3][ks]} offset:{4096*tau}")
    if QAT == 4:
        for l in qpl: a(l)
    stamp("wuk")
    a("s_branch L_qpc\nL_qpp:")
    masked(qpl)
    a("L_qpc:\ns_add_u32 s13, s13, 1\ns_waitcnt vmcnt(0)")
    for j in range(4):
        a(f"v_mfma_f32_16x16x16_bf16 {vr(Dq,4)}, {vr(yI,2)}, {vr(QPR+4*j,2)}, {'0' if j == 0 else vr(Dq,4)}")
        a(f"v_cmp_ne_u64 {MK[j]}, {TAG}, {vr(QPR+4*j+2,2)}")
    or_masks(4)
    spin_tail("L_qpp", "L_qpo")
    stamp("qp")
    a(f"""
    v_cvt_pk_bf16_f32 v{Dq}, v{Dq}, v{Dq+1}
    v_cvt_pk_bf16_f32 v{Dq+1}, v{Dq+2}, v{Dq+3}
    s_mov_b32 exec_hi, 0
    ds_write_b64 v{acc+1}, {vr(Dq,2)}
    s_mov_b32 exec_hi, -1
    s_mov_b32 s13, {hex(f2u(128**-0.5 * math.log2(math.e)))}
    s_waitcnt lgkmcnt(0)
    """)
    for ks in range(4): a(f"ds_read_b128 {vr(qf+4*ks,4)}, v{acc+2} offset:{64*ks}")
    for ks in range(4):
        a(f"s_waitcnt lgkmcnt({3-ks})")
        for tau in range(4):
            a(f"v_mfma_f32_16x16x32_bf16 {vr(D2+4*tau,4)}, {vr(qf+4*ks,4)}, {vr(WK+16*tau+4*ks,4)}, {'0' if ks == 0 else vr(D2+4*tau,4)}")
    for tau in range(4): a(f"v_mul_f32 v{D2+4*tau}, s13, v{D2+4*tau}")
    a(f"""
    v_cvt_pk_bf16_f32 v{qp}, v{D2}, v{D2+4}
    v_cvt_pk_bf16_f32 v{qp+1}, v{D2+8}, v{D2+12}
    global_store_dwordx2 v{vQs}, {vr(qp,2)}, s[40:41] sc1
    global_store_dwordx2 v{vQs+1}, {vr(qp,2)}, s[40:41] sc1
    """)
    stamp("qa")
    if o.get("qack"): a("s_waitcnt vmcnt(0)")
    a("L_kJ:")
    srd(60, 30, SZ['w1']); srd(52, 32, SZ['w2'])
    a(f"s_and_b32 s13, s3, 1\ns_lshl_b32 s13, s13, 3")
    swz1280(ba, 5, "s13")
    a(f"""
    s_mul_i32 s42, s69, {32*1280}
    s_mul_i32 s43, s3, 5120
    s_add_u32 s42, s42, s43
    s_add_u32 s43, s43, {WKL}
    v_mul_u32_u24 v{vWo}, {20*3456}, v{vG}
    v_lshl_add_u32 v{vWo}, v{vN}, 4, v{vWo}
    s_and_b32 s9, s5, 7
    s_lshl_b32 s9, s9, 1
    s_add_u32 s9, s9, s3
    s_mul_i32 s14, s4, {80*3456}
    s_lshl_b32 s8, s9, 8
    s_add_u32 s14, s14, s8
    s_lshl_b32 s9, s9, 3
    s_add_u32 s9, s9, s4
    s_lshl_b32 s9, s9, 9
    s_add_u32 s9, s9, {HP_OFF}
    v_lshl_add_u32 v{vH}, v{vL}, 4, s9
    s_barrier
    s_cmp_ge_u32 s69, 56
    s_cbranch_scc1 L_fin
    s_cmp_ge_u32 s3, 2
    s_cbranch_scc1 L_now1
    """)
    for u in range(20):
        a(f"buffer_load_dwordx4 {vr(WQ+4*u,4)}, v{vWo}, s[60:63], s14 offen{nt('w1')}\ns_add_u32 s14, s14, 3456")
    a("L_now1:\ns_barrier\ns_cmp_ge_u32 s3, 2\ns_cbranch_scc1 L_now1b\ns_setprio 3")
    gemv20(0, vH, 0)
    stamp("hp")
    a("s_setprio 0\ns_branch L_w2d\nL_now1b:\ns_mov_b32 s8, s3\nL_w2l:")
    for j in range(5):
        a(f"s_mov_b32 m0, s43\ns_add_u32 s43, s43, 1024\nbuffer_load_dwordx4 v{ba+j}, s[52:55], s42 offen{nt('w2')} lds")
    a(f"""
    s_cmp_ge_u32 s8, 4
    s_cbranch_scc1 L_w2d
    s_mov_b32 s8, 4
    s_sub_u32 s42, s42, 10240
    s_sub_u32 s43, s43, 15360
    s_branch L_w2l
    L_w2d:
    """)
    tr1280(ba, WKL)
    rowmasks()
    a(f"""
    s_lshr_b32 s8, s69, 2
    s_lshl_b32 s8, s8, 12
    s_and_b32 s9, s69, 3
    s_lshl_b32 s9, s9, 6
    s_add_u32 s8, s8, s9
    s_add_u32 s8, s8, {HP_OFF}
    v_lshl_add_u32 v{vH}, v{vE}, 9, s8
    v_and_b32 v{t1}, 1, v{vG}
    v_lshl_add_u32 v{vH}, v{t1}, 8, v{vH}
    v_lshrrev_b32 v{t1}, 1, v{vG}
    v_lshl_add_u32 v{vH}, v{t1}, 4, v{vH}
    v_and_b32 v{t1}, 1, v{vS}
    v_lshl_add_u32 v{vH}, v{t1}, 5, v{vH}
    s_mul_i32 s8, s69, {ROWB}
    s_mul_i32 s9, s3, 384
    s_add_u32 s8, s8, s9
    s_add_u32 s8, s8, {PF_OFF}
    v_lshl_add_u32 v{vPF}, v{vL}, 2, s8
    s_waitcnt vmcnt(0)
    s_barrier
    s_cmp_ge_u32 s69, 54
    s_cbranch_scc1 L_fin
    global_load_dwordx4 {vr(HR,4)}, v{vH}, s[40:41] sc1
    """)
    for T in range(5):
        for aa in range(2): a(f"ds_read_b64_tr_b16 {vr(A2+4*T+2*aa,2)}, v{ba+T} offset:{aa*20480}")
    a(f"""
    s_mov_b32 s13, 0
    s_branch L_hpc
    L_hpp:
    s_mov_b64 exec, vcc
    global_load_dwordx4 {vr(HR,4)}, v{vH}, s[40:41] sc1
    s_mov_b64 exec, -1
    L_hpc:
    s_add_u32 s13, s13, 1
    s_waitcnt vmcnt(0)
    """)
    tagcheck(HR+2)
    spin_tail("L_hpp", "L_hpo")
    a(f"""
    v_lshlrev_b32 v{HP}, 16, v{HR}
    v_and_b32 v{HP+1}, 0xffff0000, v{HR}
    v_lshlrev_b32 v{HP+2}, 16, v{HR+1}
    v_and_b32 v{HP+3}, 0xffff0000, v{HR+1}
    """)
    for d in ("quad_perm:[1,0,3,2]", "quad_perm:[2,3,0,1]", "row_half_mirror"):
        for r in range(4): a(f"v_add_f32_dpp v{HP+r}, v{HP+r}, v{HP+r} {d} {DPPM}")
    for r in range(4): a(f"v_mul_f32 v{HP+4+r}, {NLOG2E}, v{HP+r}")
    for r in range(4): a(f"v_exp_f32 v{HP+4+r}, v{HP+4+r}")
    for r in range(4): a(f"v_add_f32 v{HP+4+r}, 1.0, v{HP+4+r}")
    for r in range(4): a(f"v_rcp_f32 v{HP+4+r}, v{HP+4+r}")
    for r in range(4): a(f"v_mul_f32 v{HP+r}, v{HP+r}, v{HP+4+r}")
    a(f"""
    v_cvt_pk_bf16_f32 v{hs}, v{HP}, v{HP+1}
    v_cvt_pk_bf16_f32 v{hs+1}, v{HP+2}, v{HP+3}
    v_mov_b32 v{hs+2}, v{hs}
    v_mov_b32 v{hs+3}, v{hs+1}
    v_mov_b32_dpp v{hs}, v{hs} row_ror:8 row_mask:0xf bank_mask:0xc
    v_mov_b32_dpp v{hs+1}, v{hs+1} row_ror:8 row_mask:0xf bank_mask:0xc
    v_mov_b32_dpp v{hs+2}, v{hs+2} row_ror:8 row_mask:0xf bank_mask:0x3
    v_mov_b32_dpp v{hs+3}, v{hs+3} row_ror:8 row_mask:0xf bank_mask:0x3
    s_waitcnt lgkmcnt(0)
    """)
    for T in range(5): a(f"v_mfma_f32_16x16x32_bf16 {vr(FO+4*T,4)}, {vr(hs,4)}, {vr(A2+4*T,4)}, 0")
    rowstore(FO, vPF)
    stamp("pf")
    a("s_branch L_fin")
    k_v = V.n
    role[0] = "O"
    V = VA(BIG)
    AO = V(40, 2); AUV = V(32, 2); YW = V(8, 2); PBR = V(8, 2); OUT = V(20, 2); D2 = V(16, 2)
    acc = V(4, 2); ml = V(4, 2); qp = V(8, 2); cf = V(8, 2)
    oW = V(5); ones = V(2, 2)
    vML, vPB, vCW, vCR, vCT, vPC, vMS, vFA, vSc, vM2 = [V() for _ in range(10)]; vUo = V(2)
    MLS, SCL, CP, CC, WUVL, WOL = 0, 1024, 2048, 4096, 8192, 40960
    a(f"""
    L_roleO:
    s_cmp_lg_u32 s3, 2
    s_cbranch_scc1 L_o1
    """)
    rowclear("s2", PC_OFF)
    a("L_o1:")
    srd(52, 24, SZ['wuv']); srd(56, 26, SZ['wo'])
    a(f"""
    s_lshr_b32 s13, s7, 1             ; ch
    s_and_b32 s10, s3, 1
    s_lshl_b32 s10, s10, 2
    v_xor_b32 v{t0}, s10, v{vE}
    v_and_b32 v{t1}, 4, v{vS}
    v_and_b32 v{t2}, 1, v{vS}
    v_lshl_add_u32 v{t1}, v{t2}, 1, v{t1}
    v_bfe_u32 v{t2}, v{vS}, 1, 1
    v_add_u32 v{t1}, v{t1}, v{t2}
    v_lshlrev_b32 v{vUo}, 13, v{t1}
    v_lshl_add_u32 v{vUo}, v{t0}, 4, v{vUo}
    v_xor_b32 v{vUo+1}, 32, v{vUo}
    s_lshl_b32 s10, s13, 21
    s_lshl_b32 s11, s3, 18
    s_add_u32 s10, s10, s11
    s_lshl_b32 s11, s6, 8
    s_add_u32 s10, s10, s11
    s_and_b32 s11, s7, 1
    s_lshl_b32 s11, s11, 7
    s_add_u32 s10, s10, s11
    s_lshl_b32 s11, s3, 12
    s_add_u32 s11, s11, {WUVL}
    s_cmp_eq_u32 s3, 0
    s_cbranch_scc1 L_o2
    s_barrier
    L_o2:
    """)
    EO = opt("eo", 0)
    def wuv_load(j):
        a(f"s_mov_b32 m0, s11\ns_add_u32 s11, s11, 1024\nbuffer_load_dwordx4 v{vUo+(j>>1)}, s[52:55], s10 offen{nt('wuv')} lds\ns_add_u32 s10, s10, 65536")
    if o.get("opk"):
        a(f"""
        s_cmp_lt_u32 s3, 4
        s_cbranch_scc1 L_nopk
        v_lshrrev_b32 v{t0}, 2, v{vL}
        v_and_b32 v{t1}, 1, v{t0}
        v_lshl_add_u32 v{t1}, v{vS}, 2, v{t1}
        v_and_b32 v{t2}, 3, v{vL}
        v_lshlrev_b32 v{t2}, 6, v{t2}
        v_lshl_add_u32 v{t1}, v{t1}, 13, v{t2}
        s_lshl_b32 s12, s7, 20
        s_lshl_b32 s8, s15, 18
        s_add_u32 s12, s12, s8
        s_lshl_b32 s8, s6, 8
        s_add_u32 s12, s12, s8
        s_add_u32 s12, s12, 16384
        v_add_u32 v{t1}, s12, v{t1}
        global_load_dword v254, v{t1}, s[22:23]
        """)
        if o.get("opk2"):
            a(f"v_add_u32 v{t1}, {(-16384) & 0xffffffff}, v{t1}\ns_mov_b32 exec_lo, 0xf0f0f0f0\ns_mov_b32 exec_hi, 0xf0f0f0f0\nglobal_load_dword v254, v{t1}, s[22:23]\ns_mov_b64 exec, -1")
        if o.get("opc"):
            a(f"""
            s_lshl_b32 s8, s6, 17
            s_lshl_b32 s12, s7, 15
            s_add_u32 s8, s8, s12
            s_lshl_b32 s12, s15, 13
            s_add_u32 s8, s8, s12
            s_add_u32 s8, s8, 4096
            v_lshl_add_u32 v{t0}, v{vL}, 6, s8
            global_load_dword v254, v{t0}, s[18:19]
            """)
        a("L_nopk:")
    for j in range(EO): wuv_load(j)
    a("s_cmp_eq_u32 s3, 0\ns_cbranch_scc1 L_o3")
    gettag()
    a("L_o3:")
    if o.get("bback"): a("s_cmp_lg_u32 s3, 0\ns_cbranch_scc1 L_o2b\ns_waitcnt vmcnt(0)\nL_o2b:")
    a(f"s_and_b32 s8, s3, 1\ns_lshl_b32 s8, s8, 3")
    swz1280(oW, 5, "s8")
    a(f"""
    s_and_b32 s12, s7, 1
    s_lshl_b32 s8, s6, 1
    s_add_u32 s12, s12, s8
    s_mul_i32 s12, s12, {64*1280}
    s_mul_i32 s14, s13, 40960
    s_mul_i32 s9, s3, 5120
    s_add_u32 s14, s14, s9
    s_add_u32 s12, s12, s14
    s_add_u32 s14, s14, {WOL}
    s_mul_i32 s9, s13, 81920
    s_sub_u32 s9, 40960, s9
    s_barrier
    """)
    OPF = opt("opf", 0)
    if OPF:
        a(f"""
        s_cmp_ge_u32 s3, {OPF}
        s_cbranch_scc1 L_nopf
        s_lshl_b32 s8, s6, 17
        s_lshl_b32 s42, s7, 15
        s_add_u32 s8, s8, s42
        s_and_b32 s42, s3, 3
        s_lshl_b32 s42, s42, 13
        s_add_u32 s8, s8, s42
        s_lshr_b32 s42, s3, 2
        s_lshl_b32 s42, s42, 12
        s_sub_u32 s8, s8, s42
        s_add_u32 s8, s8, 4096
        v_lshl_add_u32 v{t0}, v{vL}, 6, s8
        global_load_dword v254, v{t0}, s[18:19]
        L_nopf:
        """)
    TH = opt("th", 0); THN = opt("thn", 9)
    def wo_load(j):
        a(f"s_mov_b32 m0, s14\ns_add_u32 s14, s14, 1024\nbuffer_load_dwordx4 v{oW+j}, s[56:59], s12 offen{nt('wo')} lds")
    cold = [lambda j=j: wuv_load(j) for j in range(EO, 4)] + [lambda j=j: wo_load(j) for j in range(5)]
    for n_, f in enumerate(cold):
        f()
        if TH and n_ < THN: a(f"s_waitcnt vmcnt({TH-1})")
    a(f"s_add_u32 s12, s12, s9\ns_add_u32 s14, s14, s9\ns_sub_u32 s14, s14, 5120")
    for j in range(5): wo_load(j)
    a(f"""
    v_mov_b32 v{ones}, 0x3f803f80
    v_mov_b32 v{ones+1}, 0x3f803f80
    s_lshr_b32 s8, s6, 4
    s_lshl_b32 s8, s8, 14
    s_and_b32 s42, s6, 15
    s_lshl_b32 s42, s42, 4
    s_add_u32 s8, s8, s42
    s_add_u32 s8, s8, {ML_OFF}
    v_and_b32 v{t0}, 3, v{vL}
    v_lshl_add_u32 v{t0}, v{vS}, 2, v{t0}
    v_lshl_add_u32 v{vML}, v{t0}, 9, s8
    s_lshr_b32 s42, s3, 2             ; hh
    s_lshl_b32 s43, s42, 3
    v_lshlrev_b32 v{vM2}, 2, v{vL}
    v_xor_b32 v{vM2}, s43, v{vM2}
    s_lshl_b32 s8, s6, 15
    s_lshl_b32 s43, s13, 9
    s_add_u32 s8, s8, s43
    s_lshl_b32 s43, s15, 7
    s_add_u32 s8, s8, s43
    s_lshl_b32 s43, s42, 11
    s_add_u32 s8, s8, s43
    s_add_u32 s8, s8, {PB_OFF}
    v_lshl_add_u32 v{vPB}, v{vS}, 12, s8
    v_lshl_add_u32 v{vPB}, v{vE}, 4, v{vPB}
    s_lshl_b32 s8, s3, 8
    s_add_u32 s8, s8, {CC}
    v_lshrrev_b32 v{t2}, 1, v{vG}
    v_lshl_add_u32 v{vCW}, v{t2}, 7, s8
    v_lshl_add_u32 v{vCW}, v{vE}, 4, v{vCW}
    v_lshlrev_b32 v{t0}, 9, v{t2}             ; 4*(g>>1) rows
    v_and_b32 v{t2}, 1, v{vG}
    v_lshl_add_u32 v{vCW}, v{t2}, 3, v{vCW}
    v_lshl_add_u32 v{t0}, v{t2}, 7, v{t0}     ; + (g&1) rows
    v_and_b32 v{t2}, 1, v{vL}
    v_lshl_add_u32 v{vCR}, v{t2}, 7, s8
    v_lshl_add_u32 v{vCR}, v{vG}, 4, v{vCR}
    s_lshl_b32 s8, s3, 6
    v_lshl_add_u32 v{vCT}, v{t2}, 5, s8
    v_lshl_add_u32 v{vCT}, v{vG}, 3, v{vCT}
    s_mul_i32 s8, s2, {ROWB}
    s_mul_i32 s42, s3, 384
    s_add_u32 s8, s8, s42
    s_add_u32 s8, s8, {PC_OFF}
    v_lshl_add_u32 v{vPC}, v{vL}, 2, s8
    v_lshlrev_b32 v{vMS}, 3, v{vL}
    v_bfe_u32 v{acc}, v{vL}, 2, 2             ; r
    v_lshl_add_u32 v{t0}, v{acc}, 11, v{t0}
    v_and_b32 v{t2}, 3, v{vL}
    v_lshl_add_u32 v{t0}, v{t2}, 3, v{t0}
    s_lshl_b32 s8, s15, 13
    s_add_u32 s8, s8, {WUVL}
    v_add_u32 v{t0}, s8, v{t0}
    """)
    for Td in range(4):
        a(f"v_xor_b32 v{t2}, {Td}, v{acc}\nv_lshl_add_u32 v{cf+Td}, v{t2}, 5, v{t0}")
    tr1280(oW, WOL)
    rowmasks()
    a(f"""
    s_lshl_b32 s8, s2, 7
    s_add_u32 s8, s8, {FO_OFF}
    s_waitcnt vmcnt(0) lgkmcnt(0)
    s_barrier
    """)
    stamp("wo", True)
    a(f"""
    s_cmp_lg_u32 s3, 0
    s_cbranch_scc1 L_nofa0
    global_load_dwordx4 {vr(ml,4)}, v{vML}, s[40:41] sc1
    L_nofa0:
    """)
    for ks in range(2):
        for Td in range(4):
            for aa in range(2):
                a(f"ds_read_b64_tr_b16 {vr(AUV+16*ks+4*Td+2*aa,2)}, v{cf+Td} offset:{(8*ks+2*aa)*128}")
        a("s_waitcnt lgkmcnt(5)")
    for T in range(5):
        for ks in range(2):
            for aa in range(2):
                a(f"ds_read_b64_tr_b16 {vr(AO+8*T+4*ks+2*aa,2)}, v{oW+T} offset:{(2*ks+aa)*20480}")
        if T in (1, 3): a("s_waitcnt lgkmcnt(5)")
    a(f"""
    v_mov_b32 v{vFA}, s8
    s_cmp_eq_u32 s3, 0
    s_cselect_b32 s42, 1, 0
    s_mov_b32 s43, 0
    s_cselect_b64 s[44:45], -1, 0
    s_cbranch_scc0 L_gow
    s_mov_b32 s13, 0
    s_branch L_goc
    L_gop:
    s_mov_b64 exec, vcc
    global_load_dwordx4 {vr(ml,4)}, v{vML}, s[40:41] sc1
    s_mov_b64 exec, -1
    L_goc:
    s_add_u32 s13, s13, 1
    s_waitcnt vmcnt(0)
    """)
    tagcheck(ml+2)
    spin_tail("L_gop", "L_goo")
    a(f"""
    ds_write_b32 v{vM2}, v{ml} offset:{MLS}
    L_gow:
    s_waitcnt lgkmcnt(0)
    s_barrier
    """)
    stamp("go")
    FO1 = 0 if o.get("folate") else 1
    pbl = [f"global_load_dwordx4 {vr(PBR+4*u,4)}, v{vPB}, s[40:41] offset:{1024*u} sc1" for u in range(2)]
    lrl = f"global_load_dwordx4 {vr(ml,4)}, v{vML}, s[40:41] offset:256 sc1"
    fost = f"s_mov_b64 exec, s[42:43]\nglobal_store_dwordx2 v{vFA}, {vr(pub+2,2)}, s[40:41] sc1\ns_mov_b64 exec, -1"
    for l in pbl: a(l)
    a(f"ds_read_b32 v{t3}, v{vM2} offset:{MLS}")
    a(f"s_mov_b64 exec, s[44:45]\n{lrl}")
    if FO1: a(fost)
    else: a("s_mov_b64 exec, -1")
    a("s_waitcnt lgkmcnt(0)")
    red32("v_max_f32", t0, t3, t1)
    a(f"""
    v_sub_f32 v{t3}, v{t3}, v{t0}
    v_exp_f32 v{t3}, v{t3}
    s_mov_b32 s13, 0
    v_cvt_pk_bf16_f32 v{t2}, v{t3}, v{t3}
    """)
    for u in range(2):
        for r in range(4):
            a(f"v_and_b32_dpp v{YW+4*u+r}, v{t2}, v{msk+r} quad_perm:[{u},{u},{u},{u}] {DPPM}")
    a(f"s_waitcnt vmcnt({1+FO1})\ns_branch L_pbc\nL_pbp:")
    masked(pbl)
    a("s_waitcnt vmcnt(0)\nL_pbc:\ns_add_u32 s13, s13, 1")
    for u in range(2):
        a(f"v_mfma_f32_16x16x32_bf16 {vr(Dq,4)}, {vr(YW+4*u,4)}, {vr(PBR+4*u,4)}, {'0' if u == 0 else vr(Dq,4)}")
        sent_mask(u, PBR+4*u, t2)
    or_masks(2)
    spin_tail("L_pbp", "L_pbo")
    stamp("pb")
    if not FO1: a(fost)
    a(f"""
    v_cvt_pk_bf16_f32 v{qp}, v{Dq}, v{Dq+1}
    v_cvt_pk_bf16_f32 v{qp+1}, v{Dq+2}, v{Dq+3}
    """)
    setexec(0xFF00FF0000FF00FF)
    a(f"ds_write_b64 v{vCW}, {vr(qp,2)}")
    setexec(-1)
    a(f"""
    s_waitcnt lgkmcnt(0)
    ds_read_b128 {vr(cf,4)}, v{vCR}
    ds_read_b128 {vr(cf+4,4)}, v{vCR} offset:64
    """)
    for ks in range(2):
        a(f"s_waitcnt lgkmcnt({1-ks})")
        for Td in range(4):
            a(f"v_mfma_f32_16x16x32_bf16 {vr(D2+4*Td,4)}, {vr(AUV+16*ks+4*Td,4)}, {vr(cf+4*ks,4)}, {'0' if ks == 0 else vr(D2+4*Td,4)}")
    setexec(0x0003000300030003)
    for Td in range(4):
        a(f"v_cvt_pk_bf16_f32 v{qp+2*Td}, v{D2+4*Td}, v{D2+4*Td+1}\nv_cvt_pk_bf16_f32 v{qp+2*Td+1}, v{D2+4*Td+2}, v{D2+4*Td+3}")
        a(f"ds_write_b64 v{vCT}, {vr(qp+2*Td,2)} offset:{CP+512*Td}")
    setexec(-1)
    a(f"""
    v_mov_b32 v{t2}, {SCL}
    s_cmp_lg_u32 s3, 0
    s_cbranch_scc1 L_nolr
    s_mov_b32 s13, 0
    s_waitcnt vmcnt(1)
    s_branch L_lrc
    L_lrp:
    s_mov_b64 exec, vcc
    {lrl}
    s_mov_b64 exec, -1
    s_waitcnt vmcnt(0)
    L_lrc:
    s_add_u32 s13, s13, 1
    """)
    tagcheck(ml+2)
    spin_tail("L_lrp", "L_lro")
    a(f"v_mul_f32 v{t3}, v{t3}, v{ml}")
    red32("v_add_f32", t0, t3, t1)
    a(f"v_rcp_f32 v{t0}, v{t0}\ns_nop 0\nds_write_b32 v{t2}, v{t0}\nL_nolr:")
    a("s_waitcnt lgkmcnt(0)\ns_barrier")
    stamp("cp", True)
    for Td in range(4): a(f"ds_read_b64_tr_b16 {vr(cf+2*Td,2)}, v{vMS} offset:{CP+512*Td}")
    a(f"ds_read_b32 v{vSc}, v{t2}")
    for Td in range(4):
        a(f"s_waitcnt lgkmcnt({4-Td})")
        a(f"v_mfma_f32_16x16x16_bf16 {vr(D2+4*Td,4)}, {vr(cf+2*Td,2)}, {vr(ones,2)}, 0")
    for i in range(8): a(f"v_cvt_pk_bf16_f32 v{qp+i}, v{D2+2*i}, v{D2+2*i+1}")
    for ks in range(2):
        for T in range(5):
            a(f"v_mfma_f32_16x16x32_bf16 {vr(OUT+4*T,4)}, {vr(qp+4*ks,4)}, {vr(AO+8*T+4*ks,4)}, {'0' if ks == 0 else vr(OUT+4*T,4)}")
    R = OUT
    a(f"""
    s_waitcnt lgkmcnt(0)
    v_cndmask_b32 v{R}, v{R}, v{R+4}, s[26:27]
    v_cndmask_b32 v{R+8}, v{R+8}, v{R+12}, s[26:27]
    v_cndmask_b32 v{R}, v{R}, v{R+8}, s[28:29]
    v_mul_f32 v{R+16}, v{vSc}, v{R+16}
    v_mul_f32 v{R}, v{vSc}, v{R}
    global_store_dword v{vPC}, v{R}, s[40:41] sc1
    s_mov_b64 exec, 0xffff
    global_store_dword v{vPC}, v{R+16}, s[40:41] offset:256 sc1
    s_mov_b64 exec, -1
    """)
    stamp("pc")
    a("s_branch L_fin")
    po_v = V.n
    role[0] = "A"
    CK = BIG; CV = BIG + 64; QB = BIG + 128
    V = VA(BIG + 192)
    MXR = QB; U = QB + 8; DP = QB + 24; DL = QB + 40; on4 = QB + 44
    DS = Dq
    ba = V(8); vPBs = V(4); vMLs = V(); vq = V(); vqw = V(2); vqr = V(2); vPr = V(); vPw = V(); vMw = V(); vMr = V()
    QP = V(8, 2)
    ml = pub
    CKV, QAS, PL, MX = 0, 131072, 147456, 151552
    EA = opt("ea", 4); CLR = opt("clr", 1)
    def pbclear():
        a(f"""
        s_lshl_b32 s12, s78, 4
        s_lshl_b32 s13, s3, 1
        s_add_u32 s12, s12, s13
        s_lshl_b32 s12, s12, 15
        s_lshl_b32 s13, s79, 10
        s_add_u32 s12, s12, s13
        s_add_u32 s12, s12, {PB_OFF}
        v_lshl_add_u32 v{t0}, v{vL}, 4, s12
        v_add_u32 v{t1}, 0x8000, v{t0}
        global_store_dwordx4 v{t0}, {vr(Dq,4)}, s[40:41] sc1
        global_store_dwordx4 v{t1}, {vr(Dq,4)}, s[40:41] sc1
        """)
    a("L_roleA:")
    if CLR == 0: pbclear()
    a(f"""
    s_lshl_b32 s8, s79, 17
    s_lshl_b32 s9, s3, 14
    s_add_u32 s8, s8, s9
    s_lshl_b32 s10, s78, 13                  ; rotation
    v_lshlrev_b32 v{t3}, 4, v{vL}
    """)
    for k in range(8): a(f"v_xor_b32 v{ba+k}, {32*k}, v{t3}")
    srd(48, 18, SZ['ckv'])
    def ckv_ld(jj):
        if jj % 4 == 0: a("s_add_u32 s11, s9, s10\ns_add_u32 s14, s8, s10\ns_mov_b32 m0, s11\ns_add_u32 s10, s10, 4096\ns_and_b32 s10, s10, 0x3fff")
        a(f"buffer_load_dwordx4 v{ba+(jj&7)}, s[48:51], s14 offen offset:{1024*(jj&3)}{nt('ckv')} lds")
    if o.get("apf"):
        a(f"""
        v_lshrrev_b32 v{t0}, 2, v{vL}
        v_and_b32 v{t1}, 1, v{t0}
        v_lshl_add_u32 v{t1}, v{vS}, 2, v{t1}
        v_and_b32 v{t2}, 3, v{vL}
        v_lshlrev_b32 v{t2}, 6, v{t2}
        v_lshl_add_u32 v{t1}, v{t1}, 13, v{t2}
        s_lshl_b32 s12, s78, 21
        s_lshl_b32 s13, s3, 18
        s_add_u32 s12, s12, s13
        s_lshl_b32 s13, s79, 8
        s_add_u32 s12, s12, s13
        s_add_u32 s12, s12, 16384
        v_add_u32 v{t1}, s12, v{t1}
        global_load_dword v254, v{t1}, s[22:23]
        s_barrier
        """)
    a("s_cmp_eq_u32 s3, 0\ns_cbranch_scc1 L_a1\ns_barrier\nL_a1:")
    for jj in range(EA): ckv_ld(jj)
    a("s_cmp_eq_u32 s3, 0\ns_cbranch_scc1 L_a2")
    gettag()
    a("L_a2:\ns_barrier")
    for jj in range(EA, 8): ckv_ld(jj)
    if CLR == 1: pbclear()
    QE = o.get("qe")
    if QE:
        a(f"""
        s_lshl_b32 s12, s78, 5
        s_lshr_b32 s13, s3, 2
        s_lshl_b32 s13, s13, 4
        s_add_u32 s12, s12, s13
        s_lshl_b32 s13, s15, 1
        s_add_u32 s12, s12, s13
        s_lshl_b32 s12, s12, 7
        s_add_u32 s12, s12, {FK_OFF}
        v_and_b32 v{t0}, 1, v{vL}
        v_lshl_add_u32 v{vWo}, v{t0}, 7, s12
        v_bfe_u32 v{t0}, v{vL}, 1, 1
        v_lshl_add_u32 v{vWo}, v{t0}, 10, v{vWo}
        global_load_dwordx2 {vr(QP,2)}, v{vWo}, s[40:41] sc1
        """)
    if not o.get("nocb"): a("s_barrier")
    for jj in range(8, 16): ckv_ld(jj)
    if CLR == 2: pbclear()
    a(f"""
    v_lshl_add_u32 v{t0}, v{vN}, 10, s9
    v_lshlrev_b32 v{t1}, 1, v{vE}
    v_xor_b32 v{t1}, v{t1}, v{vG}             ; g ^ 2(i&7)
    """)
    for q in range(4):
        a(f"v_xor_b32 v{t2}, {4*q}, v{t1}\nv_lshl_add_u32 v{ba+q}, v{t2}, 4, v{t0}")
    a(f"""
    v_xor_b32 v{t0}, v{vN}, v{vG}
    v_lshlrev_b32 v{t1}, 8, v{vG}
    v_lshl_add_u32 v{vqr}, v{t0}, 4, v{t1}
    v_add_u32 v{vqr}, {QAS}, v{vqr}
    v_xor_b32 v{vqr+1}, 64, v{vqr}
    s_lshl_b32 s12, s78, 19
    s_lshl_b32 s13, s79, 10
    s_add_u32 s12, s12, s13
    s_lshl_b32 s13, s3, 7
    s_add_u32 s12, s12, s13
    s_add_u32 s12, s12, {PB_OFF}
    v_lshl_add_u32 v{vPBs}, v{vG}, 17, s12
    v_lshl_add_u32 v{vPBs}, v{vN}, 3, v{vPBs}
    v_add_u32 v{vPBs+1}, 0x8000, v{vPBs}
    v_add_u32 v{vPBs+2}, 0x10000, v{vPBs}
    v_add_u32 v{vPBs+3}, 0x18000, v{vPBs}
    v_lshlrev_b32 v{vPr}, 4, v{vL}
    v_add_u32 v{vPr}, {PL}, v{vPr}
    s_lshr_b32 s8, s3, 1
    s_lshl_b32 s8, s8, 10
    s_and_b32 s13, s3, 1
    s_lshl_b32 s13, s13, 3
    s_add_u32 s8, s8, s13
    v_add_u32 v{vPw}, s8, v{vPr}
    v_lshlrev_b32 v{vMr}, 5, v{vN}
    v_add_u32 v{vMr}, {MX}, v{vMr}
    s_lshl_b32 s8, s3, 2
    v_add_u32 v{vMw}, s8, v{vMr}
    s_lshl_b32 s10, s78, 14
    s_lshl_b32 s8, s79, 9
    s_add_u32 s10, s10, s8
    s_add_u32 s10, s10, {ML_OFF}
    v_lshl_add_u32 v{vMLs}, v{vN}, 4, s10
    s_lshl_b32 s11, s78, 14
    s_lshl_b32 s12, s3, 11
    s_add_u32 s11, s11, s12
    s_lshl_b32 s12, s4, 15
    s_add_u32 s11, s11, s12
    s_add_u32 s11, s11, {QA_OFF}
    v_lshl_add_u32 v{vq}, v{vL}, 4, s11
    s_lshl_b32 s8, s3, 1
    v_xor_b32 v{t0}, s8, v{vE}
    v_lshlrev_b32 v{t1}, 8, v{vL}
    v_lshl_add_u32 v{vqw}, v{t0}, 4, v{t1}
    v_add_u32 v{vqw}, {QAS}, v{vqw}
    v_xor_b32 v{vqw+1}, 16, v{vqw}
    s_cmp_eq_u32 s3, 3
    s_cselect_b32 s42, 0xffff, 0
    s_mov_b32 s43, 0
    """)
    qal = [f"global_load_dwordx4 {vr(QP+4*j,4)}, v{vq}, s[40:41] offset:{1024*j} sc1" for j in range(2)]
    if QE:
        a(f"""
        s_mov_b32 s13, 0
        s_waitcnt vmcnt({opt("qew", 4)})
        s_branch L_fkc
        L_fkp:
        global_load_dwordx2 {vr(QP,2)}, v{vWo}, s[40:41] sc1
        s_waitcnt vmcnt(0)
        L_fkc:
        s_add_u32 s13, s13, 1
        """)
        tagcheck(QP)
        spin_tail("L_fkp", "L_fko")
        if o.get("qeb"): a("s_barrier")
        for l in qal: a(l)
        a("s_waitcnt vmcnt(2) lgkmcnt(0)")
    else:
        a(f"""
        s_cmp_lg_u32 s3, 1
        s_cbranch_scc1 L_fko
        s_lshl_b32 s11, s78, 12
        s_add_u32 s11, s11, {FK_OFF}
        v_and_b32 v{t0}, 31, v{vL}
        v_lshl_add_u32 v{t3}, v{t0}, 7, s11
        """)
        flag_wait(t3, QP, "L_fk")
        a("s_waitcnt vmcnt(0) lgkmcnt(0)")
    stamp("ckvl", True)
    for t in range(16):
        a(f"ds_read_b128 {vr(CK+4*t,4)}, v{ba+(t&3)} offset:{256*(t>>2)}")
        if t == 11: a("s_waitcnt lgkmcnt(6)")
    a(f"""
    v_lshrrev_b32 v{t0}, 2, v{vL}             ; 4g+r
    v_and_b32 v{t1}, 7, v{t0}                 ; key&7
    v_lshlrev_b32 v{t0}, 10, v{t0}
    v_and_b32 v{t2}, 3, v{vL}
    v_lshl_add_u32 v{t0}, v{t2}, 3, v{t0}
    s_lshr_b32 s8, s3, 1
    s_lshl_b32 s8, s8, 8
    v_add_u32 v{t0}, s8, v{t0}
    s_and_b32 s8, s3, 1
    s_lshl_b32 s8, s8, 2
    v_xor_b32 v{t1}, s8, v{t1}
    """)
    for T in range(4):
        a(f"v_xor_b32 v{t2}, {T}, v{t1}\nv_lshl_add_u32 v{ba+T}, v{t2}, 5, v{t0}\nv_add_u32 v{ba+4+T}, 0x10000, v{ba+T}")
    a("s_barrier")
    stamp("ckv")
    if not QE:
        for l in qal: a(l)
    for T in range(4):
        a("s_waitcnt lgkmcnt(4)")
        for t in range(4):
            for aa in range(2):
                off = (32*t + 16*aa) * 1024
                a(f"ds_read_b64_tr_b16 {vr(CV+16*T+4*t+2*aa,2)}, v{ba+T+4*(off>>16)} offset:{off & 0xffff}")
    a("s_mov_b32 s13, 0\ns_branch L_qac\nL_qap:")
    masked(qal)
    a("L_qac:\ns_add_u32 s13, s13, 1")
    for j in range(2):
        a(f"s_waitcnt vmcnt({1-j})")
        a(f"ds_write_b128 v{vqw+j}, {vr(QP+4*j,4)}")
        sent_mask(j, QP+4*j, t2)
    or_masks(2)
    spin_tail("L_qap", "L_qao")
    stamp("qap")
    a("s_waitcnt lgkmcnt(0)\ns_barrier")
    def qread(t): a(f"ds_read_b128 {vr(QB+4*t,4)}, v{vqr+(t&1)} offset:{1024*t}")
    PRE = 12
    for t in range(PRE): qread(t)
    for t in range(16):
        issued = min(16, PRE + t)
        a(f"s_waitcnt lgkmcnt({issued - t - 1})")
        a(f"v_mfma_f32_16x16x32_bf16 {vr(DS,4)}, {vr(CK+4*t,4)}, {vr(QB+4*t,4)}, {'0' if t == 0 else vr(DS,4)}")
        if t + PRE < 16: qread(t + PRE)
    stamp("scm")
    a(f"""
    v_max3_f32 v{t0}, v{DS}, v{DS+1}, v{DS+2}
    v_max_f32 v{t0}, v{t0}, v{DS+3}
    """)
    xrow("v_max_f32", t0, t1)
    a(f"""
    s_mov_b64 exec, 0xffff
    ds_write_b32 v{vMw}, v{t0}
    s_mov_b64 exec, -1
    v_mov_b32 v{on4}, 0x3f803f80
    v_mov_b32 v{on4+1}, 0x3f803f80
    v_mov_b32 v{on4+2}, 0x3f803f80
    v_mov_b32 v{on4+3}, 0x3f803f80
    s_waitcnt lgkmcnt(0)
    s_barrier
    ds_read_b128 {vr(MXR,4)}, v{vMr}
    ds_read_b128 {vr(MXR+4,4)}, v{vMr} offset:16
    """)
    a(f"""
    s_waitcnt lgkmcnt(1)
    v_max3_f32 v{t0}, v{MXR}, v{MXR+1}, v{MXR+2}
    s_waitcnt lgkmcnt(0)
    v_max3_f32 v{t1}, v{MXR+3}, v{MXR+4}, v{MXR+5}
    v_max3_f32 v{t0}, v{t0}, v{MXR+6}, v{MXR+7}
    v_max_f32 v{t0}, v{t0}, v{t1}
    v_ceil_f32 v{ml}, v{t0}
    s_mov_b64 exec, s[42:43]
    global_store_dwordx4 v{vMLs}, {vr(ml,4)}, s[40:41] sc1
    s_mov_b64 exec, -1
    """)
    for r in range(4): a(f"v_sub_f32 v{DS+r}, v{DS+r}, v{ml}")
    for r in range(4): a(f"v_exp_f32 v{DS+r}, v{DS+r}")
    a(f"""
    v_cvt_pk_bf16_f32 v{DS}, v{DS}, v{DS+1}
    v_cvt_pk_bf16_f32 v{DS+1}, v{DS+2}, v{DS+3}
    ds_write_b64 v{vPw}, {vr(DS,2)}
    s_waitcnt lgkmcnt(0)
    s_barrier
    """)
    stamp("exp", True)
    for t in range(4): a(f"ds_read_b128 {vr(U+4*t,4)}, v{vPr} offset:{1024*t}")
    a("s_cmp_lg_u32 s3, 0\ns_cbranch_scc1 L_nol")
    for t in range(4):
        a(f"s_waitcnt lgkmcnt({3-t})")
        a(f"v_mfma_f32_16x16x32_bf16 {vr(DL,4)}, {vr(on4,4)}, {vr(U+4*t,4)}, {'0' if t == 0 else vr(DL,4)}")
    a("L_nol:")
    for t in range(4):
        a(f"s_waitcnt lgkmcnt({3-t})")
        for T in range(4):
            a(f"v_mfma_f32_16x16x32_bf16 {vr(DP+4*T,4)}, {vr(U+4*t,4)}, {vr(CV+16*T+4*t,4)}, {'0' if t == 0 else vr(DP+4*T,4)}")
        if t == 1:
            a(f"""
            s_cmp_lg_u32 s3, 0
            s_cbranch_scc1 L_nol2
            v_mov_b32 v{ml}, v{DL}
            s_mov_b64 exec, 0xffff
            global_store_dwordx4 v{vMLs}, {vr(ml,4)}, s[40:41] offset:256 sc1
            s_mov_b64 exec, -1
            L_nol2:
            """)
    OB = CK
    for r in range(4): a(f"v_cvt_pk_bf16_f32 v{OB+2*r}, v{DP+r}, v{DP+4+r}")
    for r in range(4):
        a(f"v_cvt_pk_bf16_f32 v{OB+2*r+1}, v{DP+8+r}, v{DP+12+r}")
        a(f"global_store_dwordx2 v{vPBs+r}, {vr(OB+2*r,2)}, s[40:41] sc1")
    stamp("pbst")
    gx = CV; gg = CV + 6; vg = CV + 12; RB = CV + 16; RS = CV + 32; RC = CV + 48
    a(f"""
    s_lshr_b32 s8, s3, 1
    s_cmp_lg_u32 s8, 1
    s_cbranch_scc1 L_fin
    s_cmp_ge_u32 s69, 40
    s_cbranch_scc1 L_fin
    v_mul_u32_u24 v{t1}, 20, v{vL}
    global_load_dwordx4 {vr(gx,4)}, v{t1}, s[16:17]
    global_load_dword v{gx+4}, v{t1}, s[16:17] offset:16
    global_load_dwordx4 {vr(gg,4)}, v{t1}, s[34:35]
    global_load_dword v{gg+4}, v{t1}, s[34:35] offset:16
    s_lshr_b32 s8, s69, 3
    s_lshl_b32 s8, s8, 1
    s_and_b32 s9, s3, 1
    s_add_u32 s8, s8, s9
    s_mul_i32 s15, s4, 10
    s_add_u32 s15, s15, s8
    v_lshrrev_b32 v{t2}, 1, v{vL}
    v_mul_u32_u24 v{t0}, {ROWB}, v{t2}
    v_and_b32 v{t1}, 1, v{vL}
    v_lshl_add_u32 v{t0}, v{t1}, 4, v{t0}
    s_mul_i32 s9, s4, 384
    s_lshl_b32 s8, s8, 5
    s_add_u32 s9, s9, s8
    s_add_u32 s9, s9, {PC_OFF}
    v_add_u32 v{ba}, s9, v{t0}
    v_add_u32 v{ba+1}, {32*ROWB}, v{ba}
    v_add_u32 v{ba+2}, {64*ROWB}, v{ba}
    v_add_u32 v{ba+3}, {96*ROWB}, v{ba}
    v_add_u32 v{vPBs}, {PF_OFF-PC_OFF}, v{ba}
    v_add_u32 v{vPBs+1}, {PF_OFF-PC_OFF}, v{ba+1}
    s_lshl_b32 s9, s15, 4
    v_lshl_add_u32 v{ba+4}, v{t1}, 3, s9
    v_lshl_add_u32 v{ba+4}, v{vG}, 1, v{ba+4}
    v_lshlrev_b32 v{ba+5}, 7, v{vL}
    v_add_u32 v{ba+7}, {FK_OFF}, v{ba+5}
    v_add_u32 v{ba+5}, {FO_OFF}, v{ba+5}
    v_add_u32 v{ba+6}, 8192, v{ba+5}
    v_mov_b32 v{RB+4}, 0
    v_mov_b32 v{RB+5}, 0
    v_mov_b32 v{RB+6}, 0
    v_mov_b32 v{RB+7}, 0
    """)
    a(f"v_mov_b32 v{t3}, 0\ns_waitcnt vmcnt(0)")
    for i in range(5):
        a(f"""
        v_lshlrev_b32 v{t0}, 16, v{gx+i}
        v_lshlrev_b32 v{t1}, 16, v{gg+i}
        v_mul_f32 v{t0}, v{t0}, v{t1}
        v_and_b32 v{t1}, 0xffff0000, v{gx+i}
        v_and_b32 v{t2}, 0xffff0000, v{gg+i}
        v_mul_f32 v{t1}, v{t1}, v{t2}
        v_cvt_pk_bf16_f32 v{t0}, v{t0}, v{t1}
        v_lshlrev_b32 v{t1}, 16, v{t0}
        v_and_b32 v{t0}, 0xffff0000, v{t0}
        v_add_f32 v{t3}, v{t3}, v{t1}
        v_add_f32 v{t3}, v{t3}, v{t0}
        """)
    allred("v_add_f32", t3, t3, t0)
    rbf(t3, t3)
    a(f"""
    v_mul_f32 v{t3}, {NLOG2E}, v{t3}
    v_exp_f32 v{t3}, v{t3}
    v_add_f32 v{t3}, 1.0, v{t3}
    v_rcp_f32 v{t3}, v{t3}
    """)
    rbf(vg, t3)
    a(f"v_sub_f32 v{vg+1}, 1.0, v{vg}")
    rbf(vg+1, vg+1)
    a(f"""
    s_mov_b32 s13, 0
    s_mov_b64 {MK[0]}, -1
    s_mov_b64 {MK[1]}, -1
    L_frp:
    """)
    masked([f"global_load_dwordx2 {vr(RS,2)}, v{ba+5}, s[40:41] sc1", f"global_load_dwordx2 {vr(RS+2,2)}, v{ba+6}, s[40:41] sc1"])
    a(f"""
    s_add_u32 s13, s13, 1
    s_waitcnt vmcnt(0)
    v_cmp_ne_u64 {MK[0]}, {TAG}, {vr(RS,2)}
    v_cmp_ne_u64 {MK[1]}, {TAG}, {vr(RS+2,2)}
    """)
    or_masks(2)
    spin_tail("L_frp", "L_fro")
    stamp("fo")
    pcl = [f"global_load_dwordx4 {vr(RB+4*j,4)}, v{vPBs+j}, s[40:41] sc1" for j in range(2)] + [f"global_load_dwordx4 {vr(RC+4*j,4)}, v{ba+j}, s[40:41] sc1" for j in range(4)]
    regs = [RB, RB+4, RC, RC+4, RC+8, RC+12]
    a(pcl[0])
    a(f"s_mov_b32 exec_hi, 0xfff\n{pcl[1]}\ns_mov_b32 exec_hi, -1")
    for l in pcl[2:]: a(l)
    a("s_mov_b32 s13, 0\ns_branch L_pcc\nL_pcp:")
    masked(pcl)
    a("L_pcc:\ns_add_u32 s13, s13, 1")
    for j in range(6):
        a(f"s_waitcnt vmcnt({5-j})")
        sent_mask(j, regs[j], t2)
        if j == 1:
            for r in range(4): a(f"v_add_f32 v{RB+8+r}, v{RB+r}, v{RB+4+r}")
            for r in range(4): a(f"v_mul_f32 v{RB+8+r}, v{vg+1}, v{RB+8+r}")
    or_masks(6)
    spin_tail("L_pcp", "L_pco")
    stamp("pc")
    RB = RB + 8
    R = RC
    for r in range(0, 4, 2): a(f"v_pk_add_f32 {vr(R+r,2)}, {vr(R+r,2)}, {vr(R+4+r,2)}\nv_pk_add_f32 {vr(R+8+r,2)}, {vr(R+8+r,2)}, {vr(R+12+r,2)}")
    for r in range(0, 4, 2): a(f"v_pk_add_f32 {vr(R+r,2)}, {vr(R+r,2)}, {vr(R+8+r,2)}")
    for r in range(4): a(f"v_fmac_f32 v{RB+r}, v{vg}, v{RC+r}")
    R = RB
    a(f"""
    v_permlane32_swap_b32 v{R}, v{R+2}
    v_permlane32_swap_b32 v{R+1}, v{R+3}
    v_add_f32 v{R}, v{R}, v{R+2}
    v_add_f32 v{R+1}, v{R+1}, v{R+3}
    v_permlane16_swap_b32 v{R}, v{R+1}
    v_add_f32 v{R}, v{R}, v{R+1}
    v_add_f32_dpp v{R}, v{R}, v{R} row_ror:8 {DPPM}
    v_add_f32_dpp v{R}, v{R}, v{R} row_ror:4 {DPPM}
    v_add_f32_dpp v{R}, v{R}, v{R} row_ror:2 {DPPM}
    v_cvt_pk_bf16_f32 v{R}, v{R}, v{R}
    """)
    setexec(0x0003000300030003)
    a(f"global_store_short v{ba+4}, v{R}, s[36:37]{' sc1' if o.get('osc') else ''}")
    a(f"""
    s_cmp_lg_u32 s15, 0
    s_cbranch_scc1 L_noep
    s_mov_b64 exec, 1
    v_mov_b32 v{t0}, {EP_OFF}
    global_store_dwordx2 v{t0}, {vr(pub+2,2)}, s[40:41]{' sc1' if o.get('osc') else ''}
    L_noep:
    """)
    setexec(-1)
    stamp("out")
    a("L_fin:")
    if probe:
        prole, _, amp = probe; idx = 1
        a(f"""
        s_waitcnt lgkmcnt(0)
        s_cmp_eq_u32 s{80+2*idx}, 0
        s_cbranch_scc1 L_end
        s_sub_u32 s8, s{80+2*idx}, s80
        s_mul_i32 s8, s8, {amp}
        s_min_u32 s8, s8, {opt("fix", 100000)}
        L_probe:
        s_sleep 2
        s_memrealtime s[10:11]
        s_waitcnt lgkmcnt(0)
        s_sub_u32 s10, s10, s80
        s_cmp_lt_u32 s10, s8
        s_cbranch_scc1 L_probe
        """)
    if DEV:
        a(f"""
        s_waitcnt vmcnt(0)
        s_memrealtime s[100:101]
        s_waitcnt lgkmcnt(0)
        s_lshl_b32 s7, s2, 3
        s_add_u32 s7, s7, s3
        s_mul_i32 s7, s7, {NST*4}
        s_add_u32 s7, s7, {STAMP_OFF}
        s_mov_b64 exec, 1
        v_mov_b32 v3, s7
        """)
        for i in range(NST):
            a(f"v_mov_b32 v4, s{80+2*i}\nglobal_store_dword v3, v4, s[40:41] offset:{4*i}")
    a("L_end:\ns_endpgm")
    a(".fill 3600, 4, 0xbf800000")
    lines = hazard.fix(a.lines)
    nv = max(po_v, V.n, BIGEND, k_v)
    if DEV:
        for r_ in want: lines.insert(0, f"; STAMPS {r_} start " + " ".join(want[r_] + ["-"] * (NST - 2 - len(want[r_]))) + " end")
    return single("\n".join(lines) + "\n", 256, 512, 152064, vgpr=256, sgpr=102, accum=256), nv

if __name__ == "__main__":
    out = sys.argv[1]
    DEV = "dev" in sys.argv[2:]
    txt, nv = build(DEV, {k: True for k in sys.argv[2:]})
    open(out, "w").write(txt)
    print("vgprs", nv)
```

```python
import sys, math, struct
from genlib import *
import hazard

def f2u(x): return struct.unpack("<I", struct.pack("<f", x))[0]

QP_OFF, HP_OFF, FK_OFF, EP_OFF, FO_OFF, ML_OFF, PC_OFF, PF_OFF, QA_OFF, PB_OFF = 0x0, 0x40000, 0x60000, 0x64000, 0x68000, 0x70000, 0x80000, 0x100000, 0x180000, 0x200000
ROWB = 4096
SPIN = 200000
DPPM = "row_mask:0xf bank_mask:0xf"
NLOG2E = hex(f2u(-math.log2(math.e)))

def build(DEV=False, opts=None):
    o = dict(opts or {})
    def opt(name, dflt):
        for k in o:
            if k.startswith(name + "="): return int(k.split("=")[1])
        return dflt
    a = Asm()
    def nt(k): return " nt" if (o.get("nt") or o.get("nt_" + k)) else ""
    NST = 11
    probe = None
    for k in o:
        if k.startswith("probe"):
            _, role, idx, amp = k.split("_"); probe = (role, idx, int(amp))
    role = ["O"]
    want = {"O": "p1 wo go pb cp pc".split(), "K": "p1 wuk qp qa hp pf".split(), "A": "p1 ckv qap scm exp pbst fo pc out".split()}
    for k in o:
        for r_ in want:
            if k.startswith("s" + r_ + "="): want[r_] = k.split("=")[1].split(",")
    if probe: want = {"O": [], "K": [], "A": []}; want[probe[0]] = [probe[1]]
    def stamp(nm, wait=False):
        if not (DEV or probe): return
        if nm == "start": a("s_memrealtime s[80:81]"); return
        w = want[role[0]]
        if nm in w:
            i = w.index(nm) + 1
            a(f"s_memrealtime s[{80+2*i}:{81+2*i}]")
            if wait: a("s_waitcnt lgkmcnt(0)")
    class VA:
        def __init__(s, start): s.n = start
        def __call__(s, k=1, al=1):
            s.n = (s.n + al - 1) // al * al
            r = s.n; s.n += k
            assert s.n <= 254
            return r
    def vr(b, k): return f"v[{b}:{b+k-1}]"
    def srd(dst, src, size):
        a(f"s_mov_b32 s{dst}, s{src}\ns_mov_b32 s{dst+1}, s{src+1}\ns_mov_b32 s{dst+2}, {size}\ns_mov_b32 s{dst+3}, 0x20000")
    def setexec(mask):
        if mask == -1: a("s_mov_b64 exec, -1")
        elif mask < (1 << 31): a(f"s_mov_b64 exec, {hex(mask)}")
        else: a(f"s_mov_b32 exec_lo, {hex(mask & 0xffffffff)}\ns_mov_b32 exec_hi, {hex(mask >> 32)}")
    def spin_tail(Lp, Lo):
        a(f"s_cmp_gt_u32 s13, {SPIN}\ns_cbranch_scc1 {Lo}\ns_cbranch_vccnz {Lp}\n{Lo}:")
    def xrow(op, x, t):
        a(f"""
        v_mov_b32 v{t}, v{x}
        v_permlane16_swap_b32 v{x}, v{t}
        {op} v{x}, v{x}, v{t}
        v_mov_b32 v{t}, v{x}
        v_permlane32_swap_b32 v{x}, v{t}
        {op} v{x}, v{x}, v{t}
        """)
    def allred(op, dst, src, t):
        a(f"{op}_dpp v{dst}, v{src}, v{src} row_ror:1 {DPPM}")
        for d in (2, 4, 8): a(f"{op}_dpp v{dst}, v{dst}, v{dst} row_ror:{d} {DPPM}")
        xrow(op, dst, t)
    def red32(op, dst, src, t):
        a(f"{op}_dpp v{dst}, v{src}, v{src} quad_perm:[1,0,3,2] {DPPM}")
        a(f"{op}_dpp v{dst}, v{dst}, v{dst} quad_perm:[2,3,0,1] {DPPM}")
        a(f"{op}_dpp v{dst}, v{dst}, v{dst} row_ror:8 {DPPM}")
        xrow(op, dst, t)
    def rbf(dst, src):
        a(f"v_cvt_pk_bf16_f32 v{dst}, v{src}, v{src}\nv_and_b32 v{dst}, 0xffff0000, v{dst}")
    TAG = "s[70:71]"
    MK = ["s[72:73]", "s[74:75]", "s[76:77]", "s[66:67]", "s[64:65]", "s[62:63]"]
    def tagcheck(p): a(f"v_cmp_ne_u64 vcc, {TAG}, {vr(p,2)}")
    def sent_mask(k, R, t):
        a(f"v_max3_u32 v{t}, v{R}, v{R+1}, v{R+2}\nv_max_u32 v{t}, v{t}, v{R+3}\nv_cmp_eq_u32 {MK[k]}, -1, v{t}")
    def or_masks(n):
        a("s_nop 0")
        a(f"s_or_b64 vcc, {MK[0]}, {MK[1]}")
        for k in range(2, n): a(f"s_or_b64 vcc, vcc, {MK[k]}")
    def masked(loads):
        for k, l in enumerate(loads): a(f"s_mov_b64 exec, {MK[k]}\n{l}")
        a("s_mov_b64 exec, -1")
    def swz1280(dst, n, wsel):
        for j in range(n):
            a(f"""
            v_add_u32 v{t0}, {64*j}, v{vL}
            v_mul_u32_u24 v{t1}, 820, v{t0}
            v_lshrrev_b32 v{t1}, 16, v{t1}
            v_lshl_add_u32 v{t1}, v{t1}, 1, {wsel}
            v_xor_b32 v{t0}, v{t0}, v{t1}
            v_lshlrev_b32 v{dst+j}, 4, v{t0}
            """)
    def tr1280(dst, base):
        a(f"""
        v_lshrrev_b32 v{t1}, 2, v{vL}
        v_and_b32 v{t3}, 7, v{t1}
        v_and_b32 v{t2}, 3, v{vL}
        v_mul_u32_u24 v{t1}, 1280, v{t1}
        v_lshl_add_u32 v{t1}, v{t2}, 3, v{t1}
        v_add_u32 v{t1}, {base}, v{t1}
        s_mul_i32 s13, s3, 5
        """)
        for T in range(5):
            a(f"v_xor_b32 v{dst+T}, s13, v{t3}\nv_lshl_add_u32 v{dst+T}, v{dst+T}, 5, v{t1}\ns_add_u32 s13, s13, 1")
    def flag_store(sreg):
        a(f"""
        v_lshl_add_u32 v{t0}, v{vL}, 3, {sreg}
        s_mov_b64 exec, 0xffff
        global_store_dwordx2 v{t0}, {vr(pub+2,2)}, s[40:41] sc1
        s_mov_b64 exec, -1
        """)
    def flag_wait(va, R, lab, first=True):
        if first: a(f"s_mov_b32 s13, 0\ns_mov_b64 vcc, -1")
        else: a(f"s_mov_b32 s13, 0\ns_branch {lab}c")
        a(f"""
        {lab}p:
        s_mov_b64 exec, vcc
        global_load_dwordx2 {vr(R,2)}, v{va}, s[40:41] sc1
        s_mov_b64 exec, -1
        {lab}c:
        s_add_u32 s13, s13, 1
        s_waitcnt vmcnt(0)
        """)
        tagcheck(R)
        spin_tail(lab + "p", lab + "o")
    def rowmasks():
        a("s_mov_b32 s26, 0xffff0000\ns_mov_b32 s27, 0xffff0000\ns_mov_b32 s28, 0\ns_mov_b32 s29, -1")
    def rowstore(R, va):
        a(f"""
        v_cndmask_b32 v{R}, v{R}, v{R+4}, s[26:27]
        v_cndmask_b32 v{R+8}, v{R+8}, v{R+12}, s[26:27]
        v_cndmask_b32 v{R}, v{R}, v{R+8}, s[28:29]
        global_store_dword v{va}, v{R}, s[40:41] sc1
        s_mov_b32 exec_hi, 0
        global_store_dword v{va}, v{R+16}, s[40:41] offset:256 sc1
        s_mov_b32 exec_hi, -1
        """)
    def rowclear(sidx, off):
        a(f"""
        s_mul_i32 s8, {sidx}, {ROWB}
        s_add_u32 s8, s8, {off}
        v_lshl_add_u32 v{t0}, v{vL}, 4, s8
        s_mov_b32 exec_lo, 0xffffff
        s_mov_b32 exec_hi, 0xffffff
        global_store_dwordx4 v{t0}, {vr(Dq,4)}, s[40:41] sc1
        global_store_dwordx4 v{t0}, {vr(Dq,4)}, s[40:41] offset:1024 sc1
        global_store_dwordx4 v{t0}, {vr(Dq,4)}, s[40:41] offset:2048 sc1
        global_store_dwordx4 v{t0}, {vr(Dq,4)}, s[40:41] offset:3072 sc1
        s_mov_b64 exec, -1
        """)

    vL, vS, vE, vN, vG = 0, 1, 2, 3, 4
    t0, t1, t2, t3 = 6, 7, 8, 9
    pub = 10; msk = 14; Dq = 18; vWo = 5
    BIG = 22
    Y = BIG; WQ = BIG + 80; xd = BIG + 160; selE = BIG + 170; selO = BIG + 174
    BIGEND = BIG + 178
    if DEV or probe:
        for i in range(1, NST): a(f"s_mov_b32 s{80+2*i}, 0")
    stamp("start")
    a(f"""
    s_cmp_ge_u32 s2, 256
    s_cbranch_scc1 L_end
    s_load_dwordx16 s[16:31], s[0:1], 0
    s_load_dwordx2 s[40:41], s[0:1], 96
    s_load_dwordx8 s[32:39], s[0:1], 64
    v_lshrrev_b32 v1, 6, v0
    v_and_b32 v0, 63, v0
    v_readfirstlane_b32 s3, v1
    """)
    if not o.get("nocpf"):
        a(f"""
        s_cmp_lg_u32 s3, 3
        s_cbranch_scc1 L_nocpf
        s_cmp_ge_u32 s2, {opt("cpfn", 128)}
        s_cbranch_scc1 L_nocpf
        s_getpc_b64 s[42:43]
        v_lshlrev_b32 v{t0}, 6, v0
        v_add_u32 v{t1}, 8192, v{t0}
        global_load_dword v254, v{t0}, s[42:43]
        global_load_dword v255, v{t1}, s[42:43] offset:-4096
        global_load_dword v254, v{t1}, s[42:43]
        v_add_u32 v{t1}, 4096, v{t1}
        s_mov_b32 exec_hi, 0
        global_load_dword v255, v{t1}, s[42:43]
        s_mov_b32 exec_hi, -1
        L_nocpf:
        """)
    a(f"""
    s_and_b32 s4, s2, 7
    s_lshr_b32 s5, s2, 3
    v_and_b32 v3, 15, v0
    v_lshrrev_b32 v4, 4, v0
    v_lshrrev_b32 v1, 3, v0
    v_and_b32 v2, 7, v0
    v_mul_u32_u24 v{t0}, 40, v{vG}
    s_mul_i32 s8, s4, 160
    v_add_u32 v{t0}, s8, v{t0}
    v_mul_u32_u24 v{vWo}, {20*8192}, v{vG}
    v_lshl_add_u32 v{vWo}, v{vN}, 4, v{vWo}
    s_mul_i32 s8, s4, {80*8192}
    s_mov_b32 s9, s5                  ; q head
    s_lshl_b32 s10, s9, 8
    s_add_u32 s8, s8, s10
    s_mov_b32 s46, {SZ['wq']}
    s_mov_b32 s47, 0x20000
    s_lshr_b32 s68, s2, 6             ; 0,1: O  2: K  3: A
    s_cmp_eq_u32 s68, 2
    s_cselect_b32 s14, 2, 1
    s_cmp_ge_u32 s3, s14
    s_waitcnt lgkmcnt(0)
    s_load_dwordx2 {TAG}, s[40:41], {EP_OFF}
    s_cbranch_scc1 L_noP1a
    s_mov_b32 s44, s20
    s_mov_b32 s45, s21
    global_load_dwordx4 {vr(xd,4)}, v{t0}, s[16:17]
    global_load_dwordx4 {vr(xd+4,4)}, v{t0}, s[16:17] offset:16
    global_load_dwordx2 {vr(xd+8,2)}, v{t0}, s[16:17] offset:32
    s_cmp_lg_u32 s3, 0
    s_cbranch_scc1 L_nowq
    """)
    for u in range(20):
        a(f"buffer_load_dwordx4 {vr(WQ+4*u,4)}, v{vWo}, s[44:47], s8 offen{nt('wq')}\ns_add_u32 s8, s8, 8192")
    a(f"""
    L_nowq:
    s_barrier
    L_noP1a:
    v_and_b32 v{t0}, 1, v{vL}
    v_lshlrev_b32 v{t0}, 4, v{t0}
    v_mov_b32 v{t1}, 0xffff
    v_lshlrev_b32 v{t0}, v{t0}, v{t1}
    v_lshrrev_b32 v{t1}, 1, v{vE}
    s_and_b32 s7, s5, 3               ; O: sub
    s_bfe_u32 s6, s5, 0x20002
    s_lshl_b32 s6, s6, 3
    s_add_u32 s6, s6, s4              ; O: h
    s_and_b32 s15, s3, 3              ; cw
    s_and_b32 s78, s5, 1
    s_bfe_u32 s79, s5, 0x20001
    s_lshl_b32 s79, s79, 3
    s_add_u32 s79, s79, s4            ; K: h  A: chunk
    s_and_b32 s69, s2, 63
    """)
    for r in range(4):
        a(f"v_cmp_eq_u32 vcc, {r}, v{t1}\nv_cndmask_b32 v{msk+r}, 0, v{t0}, vcc")
    def gettag():
        a(f"s_waitcnt lgkmcnt(0)\ns_add_u32 s70, s70, 1\ns_add_u32 s71, s71, 0x9e3779b9\nv_mov_b32 v{pub+2}, s70\nv_mov_b32 v{pub+3}, s71")
    def gemv20(waits, vaddr, off):
        for u in range(20):
            if waits is not None: a(f"s_waitcnt vmcnt({19-u+waits})")
            a(f"v_mfma_f32_16x16x32_bf16 {vr(Dq,4)}, {vr(Y+4*u,4)}, {vr(WQ+4*u,4)}, {'0' if u == 0 else vr(Dq,4)}")
        a(f"""
        v_cvt_pk_bf16_f32 v{pub}, v{Dq}, v{Dq+1}
        v_cvt_pk_bf16_f32 v{pub+1}, v{Dq+2}, v{Dq+3}
        s_mov_b32 exec_hi, 0
        global_store_dwordx4 v{vaddr}, {vr(pub,4)}, s[40:41] offset:{off} sc1
        s_mov_b32 exec_hi, -1
        """)
    a(f"""
    s_cmp_ge_u32 s3, s14
    s_cbranch_scc1 L_noP1b
    v_mov_b32 v{t2}, 0x0c0c0c0c
    s_mov_b32 s12, 0x01000100
    s_mov_b32 s13, 0x03020302
    """)
    for r in range(4):
        a(f"v_bfi_b32 v{selE+r}, v{msk+r}, s12, v{t2}\nv_bfi_b32 v{selO+r}, v{msk+r}, s13, v{t2}")
    a(f"""
    s_lshl_b32 s12, s9, 3
    s_add_u32 s12, s12, s4
    s_lshl_b32 s12, s12, 10
    v_lshl_add_u32 v{t3}, v{vL}, 4, s12
    s_cmp_eq_u32 s3, 0
    s_cbranch_scc1 L_xw
    s_waitcnt vmcnt(0)
    L_xw:
    s_waitcnt vmcnt(20)
    """)
    for u in range(20):
        for r in range(4):
            a(f"v_perm_b32 v{Y+4*u+r}, v{xd+u//2}, v{xd+u//2}, v{(selO if u & 1 else selE)+r}")
    gettag()
    a("s_cmp_lg_u32 s3, 0\ns_cbranch_scc1 L_noP1b")
    gemv20(0, t3, QP_OFF + 512)
    if DEV: a("s_memrealtime s[82:83]")
    a(f"""
    L_noP1b:
    v_mov_b32 v{Dq}, -1
    v_mov_b32 v{Dq+1}, -1
    v_mov_b32 v{Dq+2}, -1
    v_mov_b32 v{Dq+3}, -1
    s_cmp_eq_u32 s68, 3
    s_cbranch_scc1 L_roleA
    s_cmp_match_placeholder
    """.replace("s_cmp_match_placeholder", "s_cmp_lt_u32 s68, 2\ns_cbranch_scc1 L_roleO"))
    role[0] = "K"
    WK = BIG; QPR = BIG + 64; qf = BIG + 80; D2 = BIG + 96; acc = BIG + 112; yI = BIG + 116; qp = BIG + 118
    V = VA(BIGEND)
    ba = V(5); vQs = V(2); vH = V(); vPF = V(); HR = V(4, 2); HP = V(8, 2); hs = V(4, 2)
    A2 = WQ; FO = WQ + 20
    QL, WKL = 0, 1024
    a(f"""
    s_lshl_b32 s8, s79, 11
    s_lshl_b32 s13, s78, 10
    s_add_u32 s12, s8, s13
    s_add_u32 s12, s12, {QA_OFF + 512}
    s_cmp_ge_u32 s3, 4
    s_cbranch_scc1 L_kK
    s_cmp_lt_u32 s3, 2
    s_cbranch_scc1 L_kH1
    s_cmp_lg_u32 s3, 3
    s_cbranch_scc1 L_kH0
    v_and_b32 v{t1}, 31, v{vL}
    v_lshl_add_u32 v{t1}, v{t1}, 4, s12
    v_lshrrev_b32 v{t2}, 5, v{vL}
    v_lshl_add_u32 v{t1}, v{t2}, 16, v{t1}
    """)
    for j in range(4): a(f"global_store_dwordx4 v{t1}, {vr(Dq,4)}, s[40:41] sc1\nv_add_u32 v{t1}, 0x20000, v{t1}")
    rowclear("s69", PF_OFF)
    a("L_kH0:\ns_barrier")
    gettag()
    a(f"""
    s_cmp_lg_u32 s3, 3
    s_cbranch_scc1 L_kH1
    s_lshl_b32 s8, s69, 8
    s_add_u32 s8, s8, {FK_OFF}
    s_waitcnt vmcnt(0)
    """)
    flag_store("s8")
    a(f"""
    L_kH1:
    s_barrier
    s_branch L_kJ
    L_kK:
    """)
    srd(48, 22, SZ['wuk'])
    a(f"""
    v_xor_b32 v{t0}, v{vN}, v{vG}
    v_lshlrev_b32 v{t1}, 15, v{vG}
    v_lshl_add_u32 v{ba}, v{t0}, 4, v{t1}
    v_xor_b32 v{ba+1}, 64, v{ba}
    v_xor_b32 v{ba+2}, 128, v{ba}
    v_xor_b32 v{ba+3}, 192, v{ba}
    s_lshl_b32 s10, s78, 21
    s_lshl_b32 s11, s15, 19
    s_add_u32 s10, s10, s11
    s_lshl_b32 s11, s79, 8
    s_add_u32 s10, s10, s11
    s_lshl_b32 s11, s15, 14
    s_add_u32 s11, s11, {WKL}
    s_barrier
    """)
    EK = opt("ek", 8)
    def wuk_ld(j):
        step = 16*8192 if (j & 3) != 3 else (1 - 48) * 8192
        a(f"s_mov_b32 m0, s11\ns_add_u32 s11, s11, 1024\nbuffer_load_dwordx4 v{ba+(j&3)}, s[48:51], s10 offen{nt('wuk')} lds\ns_add_u32 s10, s10, {hex(step & 0xffffffff)}")
    for j in range(EK): wuk_ld(j)
    gettag()
    a(f"""
    s_lshl_b32 s13, s15, 7
    s_add_u32 s8, s12, s13
    v_lshl_add_u32 v{vQs}, v{vN}, 3, s8
    v_lshl_add_u32 v{vQs}, v{vG}, 16, v{vQs}
    v_add_u32 v{vQs+1}, 0x40000, v{vQs}
    v_and_b32 v{acc}, 1, v{vG}
    v_cmp_eq_u32 vcc, 1, v{acc}
    v_cndmask_b32 v{yI}, v{msk}, v{msk+2}, vcc
    v_cndmask_b32 v{yI+1}, v{msk+1}, v{msk+3}, vcc
    v_and_b32 v{yI}, 0x3f803f80, v{yI}
    v_and_b32 v{yI+1}, 0x3f803f80, v{yI+1}
    s_lshl_b32 s8, s15, 8
    v_lshl_add_u32 v{acc+1}, v{vN}, 4, s8
    v_lshl_add_u32 v{acc+1}, v{vG}, 3, v{acc+1}
    v_lshl_add_u32 v{acc+2}, v{vG}, 4, s8
    s_lshl_b32 s8, s15, 14
    s_add_u32 s8, s8, {WKL}
    v_xor_b32 v{t0}, v{vN}, v{vG}
    v_lshl_add_u32 v{t1}, v{vN}, 8, s8
    v_lshl_add_u32 v{t0}, v{t0}, 4, v{t1}
    v_xor_b32 v{t1}, 64, v{t0}
    v_xor_b32 v{t2}, 128, v{t0}
    v_xor_b32 v{t3}, 192, v{t0}
    s_lshl_b32 s8, s79, 13
    s_add_u32 s8, s8, {QP_OFF + 4096 + 512}
    v_lshl_add_u32 v{acc}, v{vL}, 4, s8
    v_lshrrev_b32 v{acc+3}, 5, v{vL}
    v_lshl_add_u32 v{acc}, v{acc+3}, 9, v{acc}
    s_mov_b32 s13, 0
    s_barrier
    """)
    for j in range(EK, 16): wuk_ld(j)
    qpl = [f"global_load_dwordx4 {vr(QPR+4*j,4)}, v{acc}, s[40:41] offset:{2048*j-4096} sc1" for j in range(4)]
    QAT = opt("qat", 3)
    for tau in range(4):
        if tau == QAT:
            for l in qpl: a(l)
        a(f"s_waitcnt vmcnt({12-4*tau+(4 if tau >= QAT else 0)}) lgkmcnt(8)")
        for ks in range(4): a(f"ds_read_b128 {vr(WK+16*tau+4*ks,4)}, v{[t0,t1,t2,t3][ks]} offset:{4096*tau}")
    if QAT == 4:
        for l in qpl: a(l)
    stamp("wuk")
    a("s_branch L_qpc\nL_qpp:")
    masked(qpl)
    a("L_qpc:\ns_add_u32 s13, s13, 1\ns_waitcnt vmcnt(0)")
    for j in range(4):
        a(f"v_mfma_f32_16x16x16_bf16 {vr(Dq,4)}, {vr(yI,2)}, {vr(QPR+4*j,2)}, {'0' if j == 0 else vr(Dq,4)}")
        a(f"v_cmp_ne_u64 {MK[j]}, {TAG}, {vr(QPR+4*j+2,2)}")
    or_masks(4)
    spin_tail("L_qpp", "L_qpo")
    stamp("qp")
    a(f"""
    v_cvt_pk_bf16_f32 v{Dq}, v{Dq}, v{Dq+1}
    v_cvt_pk_bf16_f32 v{Dq+1}, v{Dq+2}, v{Dq+3}
    s_mov_b32 exec_hi, 0
    ds_write_b64 v{acc+1}, {vr(Dq,2)}
    s_mov_b32 exec_hi, -1
    s_mov_b32 s13, {hex(f2u(128**-0.5 * math.log2(math.e)))}
    s_waitcnt lgkmcnt(0)
    """)
    for ks in range(4): a(f"ds_read_b128 {vr(qf+4*ks,4)}, v{acc+2} offset:{64*ks}")
    for ks in range(4):
        a(f"s_waitcnt lgkmcnt({3-ks})")
        for tau in range(4):
            a(f"v_mfma_f32_16x16x32_bf16 {vr(D2+4*tau,4)}, {vr(qf+4*ks,4)}, {vr(WK+16*tau+4*ks,4)}, {'0' if ks == 0 else vr(D2+4*tau,4)}")
    for tau in range(4): a(f"v_mul_f32 v{D2+4*tau}, s13, v{D2+4*tau}")
    a(f"""
    v_cvt_pk_bf16_f32 v{qp}, v{D2}, v{D2+4}
    v_cvt_pk_bf16_f32 v{qp+1}, v{D2+8}, v{D2+12}
    global_store_dwordx2 v{vQs}, {vr(qp,2)}, s[40:41] sc1
    global_store_dwordx2 v{vQs+1}, {vr(qp,2)}, s[40:41] sc1
    """)
    stamp("qa")
    if o.get("qack"): a("s_waitcnt vmcnt(0)")
    a("L_kJ:")
    srd(60, 30, SZ['w1']); srd(52, 32, SZ['w2'])
    a(f"s_and_b32 s13, s3, 1\ns_lshl_b32 s13, s13, 3")
    swz1280(ba, 5, "s13")
    a(f"""
    s_mul_i32 s42, s69, {32*1280}
    s_mul_i32 s43, s3, 5120
    s_add_u32 s42, s42, s43
    s_add_u32 s43, s43, {WKL}
    v_mul_u32_u24 v{vWo}, {20*3456}, v{vG}
    v_lshl_add_u32 v{vWo}, v{vN}, 4, v{vWo}
    s_and_b32 s9, s5, 7
    s_lshl_b32 s9, s9, 1
    s_add_u32 s9, s9, s3
    s_mul_i32 s14, s4, {80*3456}
    s_lshl_b32 s8, s9, 8
    s_add_u32 s14, s14, s8
    s_lshl_b32 s9, s9, 3
    s_add_u32 s9, s9, s4
    s_lshl_b32 s9, s9, 10
    s_add_u32 s9, s9, {HP_OFF + 512}
    v_lshl_add_u32 v{vH}, v{vL}, 4, s9
    s_barrier
    s_cmp_ge_u32 s69, 56
    s_cbranch_scc1 L_fin
    s_cmp_ge_u32 s3, 2
    s_cbranch_scc1 L_now1
    """)
    for u in range(20):
        a(f"buffer_load_dwordx4 {vr(WQ+4*u,4)}, v{vWo}, s[60:63], s14 offen{nt('w1')}\ns_add_u32 s14, s14, 3456")
    a("L_now1:\ns_barrier\ns_cmp_ge_u32 s3, 2\ns_cbranch_scc1 L_now1b\ns_setprio 3")
    gemv20(0, vH, 0)
    stamp("hp")
    a("s_setprio 0\ns_branch L_w2d\nL_now1b:\ns_mov_b32 s8, s3\nL_w2l:")
    for j in range(5):
        a(f"s_mov_b32 m0, s43\ns_add_u32 s43, s43, 1024\nbuffer_load_dwordx4 v{ba+j}, s[52:55], s42 offen{nt('w2')} lds")
    a(f"""
    s_cmp_ge_u32 s8, 4
    s_cbranch_scc1 L_w2d
    s_mov_b32 s8, 4
    s_sub_u32 s42, s42, 10240
    s_sub_u32 s43, s43, 15360
    s_branch L_w2l
    L_w2d:
    """)
    tr1280(ba, WKL)
    rowmasks()
    a(f"""
    s_lshr_b32 s8, s69, 2
    s_lshl_b32 s8, s8, 13
    s_and_b32 s9, s69, 3
    s_lshl_b32 s9, s9, 6
    s_add_u32 s8, s8, s9
    s_add_u32 s8, s8, {HP_OFF + 512}
    v_lshl_add_u32 v{vH}, v{vE}, 10, s8
    v_and_b32 v{t1}, 1, v{vG}
    v_lshl_add_u32 v{vH}, v{t1}, 8, v{vH}
    v_lshrrev_b32 v{t1}, 1, v{vG}
    v_lshl_add_u32 v{vH}, v{t1}, 4, v{vH}
    v_and_b32 v{t1}, 1, v{vS}
    v_lshl_add_u32 v{vH}, v{t1}, 5, v{vH}
    s_mul_i32 s8, s69, {ROWB}
    s_lshl_b32 s9, s3, 9
    s_add_u32 s8, s8, s9
    s_add_u32 s8, s8, {PF_OFF}
    v_lshl_add_u32 v{vPF}, v{vL}, 2, s8
    s_waitcnt vmcnt(0)
    s_barrier
    s_cmp_ge_u32 s69, 54
    s_cbranch_scc1 L_fin
    global_load_dwordx4 {vr(HR,4)}, v{vH}, s[40:41] sc1
    """)
    for T in range(5):
        for aa in range(2): a(f"ds_read_b64_tr_b16 {vr(A2+4*T+2*aa,2)}, v{ba+T} offset:{aa*20480}")
    a(f"""
    s_mov_b32 s13, 0
    s_branch L_hpc
    L_hpp:
    s_mov_b64 exec, vcc
    global_load_dwordx4 {vr(HR,4)}, v{vH}, s[40:41] sc1
    s_mov_b64 exec, -1
    L_hpc:
    s_add_u32 s13, s13, 1
    s_waitcnt vmcnt(0)
    """)
    tagcheck(HR+2)
    spin_tail("L_hpp", "L_hpo")
    a(f"""
    v_lshlrev_b32 v{HP}, 16, v{HR}
    v_and_b32 v{HP+1}, 0xffff0000, v{HR}
    v_lshlrev_b32 v{HP+2}, 16, v{HR+1}
    v_and_b32 v{HP+3}, 0xffff0000, v{HR+1}
    """)
    for d in ("quad_perm:[1,0,3,2]", "quad_perm:[2,3,0,1]", "row_half_mirror"):
        for r in range(4): a(f"v_add_f32_dpp v{HP+r}, v{HP+r}, v{HP+r} {d} {DPPM}")
    for r in range(4): a(f"v_mul_f32 v{HP+4+r}, {NLOG2E}, v{HP+r}")
    for r in range(4): a(f"v_exp_f32 v{HP+4+r}, v{HP+4+r}")
    for r in range(4): a(f"v_add_f32 v{HP+4+r}, 1.0, v{HP+4+r}")
    for r in range(4): a(f"v_rcp_f32 v{HP+4+r}, v{HP+4+r}")
    for r in range(4): a(f"v_mul_f32 v{HP+r}, v{HP+r}, v{HP+4+r}")
    a(f"""
    v_cvt_pk_bf16_f32 v{hs}, v{HP}, v{HP+1}
    v_cvt_pk_bf16_f32 v{hs+1}, v{HP+2}, v{HP+3}
    v_mov_b32 v{hs+2}, v{hs}
    v_mov_b32 v{hs+3}, v{hs+1}
    v_mov_b32_dpp v{hs}, v{hs} row_ror:8 row_mask:0xf bank_mask:0xc
    v_mov_b32_dpp v{hs+1}, v{hs+1} row_ror:8 row_mask:0xf bank_mask:0xc
    v_mov_b32_dpp v{hs+2}, v{hs+2} row_ror:8 row_mask:0xf bank_mask:0x3
    v_mov_b32_dpp v{hs+3}, v{hs+3} row_ror:8 row_mask:0xf bank_mask:0x3
    s_waitcnt lgkmcnt(0)
    """)
    for T in range(5): a(f"v_mfma_f32_16x16x32_bf16 {vr(FO+4*T,4)}, {vr(hs,4)}, {vr(A2+4*T,4)}, 0")
    rowstore(FO, vPF)
    stamp("pf")
    a("s_branch L_fin")
    k_v = V.n
    role[0] = "O"
    V = VA(BIG)
    AO = V(40, 2); AUV = V(32, 2); YW = V(8, 2); PBR = V(8, 2); OUT = V(20, 2); D2 = V(16, 2)
    acc = V(4, 2); ml = V(4, 2); qp = V(8, 2); cf = V(8, 2)
    oW = V(5); ones = V(2, 2)
    vML, vPB, vCW, vCR, vCT, vPC, vMS, vFA, vSc, vM2 = [V() for _ in range(10)]; vUo = V(2)
    MLS, SCL, CP, CC, WUVL, WOL = 0, 1024, 2048, 4096, 8192, 40960
    a(f"""
    L_roleO:
    s_cmp_lg_u32 s3, 2
    s_cbranch_scc1 L_o1
    """)
    rowclear("s2", PC_OFF)
    a("L_o1:")
    srd(52, 24, SZ['wuv']); srd(56, 26, SZ['wo'])
    a(f"""
    s_lshr_b32 s13, s7, 1             ; ch
    s_and_b32 s10, s3, 1
    s_lshl_b32 s10, s10, 2
    v_xor_b32 v{t0}, s10, v{vE}
    v_and_b32 v{t1}, 4, v{vS}
    v_and_b32 v{t2}, 1, v{vS}
    v_lshl_add_u32 v{t1}, v{t2}, 1, v{t1}
    v_bfe_u32 v{t2}, v{vS}, 1, 1
    v_add_u32 v{t1}, v{t1}, v{t2}
    v_lshlrev_b32 v{vUo}, 13, v{t1}
    v_lshl_add_u32 v{vUo}, v{t0}, 4, v{vUo}
    v_xor_b32 v{vUo+1}, 32, v{vUo}
    s_lshl_b32 s10, s13, 21
    s_lshl_b32 s11, s3, 18
    s_add_u32 s10, s10, s11
    s_lshl_b32 s11, s6, 8
    s_add_u32 s10, s10, s11
    s_and_b32 s11, s7, 1
    s_lshl_b32 s11, s11, 7
    s_add_u32 s10, s10, s11
    s_lshl_b32 s11, s3, 12
    s_add_u32 s11, s11, {WUVL}
    s_cmp_eq_u32 s3, 0
    s_cbranch_scc1 L_o2
    s_barrier
    L_o2:
    """)
    EO = opt("eo", 0)
    def wuv_load(j):
        a(f"s_mov_b32 m0, s11\ns_add_u32 s11, s11, 1024\nbuffer_load_dwordx4 v{vUo+(j>>1)}, s[52:55], s10 offen{nt('wuv')} lds\ns_add_u32 s10, s10, 65536")
    if o.get("opk"):
        a(f"""
        s_cmp_lt_u32 s3, 4
        s_cbranch_scc1 L_nopk
        v_lshrrev_b32 v{t0}, 2, v{vL}
        v_and_b32 v{t1}, 1, v{t0}
        v_lshl_add_u32 v{t1}, v{vS}, 2, v{t1}
        v_and_b32 v{t2}, 3, v{vL}
        v_lshlrev_b32 v{t2}, 6, v{t2}
        v_lshl_add_u32 v{t1}, v{t1}, 13, v{t2}
        s_lshl_b32 s12, s7, 20
        s_lshl_b32 s8, s15, 18
        s_add_u32 s12, s12, s8
        s_lshl_b32 s8, s6, 8
        s_add_u32 s12, s12, s8
        s_add_u32 s12, s12, 16384
        v_add_u32 v{t1}, s12, v{t1}
        global_load_dword v254, v{t1}, s[22:23]
        """)
        if o.get("opk2"):
            a(f"v_add_u32 v{t1}, {(-16384) & 0xffffffff}, v{t1}\ns_mov_b32 exec_lo, 0xf0f0f0f0\ns_mov_b32 exec_hi, 0xf0f0f0f0\nglobal_load_dword v254, v{t1}, s[22:23]\ns_mov_b64 exec, -1")
        if o.get("opc"):
            a(f"""
            s_lshl_b32 s8, s6, 17
            s_lshl_b32 s12, s7, 15
            s_add_u32 s8, s8, s12
            s_lshl_b32 s12, s15, 13
            s_add_u32 s8, s8, s12
            s_add_u32 s8, s8, 4096
            v_lshl_add_u32 v{t0}, v{vL}, 6, s8
            global_load_dword v254, v{t0}, s[18:19]
            """)
        a("L_nopk:")
    for j in range(EO): wuv_load(j)
    a("s_cmp_eq_u32 s3, 0\ns_cbranch_scc1 L_o3")
    gettag()
    a("L_o3:")
    if o.get("bback"): a("s_cmp_lg_u32 s3, 0\ns_cbranch_scc1 L_o2b\ns_waitcnt vmcnt(0)\nL_o2b:")
    a(f"s_and_b32 s8, s3, 1\ns_lshl_b32 s8, s8, 3")
    swz1280(oW, 5, "s8")
    a(f"""
    s_and_b32 s12, s7, 1
    s_lshl_b32 s8, s6, 1
    s_add_u32 s12, s12, s8
    s_mul_i32 s12, s12, {64*1280}
    s_mul_i32 s14, s13, 40960
    s_mul_i32 s9, s3, 5120
    s_add_u32 s14, s14, s9
    s_add_u32 s12, s12, s14
    s_add_u32 s14, s14, {WOL}
    s_mul_i32 s9, s13, 81920
    s_sub_u32 s9, 40960, s9
    s_barrier
    """)
    OPF = opt("opf", 0)
    if OPF:
        a(f"""
        s_cmp_ge_u32 s3, {OPF}
        s_cbranch_scc1 L_nopf
        s_lshl_b32 s8, s6, 17
        s_lshl_b32 s42, s7, 15
        s_add_u32 s8, s8, s42
        s_and_b32 s42, s3, 3
        s_lshl_b32 s42, s42, 13
        s_add_u32 s8, s8, s42
        s_lshr_b32 s42, s3, 2
        s_lshl_b32 s42, s42, 12
        s_sub_u32 s8, s8, s42
        s_add_u32 s8, s8, 4096
        v_lshl_add_u32 v{t0}, v{vL}, 6, s8
        global_load_dword v254, v{t0}, s[18:19]
        L_nopf:
        """)
    TH = opt("th", 0); THN = opt("thn", 9)
    def wo_load(j):
        a(f"s_mov_b32 m0, s14\ns_add_u32 s14, s14, 1024\nbuffer_load_dwordx4 v{oW+j}, s[56:59], s12 offen{nt('wo')} lds")
    cold = [lambda j=j: wuv_load(j) for j in range(EO, 4)] + [lambda j=j: wo_load(j) for j in range(5)]
    for n_, f in enumerate(cold):
        f()
        if TH and n_ < THN: a(f"s_waitcnt vmcnt({TH-1})")
    a(f"s_add_u32 s12, s12, s9\ns_add_u32 s14, s14, s9\ns_sub_u32 s14, s14, 5120")
    for j in range(5): wo_load(j)
    a(f"""
    s_lshr_b32 s8, s6, 4
    s_lshl_b32 s8, s8, 15
    s_and_b32 s42, s6, 15
    s_lshl_b32 s42, s42, 4
    s_add_u32 s8, s8, s42
    s_add_u32 s8, s8, {ML_OFF + 512}
    s_lshr_b32 s42, s3, 2             ; hh
    s_lshl_b32 s43, s42, 1
    v_and_b32 v{t0}, 3, v{vL}
    v_xor_b32 v{t0}, s43, v{t0}
    v_lshl_add_u32 v{t0}, v{vS}, 2, v{t0}
    v_lshl_add_u32 v{vML}, v{t0}, 10, s8
    s_lshl_b32 s43, s42, 3
    v_lshlrev_b32 v{vM2}, 2, v{vL}
    v_xor_b32 v{vM2}, s43, v{vM2}
    s_lshl_b32 s8, s6, 16
    s_lshl_b32 s43, s13, 10
    s_add_u32 s8, s8, s43
    s_lshl_b32 s43, s15, 7
    s_add_u32 s8, s8, s43
    s_lshl_b32 s43, s42, 12
    s_add_u32 s8, s8, s43
    s_add_u32 s8, s8, {PB_OFF + 512}
    v_lshl_add_u32 v{vPB}, v{vS}, 13, s8
    v_lshl_add_u32 v{vPB}, v{vE}, 4, v{vPB}
    s_lshl_b32 s8, s15, 9
    s_add_u32 s8, s8, {CC}
    s_lshl_b32 s43, s42, 8
    s_add_u32 s43, s43, s8
    v_lshrrev_b32 v{t2}, 1, v{vG}
    v_lshl_add_u32 v{vCW}, v{t2}, 7, s43
    v_lshl_add_u32 v{vCW}, v{vE}, 4, v{vCW}
    v_lshlrev_b32 v{t0}, 9, v{t2}             ; 4*(g>>1) rows
    v_and_b32 v{t2}, 1, v{vG}
    v_lshl_add_u32 v{vCW}, v{t2}, 3, v{vCW}
    v_lshl_add_u32 v{t0}, v{t2}, 7, v{t0}     ; + (g&1) rows
    v_and_b32 v{t2}, 3, v{vL}
    v_lshl_add_u32 v{vCR}, v{t2}, 7, s8
    v_lshl_add_u32 v{vCR}, v{vG}, 4, v{vCR}
    s_lshl_b32 s8, s15, 2
    v_add_u32 v{t2}, s8, v{t2}                ; p = 4u + j
    v_lshrrev_b32 v{t1}, 1, v{t2}
    s_lshl_b32 s8, s42, 2
    v_xor_b32 v{t1}, s8, v{t1}
    v_xor_b32 v{t1}, v{t1}, v{vG}
    v_lshlrev_b32 v{vCT}, 7, v{t2}
    v_lshl_add_u32 v{vCT}, v{t1}, 4, v{vCT}
    v_lshrrev_b32 v{t1}, 1, v{vN}
    v_xor_b32 v{t1}, v{t1}, v{vG}
    v_lshlrev_b32 v{vMS}, 7, v{vN}
    v_lshl_add_u32 v{vMS}, v{t1}, 4, v{vMS}
    v_xor_b32 v{ones}, 64, v{vMS}
    s_lshl_b32 s64, s42, 1
    s_mul_i32 s8, s2, {ROWB}
    s_lshl_b32 s42, s3, 9
    s_add_u32 s8, s8, s42
    s_add_u32 s8, s8, {PC_OFF}
    v_lshl_add_u32 v{vPC}, v{vL}, 2, s8
    v_bfe_u32 v{acc}, v{vL}, 2, 2             ; r
    v_lshl_add_u32 v{t0}, v{acc}, 11, v{t0}
    v_and_b32 v{t2}, 3, v{vL}
    v_lshl_add_u32 v{t0}, v{t2}, 3, v{t0}
    s_lshl_b32 s8, s15, 13
    s_add_u32 s8, s8, {WUVL}
    v_add_u32 v{t0}, s8, v{t0}
    """)
    a(f"v_xor_b32 v{acc}, s64, v{acc}")
    for Td in range(2):
        a(f"v_xor_b32 v{t2}, {Td}, v{acc}\nv_lshl_add_u32 v{cf+Td}, v{t2}, 5, v{t0}")
    tr1280(oW, WOL)
    rowmasks()
    a(f"""
    s_lshl_b32 s8, s2, 8
    s_add_u32 s8, s8, {FO_OFF}
    s_waitcnt vmcnt(0) lgkmcnt(0)
    s_barrier
    """)
    stamp("wo", True)
    a(f"""
    s_cmp_lg_u32 s3, 0
    s_cbranch_scc1 L_nofa0
    global_load_dwordx4 {vr(ml,4)}, v{vML}, s[40:41] sc1
    L_nofa0:
    """)
    for ks in range(2):
        for Td in range(2):
            for aa in range(2):
                a(f"ds_read_b64_tr_b16 {vr(AUV+8*ks+4*Td+2*aa,2)}, v{cf+Td} offset:{(8*ks+2*aa)*128}")
        a("s_waitcnt lgkmcnt(5)")
    for T in range(5):
        for ks in range(2):
            for aa in range(2):
                a(f"ds_read_b64_tr_b16 {vr(AO+8*T+4*ks+2*aa,2)}, v{oW+T} offset:{(2*ks+aa)*20480}")
        if T in (1, 3): a("s_waitcnt lgkmcnt(5)")
    LW = opt("lw", 7)
    FOE = f"s_mov_b64 exec, 1\nglobal_store_dwordx2 v{vFA}, {vr(pub+2,2)}, s[40:41] sc1\ns_mov_b64 exec, -1\ns_mov_b32 s42, 0" if opt("fop", 0) == 2 else ""
    a(f"""
    v_lshl_add_u32 v{vFA}, v{vN}, 3, s8
    s_cmp_eq_u32 s3, {LW}
    s_cselect_b64 s[44:45], -1, 0
    s_cmp_eq_u32 s3, 0
    s_cselect_b32 s42, 0xffff, 0
    s_mov_b32 s43, 0
    s_cbranch_scc0 L_gow
    {FOE}
    s_mov_b32 s13, 0
    s_branch L_goc
    L_gop:
    s_mov_b64 exec, vcc
    global_load_dwordx4 {vr(ml,4)}, v{vML}, s[40:41] sc1
    s_mov_b64 exec, -1
    L_goc:
    s_add_u32 s13, s13, 1
    s_waitcnt vmcnt(0)
    """)
    tagcheck(ml+2)
    spin_tail("L_gop", "L_goo")
    a(f"""
    ds_write_b32 v{vM2}, v{ml} offset:{MLS}
    L_gow:
    s_waitcnt lgkmcnt(0)
    s_barrier
    """)
    stamp("go")
    FO1 = 0
    pbl = [f"global_load_dwordx4 {vr(PBR+4*u,4)}, v{vPB}, s[40:41] offset:{2048*u} sc1" for u in range(2)]
    lrl = f"global_load_dwordx4 {vr(ml,4)}, v{vML}, s[40:41] offset:256 sc1"
    fost = f"s_mov_b64 exec, s[42:43]\nglobal_store_dwordx2 v{vFA}, {vr(pub+2,2)}, s[40:41] sc1\ns_mov_b64 exec, -1"
    for l in pbl: a(l)
    a(f"ds_read_b32 v{t3}, v{vM2} offset:{MLS}")
    a(f"s_mov_b64 exec, s[44:45]\n{lrl}")
    if FO1: a(fost)
    else: a("s_mov_b64 exec, -1")
    a("s_waitcnt lgkmcnt(0)")
    red32("v_max_f32", t0, t3, t1)
    a(f"""
    v_sub_f32 v{t3}, v{t3}, v{t0}
    v_exp_f32 v{t3}, v{t3}
    s_mov_b32 s13, 0
    v_cvt_pk_bf16_f32 v{t2}, v{t3}, v{t3}
    """)
    for u in range(2):
        for r in range(4):
            a(f"v_and_b32_dpp v{YW+4*u+r}, v{t2}, v{msk+r} quad_perm:[{u},{u},{u},{u}] {DPPM}")
    a(f"s_waitcnt vmcnt({1+FO1})\ns_branch L_pbc\nL_pbp:")
    masked(pbl)
    a("s_waitcnt vmcnt(0)\nL_pbc:\ns_add_u32 s13, s13, 1")
    for u in range(2):
        a(f"v_mfma_f32_16x16x32_bf16 {vr(Dq,4)}, {vr(YW+4*u,4)}, {vr(PBR+4*u,4)}, {'0' if u == 0 else vr(Dq,4)}")
        sent_mask(u, PBR+4*u, t2)
    or_masks(2)
    spin_tail("L_pbp", "L_pbo")
    stamp("pb")
    FOP = opt("fop", 0)
    if FOP in (0, 2): a(fost)
    a(f"""
    v_cvt_pk_bf16_f32 v{qp}, v{Dq}, v{Dq+1}
    v_cvt_pk_bf16_f32 v{qp+1}, v{Dq+2}, v{Dq+3}
    """)
    setexec(0xFF00FF0000FF00FF)
    a(f"ds_write_b64 v{vCW}, {vr(qp,2)}")
    setexec(-1)
    a(f"""
    s_waitcnt lgkmcnt(0)
    s_barrier
    ds_read_b128 {vr(cf,4)}, v{vCR}
    ds_read_b128 {vr(cf+4,4)}, v{vCR} offset:64
    """)
    if FOP == 1: a(fost)
    a(f"""
    v_mov_b32 v{t2}, {SCL}
    s_cmp_lg_u32 s3, {LW}
    s_cbranch_scc1 L_nolr
    s_mov_b32 s13, 0
    s_waitcnt vmcnt(1)
    s_branch L_lrc
    L_lrp:
    s_mov_b64 exec, vcc
    {lrl}
    s_mov_b64 exec, -1
    s_waitcnt vmcnt(0)
    L_lrc:
    s_add_u32 s13, s13, 1
    """)
    tagcheck(ml+2)
    spin_tail("L_lrp", "L_lro")
    a(f"v_mul_f32 v{t3}, v{t3}, v{ml}")
    red32("v_add_f32", t0, t3, t1)
    a(f"v_rcp_f32 v{t0}, v{t0}\ns_waitcnt lgkmcnt(0)\nds_write_b32 v{t2}, v{t0}\nL_nolr:")
    for ks in range(2):
        a(f"s_waitcnt lgkmcnt({1-ks})")
        for Td in range(2):
            a(f"v_mfma_f32_16x16x32_bf16 {vr(D2+4*Td,4)}, {vr(AUV+8*ks+4*Td,4)}, {vr(cf+4*ks,4)}, {'0' if ks == 0 else vr(D2+4*Td,4)}")
    for i in range(4): a(f"v_cvt_pk_bf16_f32 v{qp+i}, v{D2+2*i}, v{D2+2*i+1}")
    setexec(0x000F000F000F000F)
    a(f"ds_write_b128 v{vCT}, {vr(qp,4)} offset:{CP}")
    setexec(-1)
    a("s_waitcnt lgkmcnt(0)\ns_barrier")
    stamp("cp", True)
    a(f"""
    ds_read_b128 {vr(qp,4)}, v{vMS} offset:{CP}
    ds_read_b128 {vr(qp+4,4)}, v{ones} offset:{CP}
    ds_read_b32 v{vSc}, v{t2}
    """)
    TO = [4, 0, 2, 1, 3]
    for ks in range(2):
        a(f"s_waitcnt lgkmcnt({2-ks})")
        for T in TO:
            a(f"v_mfma_f32_16x16x32_bf16 {vr(OUT+4*T,4)}, {vr(qp+4*ks,4)}, {vr(AO+8*T+4*ks,4)}, {'0' if ks == 0 else vr(OUT+4*T,4)}")
    R = OUT
    for T in TO:
        a(f"v_pk_add_f32 {vr(R+4*T,2)}, {vr(R+4*T,2)}, {vr(R+4*T+2,2)}")
    for T in TO:
        a(f"v_add_f32 v{R+4*T}, v{R+4*T}, v{R+4*T+1}")
    a(f"""
    v_mov_b32 v{R+17}, v{R+16}
    v_permlane32_swap_b32 v{R}, v{R+8}
    v_permlane32_swap_b32 v{R+4}, v{R+12}
    v_permlane32_swap_b32 v{R+16}, v{R+17}
    v_add_f32 v{R}, v{R}, v{R+8}
    v_add_f32 v{R+4}, v{R+4}, v{R+12}
    v_add_f32 v{R+16}, v{R+16}, v{R+17}
    s_waitcnt lgkmcnt(0)
    v_mov_b32 v{R+17}, v{R+16}
    v_permlane16_swap_b32 v{R}, v{R+4}
    v_add_f32 v{R}, v{R}, v{R+4}
    v_permlane16_swap_b32 v{R+16}, v{R+17}
    v_mul_f32 v{R}, v{vSc}, v{R}
    v_add_f32 v{R+16}, v{R+16}, v{R+17}
    global_store_dword v{vPC}, v{R}, s[40:41] sc1
    v_mul_f32 v{R+16}, v{vSc}, v{R+16}
    s_mov_b32 exec_hi, 0
    global_store_dword v{vPC}, v{R+16}, s[40:41] offset:256 sc1
    s_mov_b32 exec_hi, -1
    """)
    stamp("pc")
    a("s_branch L_fin")
    po_v = V.n
    role[0] = "A"
    CK = BIG; CV = BIG + 64; QB = BIG + 128
    V = VA(BIG + 192)
    MXR = QB; U = QB + 8; DP = QB + 24; DL = QB + 40; on4 = QB + 44
    DS = Dq
    ba = V(8); vPBs = V(4); vMLs = V(); vq = V(); vqw = V(2); vqr = V(2); vPr = V(); vPw = V(); vMw = V(); vMr = V()
    QP = V(8, 2)
    ml = pub
    CKV, QAS, PL, MX = 0, 131072, 147456, 151552
    EA = opt("ea", 4); CLR = opt("clr", 1)
    def pbclear():
        a(f"""
        s_lshl_b32 s12, s78, 4
        s_lshl_b32 s13, s3, 1
        s_add_u32 s12, s12, s13
        s_lshl_b32 s12, s12, 16
        s_lshl_b32 s13, s79, 11
        s_add_u32 s12, s12, s13
        s_add_u32 s12, s12, {PB_OFF + 512}
        v_lshl_add_u32 v{t0}, v{vL}, 4, s12
        v_lshrrev_b32 v{t1}, 5, v{vL}
        v_lshl_add_u32 v{t0}, v{t1}, 9, v{t0}
        v_add_u32 v{t1}, 0x10000, v{t0}
        global_store_dwordx4 v{t0}, {vr(Dq,4)}, s[40:41] sc1
        global_store_dwordx4 v{t1}, {vr(Dq,4)}, s[40:41] sc1
        """)
    a("L_roleA:")
    if CLR == 0: pbclear()
    a(f"""
    s_lshl_b32 s8, s79, 17
    s_lshl_b32 s9, s3, 14
    s_add_u32 s8, s8, s9
    s_lshl_b32 s10, s78, 13                  ; rotation
    v_lshlrev_b32 v{t3}, 4, v{vL}
    """)
    for k in range(8): a(f"v_xor_b32 v{ba+k}, {32*k}, v{t3}")
    srd(48, 18, SZ['ckv'])
    def ckv_ld(jj):
        if jj % 4 == 0: a("s_add_u32 s11, s9, s10\ns_add_u32 s14, s8, s10\ns_mov_b32 m0, s11\ns_add_u32 s10, s10, 4096\ns_and_b32 s10, s10, 0x3fff")
        a(f"buffer_load_dwordx4 v{ba+(jj&7)}, s[48:51], s14 offen offset:{1024*(jj&3)}{nt('ckv')} lds")
    if o.get("apf"):
        a(f"""
        v_lshrrev_b32 v{t0}, 2, v{vL}
        v_and_b32 v{t1}, 1, v{t0}
        v_lshl_add_u32 v{t1}, v{vS}, 2, v{t1}
        v_and_b32 v{t2}, 3, v{vL}
        v_lshlrev_b32 v{t2}, 6, v{t2}
        v_lshl_add_u32 v{t1}, v{t1}, 13, v{t2}
        s_lshl_b32 s12, s78, 21
        s_lshl_b32 s13, s3, 18
        s_add_u32 s12, s12, s13
        s_lshl_b32 s13, s79, 8
        s_add_u32 s12, s12, s13
        s_add_u32 s12, s12, 16384
        v_add_u32 v{t1}, s12, v{t1}
        global_load_dword v254, v{t1}, s[22:23]
        s_barrier
        """)
    a("s_cmp_eq_u32 s3, 0\ns_cbranch_scc1 L_a1\ns_barrier\nL_a1:")
    for jj in range(EA): ckv_ld(jj)
    a("s_cmp_eq_u32 s3, 0\ns_cbranch_scc1 L_a2")
    gettag()
    a("L_a2:\ns_barrier")
    for jj in range(EA, 8): ckv_ld(jj)
    if CLR == 1: pbclear()
    QE = o.get("qe")
    if QE:
        a(f"""
        s_lshl_b32 s12, s78, 5
        s_lshr_b32 s13, s3, 2
        s_lshl_b32 s13, s13, 4
        s_add_u32 s12, s12, s13
        s_lshl_b32 s13, s15, 1
        s_add_u32 s12, s12, s13
        s_lshl_b32 s12, s12, 7
        s_add_u32 s12, s12, {FK_OFF}
        v_and_b32 v{t0}, 1, v{vL}
        v_lshl_add_u32 v{vWo}, v{t0}, 7, s12
        v_bfe_u32 v{t0}, v{vL}, 1, 1
        v_lshl_add_u32 v{vWo}, v{t0}, 10, v{vWo}
        global_load_dwordx2 {vr(QP,2)}, v{vWo}, s[40:41] sc1
        """)
    if not o.get("nocb"): a("s_barrier")
    for jj in range(8, 16): ckv_ld(jj)
    if CLR == 2: pbclear()
    a(f"""
    v_lshl_add_u32 v{t0}, v{vN}, 10, s9
    v_lshlrev_b32 v{t1}, 1, v{vE}
    v_xor_b32 v{t1}, v{t1}, v{vG}             ; g ^ 2(i&7)
    """)
    for q in range(4):
        a(f"v_xor_b32 v{t2}, {4*q}, v{t1}\nv_lshl_add_u32 v{ba+q}, v{t2}, 4, v{t0}")
    a(f"""
    v_xor_b32 v{t0}, v{vN}, v{vG}
    v_lshlrev_b32 v{t1}, 8, v{vG}
    v_lshl_add_u32 v{vqr}, v{t0}, 4, v{t1}
    v_add_u32 v{vqr}, {QAS}, v{vqr}
    v_xor_b32 v{vqr+1}, 64, v{vqr}
    s_lshl_b32 s12, s78, 20
    s_lshl_b32 s13, s79, 11
    s_add_u32 s12, s12, s13
    s_lshl_b32 s13, s15, 7
    s_add_u32 s12, s12, s13
    s_lshr_b32 s13, s3, 2
    s_lshl_b32 s13, s13, 10
    s_add_u32 s12, s12, s13
    s_add_u32 s12, s12, {PB_OFF + 512}
    v_lshl_add_u32 v{vPBs}, v{vG}, 18, s12
    v_lshl_add_u32 v{vPBs}, v{vN}, 3, v{vPBs}
    v_add_u32 v{vPBs+1}, 0x10000, v{vPBs}
    v_add_u32 v{vPBs+2}, 0x20000, v{vPBs}
    v_add_u32 v{vPBs+3}, 0x30000, v{vPBs}
    v_lshlrev_b32 v{vPr}, 4, v{vL}
    v_add_u32 v{vPr}, {PL}, v{vPr}
    s_lshr_b32 s8, s3, 1
    s_lshl_b32 s8, s8, 10
    s_and_b32 s13, s3, 1
    s_lshl_b32 s13, s13, 3
    s_add_u32 s8, s8, s13
    v_add_u32 v{vPw}, s8, v{vPr}
    v_lshlrev_b32 v{vMr}, 5, v{vN}
    v_add_u32 v{vMr}, {MX}, v{vMr}
    s_lshl_b32 s8, s3, 2
    v_add_u32 v{vMw}, s8, v{vMr}
    s_lshl_b32 s10, s78, 15
    s_lshl_b32 s8, s79, 10
    s_add_u32 s10, s10, s8
    s_add_u32 s10, s10, {ML_OFF + 512}
    v_lshl_add_u32 v{vMLs}, v{vN}, 4, s10
    s_lshl_b32 s11, s78, 15
    s_lshl_b32 s12, s3, 12
    s_add_u32 s11, s11, s12
    s_lshl_b32 s12, s4, 16
    s_add_u32 s11, s11, s12
    s_add_u32 s11, s11, {QA_OFF + 512}
    v_lshl_add_u32 v{vq}, v{vL}, 4, s11
    v_lshrrev_b32 v{t0}, 5, v{vL}
    v_lshl_add_u32 v{vq}, v{t0}, 9, v{vq}
    s_lshl_b32 s8, s3, 1
    v_xor_b32 v{t0}, s8, v{vE}
    v_lshlrev_b32 v{t1}, 8, v{vL}
    v_lshl_add_u32 v{vqw}, v{t0}, 4, v{t1}
    v_add_u32 v{vqw}, {QAS}, v{vqw}
    v_xor_b32 v{vqw+1}, 16, v{vqw}
    s_cmp_eq_u32 s3, 3
    s_cselect_b32 s42, 0xffff, 0
    s_mov_b32 s43, 0
    """)
    qal = [f"global_load_dwordx4 {vr(QP+4*j,4)}, v{vq}, s[40:41] offset:{2048*j} sc1" for j in range(2)]
    if QE:
        a(f"""
        s_mov_b32 s13, 0
        s_waitcnt vmcnt({opt("qew", 4)})
        s_branch L_fkc
        L_fkp:
        global_load_dwordx2 {vr(QP,2)}, v{vWo}, s[40:41] sc1
        s_waitcnt vmcnt(0)
        L_fkc:
        s_add_u32 s13, s13, 1
        """)
        tagcheck(QP)
        spin_tail("L_fkp", "L_fko")
        if o.get("qeb"): a("s_barrier")
        for l in qal: a(l)
        a("s_waitcnt vmcnt(2) lgkmcnt(0)")
    else:
        a(f"""
        s_cmp_lg_u32 s3, 1
        s_cbranch_scc1 L_fko
        s_lshl_b32 s11, s78, 13
        s_add_u32 s11, s11, {FK_OFF}
        v_and_b32 v{t0}, 31, v{vL}
        v_lshl_add_u32 v{t3}, v{t0}, 8, s11
        """)
        flag_wait(t3, QP, "L_fk")
        a("s_waitcnt vmcnt(0) lgkmcnt(0)")
    stamp("ckvl", True)
    for t in range(16):
        a(f"ds_read_b128 {vr(CK+4*t,4)}, v{ba+(t&3)} offset:{256*(t>>2)}")
        if t == 11: a("s_waitcnt lgkmcnt(6)")
    a(f"""
    v_lshrrev_b32 v{t0}, 2, v{vL}             ; 4g+r
    v_and_b32 v{t1}, 7, v{t0}                 ; key&7
    v_lshlrev_b32 v{t0}, 10, v{t0}
    v_and_b32 v{t2}, 3, v{vL}
    v_lshl_add_u32 v{t0}, v{t2}, 3, v{t0}
    s_lshr_b32 s8, s3, 1
    s_lshl_b32 s8, s8, 8
    v_add_u32 v{t0}, s8, v{t0}
    s_and_b32 s8, s3, 1
    s_lshl_b32 s8, s8, 2
    v_xor_b32 v{t1}, s8, v{t1}
    """)
    for T in range(4):
        a(f"v_xor_b32 v{t2}, {T}, v{t1}\nv_lshl_add_u32 v{ba+T}, v{t2}, 5, v{t0}\nv_add_u32 v{ba+4+T}, 0x10000, v{ba+T}")
    a("s_barrier")
    stamp("ckv")
    if not QE:
        for l in qal: a(l)
    for T in range(4):
        a("s_waitcnt lgkmcnt(4)")
        for t in range(4):
            for aa in range(2):
                off = (32*t + 16*aa) * 1024
                a(f"ds_read_b64_tr_b16 {vr(CV+16*T+4*t+2*aa,2)}, v{ba+T+4*(off>>16)} offset:{off & 0xffff}")
    a("s_mov_b32 s13, 0\ns_branch L_qac\nL_qap:")
    masked(qal)
    a("L_qac:\ns_add_u32 s13, s13, 1")
    for j in range(2):
        a(f"s_waitcnt vmcnt({1-j})")
        a(f"ds_write_b128 v{vqw+j}, {vr(QP+4*j,4)}")
        sent_mask(j, QP+4*j, t2)
    or_masks(2)
    spin_tail("L_qap", "L_qao")
    stamp("qap")
    a("s_waitcnt lgkmcnt(0)\ns_barrier")
    def qread(t): a(f"ds_read_b128 {vr(QB+4*t,4)}, v{vqr+(t&1)} offset:{1024*t}")
    PRE = 12
    for t in range(PRE): qread(t)
    for t in range(16):
        issued = min(16, PRE + t)
        a(f"s_waitcnt lgkmcnt({issued - t - 1})")
        a(f"v_mfma_f32_16x16x32_bf16 {vr(DS,4)}, {vr(CK+4*t,4)}, {vr(QB+4*t,4)}, {'0' if t == 0 else vr(DS,4)}")
        if t + PRE < 16: qread(t + PRE)
    stamp("scm")
    a(f"""
    v_max3_f32 v{t0}, v{DS}, v{DS+1}, v{DS+2}
    v_max_f32 v{t0}, v{t0}, v{DS+3}
    """)
    xrow("v_max_f32", t0, t1)
    a(f"""
    s_mov_b64 exec, 0xffff
    ds_write_b32 v{vMw}, v{t0}
    s_mov_b64 exec, -1
    v_mov_b32 v{on4}, 0x3f803f80
    v_mov_b32 v{on4+1}, 0x3f803f80
    v_mov_b32 v{on4+2}, 0x3f803f80
    v_mov_b32 v{on4+3}, 0x3f803f80
    s_waitcnt lgkmcnt(0)
    s_barrier
    ds_read_b128 {vr(MXR,4)}, v{vMr}
    ds_read_b128 {vr(MXR+4,4)}, v{vMr} offset:16
    """)
    a(f"""
    s_waitcnt lgkmcnt(1)
    v_max3_f32 v{t0}, v{MXR}, v{MXR+1}, v{MXR+2}
    s_waitcnt lgkmcnt(0)
    v_max3_f32 v{t1}, v{MXR+3}, v{MXR+4}, v{MXR+5}
    v_max3_f32 v{t0}, v{t0}, v{MXR+6}, v{MXR+7}
    v_max_f32 v{t0}, v{t0}, v{t1}
    v_ceil_f32 v{ml}, v{t0}
    """)
    mst = f"s_mov_b64 exec, s[42:43]\nglobal_store_dwordx4 v{vMLs}, {vr(ml,4)}, s[40:41] sc1\ns_mov_b64 exec, -1"
    MP = opt("mp", 0)
    if MP == 0: a(mst)
    for r in range(4): a(f"v_sub_f32 v{DS+r}, v{DS+r}, v{ml}")
    for r in range(4): a(f"v_exp_f32 v{DS+r}, v{DS+r}")
    a(f"""
    v_cvt_pk_bf16_f32 v{DS}, v{DS}, v{DS+1}
    v_cvt_pk_bf16_f32 v{DS+1}, v{DS+2}, v{DS+3}
    ds_write_b64 v{vPw}, {vr(DS,2)}
    {mst if MP == 1 else ""}
    s_waitcnt lgkmcnt(0)
    s_barrier
    """)
    stamp("exp", True)
    for t in range(4): a(f"ds_read_b128 {vr(U+4*t,4)}, v{vPr} offset:{1024*t}")
    if MP == 2: a(mst)
    a("s_cmp_lg_u32 s3, 0\ns_cbranch_scc1 L_nol")
    for t in range(4):
        a(f"s_waitcnt lgkmcnt({3-t})")
        a(f"v_mfma_f32_16x16x32_bf16 {vr(DL,4)}, {vr(on4,4)}, {vr(U+4*t,4)}, {'0' if t == 0 else vr(DL,4)}")
    a("L_nol:")
    for t in range(4):
        a(f"s_waitcnt lgkmcnt({3-t})")
        for T in range(4):
            a(f"v_mfma_f32_16x16x32_bf16 {vr(DP+4*T,4)}, {vr(U+4*t,4)}, {vr(CV+16*T+4*t,4)}, {'0' if t == 0 else vr(DP+4*T,4)}")
        if t == 1:
            a(f"""
            s_cmp_lg_u32 s3, 0
            s_cbranch_scc1 L_nol2
            v_mov_b32 v{ml}, v{DL}
            s_mov_b64 exec, 0xffff
            global_store_dwordx4 v{vMLs}, {vr(ml,4)}, s[40:41] offset:256 sc1
            s_mov_b64 exec, -1
            L_nol2:
            """)
    OB = CK
    for r in range(4): a(f"v_cvt_pk_bf16_f32 v{OB+2*r}, v{DP+r}, v{DP+4+r}")
    for r in range(4):
        a(f"v_cvt_pk_bf16_f32 v{OB+2*r+1}, v{DP+8+r}, v{DP+12+r}")
        a(f"global_store_dwordx2 v{vPBs+r}, {vr(OB+2*r,2)}, s[40:41] sc1")
    stamp("pbst")
    gx = CV; gg = CV + 6; vg = CV + 12; RB = CV + 16; RS = CV + 32; RC = CV + 48
    a(f"""
    s_lshr_b32 s8, s3, 1
    s_cmp_lg_u32 s8, 1
    s_cbranch_scc1 L_fin
    s_cmp_ge_u32 s69, 40
    s_cbranch_scc1 L_fin
    v_mul_u32_u24 v{t1}, 20, v{vL}
    global_load_dwordx4 {vr(gx,4)}, v{t1}, s[16:17]
    global_load_dword v{gx+4}, v{t1}, s[16:17] offset:16
    global_load_dwordx4 {vr(gg,4)}, v{t1}, s[34:35]
    global_load_dword v{gg+4}, v{t1}, s[34:35] offset:16
    s_lshr_b32 s8, s69, 3
    s_lshl_b32 s8, s8, 1
    s_and_b32 s9, s3, 1
    s_add_u32 s8, s8, s9
    s_mul_i32 s15, s4, 10
    s_add_u32 s15, s15, s8
    v_lshrrev_b32 v{t2}, 1, v{vL}
    v_mul_u32_u24 v{t0}, {ROWB}, v{t2}
    v_and_b32 v{t1}, 1, v{vL}
    v_lshl_add_u32 v{t0}, v{t1}, 4, v{t0}
    s_lshl_b32 s9, s4, 9
    s_lshl_b32 s8, s8, 5
    s_add_u32 s9, s9, s8
    s_add_u32 s9, s9, {PC_OFF}
    v_add_u32 v{ba}, s9, v{t0}
    v_add_u32 v{ba+1}, {32*ROWB}, v{ba}
    v_add_u32 v{ba+2}, {64*ROWB}, v{ba}
    v_add_u32 v{ba+3}, {96*ROWB}, v{ba}
    v_add_u32 v{vPBs}, {PF_OFF-PC_OFF}, v{ba}
    v_add_u32 v{vPBs+1}, {PF_OFF-PC_OFF}, v{ba+1}
    s_lshl_b32 s9, s15, 4
    v_lshl_add_u32 v{ba+4}, v{t1}, 3, s9
    v_lshl_add_u32 v{ba+4}, v{vG}, 1, v{ba+4}
    v_lshlrev_b32 v{ba+5}, 8, v{vL}
    v_add_u32 v{ba+7}, {FK_OFF}, v{ba+5}
    v_add_u32 v{ba+5}, {FO_OFF}, v{ba+5}
    v_add_u32 v{ba+6}, 16384, v{ba+5}
    v_mov_b32 v{RB+4}, 0
    v_mov_b32 v{RB+5}, 0
    v_mov_b32 v{RB+6}, 0
    v_mov_b32 v{RB+7}, 0
    """)
    if opt("fop", 0) == 2: flag_wait(ba+7, RS, "L_f2")
    a(f"v_mov_b32 v{t3}, 0\ns_waitcnt vmcnt(0)")
    for i in range(5):
        a(f"""
        v_lshlrev_b32 v{t0}, 16, v{gx+i}
        v_lshlrev_b32 v{t1}, 16, v{gg+i}
        v_mul_f32 v{t0}, v{t0}, v{t1}
        v_and_b32 v{t1}, 0xffff0000, v{gx+i}
        v_and_b32 v{t2}, 0xffff0000, v{gg+i}
        v_mul_f32 v{t1}, v{t1}, v{t2}
        v_cvt_pk_bf16_f32 v{t0}, v{t0}, v{t1}
        v_lshlrev_b32 v{t1}, 16, v{t0}
        v_and_b32 v{t0}, 0xffff0000, v{t0}
        v_add_f32 v{t3}, v{t3}, v{t1}
        v_add_f32 v{t3}, v{t3}, v{t0}
        """)
    allred("v_add_f32", t3, t3, t0)
    rbf(t3, t3)
    a(f"""
    v_mul_f32 v{t3}, {NLOG2E}, v{t3}
    v_exp_f32 v{t3}, v{t3}
    v_add_f32 v{t3}, 1.0, v{t3}
    v_rcp_f32 v{t3}, v{t3}
    """)
    rbf(vg, t3)
    a(f"v_sub_f32 v{vg+1}, 1.0, v{vg}")
    rbf(vg+1, vg+1)
    a(f"""
    s_mov_b32 s13, 0
    s_mov_b64 {MK[0]}, -1
    s_mov_b64 {MK[1]}, -1
    L_frp:
    """)
    masked([f"global_load_dwordx2 {vr(RS,2)}, v{ba+5}, s[40:41] sc1", f"global_load_dwordx2 {vr(RS+2,2)}, v{ba+6}, s[40:41] sc1"])
    a(f"""
    s_add_u32 s13, s13, 1
    s_waitcnt vmcnt(0)
    v_cmp_ne_u64 {MK[0]}, {TAG}, {vr(RS,2)}
    v_cmp_ne_u64 {MK[1]}, {TAG}, {vr(RS+2,2)}
    """)
    or_masks(2)
    spin_tail("L_frp", "L_fro")
    stamp("fo")
    pcl = [f"global_load_dwordx4 {vr(RB+4*j,4)}, v{vPBs+j}, s[40:41] sc1" for j in range(2)] + [f"global_load_dwordx4 {vr(RC+4*j,4)}, v{ba+j}, s[40:41] sc1" for j in range(4)]
    regs = [RB, RB+4, RC, RC+4, RC+8, RC+12]
    a(pcl[0])
    a(f"s_mov_b32 exec_hi, 0xfff\n{pcl[1]}\ns_mov_b32 exec_hi, -1")
    for l in pcl[2:]: a(l)
    a("s_mov_b32 s13, 0\ns_branch L_pcc\nL_pcp:")
    if opt("psl", 0): a(f"s_sleep {opt('psl', 0)}")
    masked(pcl)
    a("L_pcc:\ns_add_u32 s13, s13, 1")
    for j in range(6):
        a(f"s_waitcnt vmcnt({5-j})")
        sent_mask(j, regs[j], t2)
        if j == 1:
            for r in range(4): a(f"v_add_f32 v{RB+8+r}, v{RB+r}, v{RB+4+r}")
            for r in range(4): a(f"v_mul_f32 v{RB+8+r}, v{vg+1}, v{RB+8+r}")
    or_masks(6)
    spin_tail("L_pcp", "L_pco")
    stamp("pc")
    RB = RB + 8
    R = RC
    for r in range(0, 4, 2): a(f"v_pk_add_f32 {vr(R+r,2)}, {vr(R+r,2)}, {vr(R+4+r,2)}\nv_pk_add_f32 {vr(R+8+r,2)}, {vr(R+8+r,2)}, {vr(R+12+r,2)}")
    for r in range(0, 4, 2): a(f"v_pk_add_f32 {vr(R+r,2)}, {vr(R+r,2)}, {vr(R+8+r,2)}")
    for r in range(4): a(f"v_fmac_f32 v{RB+r}, v{vg}, v{RC+r}")
    R = RB
    a(f"""
    v_permlane32_swap_b32 v{R}, v{R+2}
    v_permlane32_swap_b32 v{R+1}, v{R+3}
    v_add_f32 v{R}, v{R}, v{R+2}
    v_add_f32 v{R+1}, v{R+1}, v{R+3}
    v_permlane16_swap_b32 v{R}, v{R+1}
    v_add_f32 v{R}, v{R}, v{R+1}
    v_add_f32_dpp v{R}, v{R}, v{R} row_ror:8 {DPPM}
    v_add_f32_dpp v{R}, v{R}, v{R} row_ror:4 {DPPM}
    v_add_f32_dpp v{R}, v{R}, v{R} row_ror:2 {DPPM}
    v_cvt_pk_bf16_f32 v{R}, v{R}, v{R}
    """)
    setexec(0x0003000300030003)
    a(f"global_store_short v{ba+4}, v{R}, s[36:37]{' sc1' if o.get('osc') else ''}")
    a(f"""
    s_cmp_lg_u32 s15, 0
    s_cbranch_scc1 L_noep
    s_mov_b64 exec, 1
    v_mov_b32 v{t0}, {EP_OFF}
    global_store_dwordx2 v{t0}, {vr(pub+2,2)}, s[40:41]{' sc1' if o.get('osc') else ''}
    L_noep:
    """)
    setexec(-1)
    stamp("out")
    a("L_fin:")
    if probe:
        prole, _, amp = probe; idx = 1
        a(f"""
        s_waitcnt lgkmcnt(0)
        s_cmp_eq_u32 s{80+2*idx}, 0
        s_cbranch_scc1 L_end
        s_sub_u32 s8, s{80+2*idx}, s80
        s_mul_i32 s8, s8, {amp}
        s_min_u32 s8, s8, {opt("fix", 100000)}
        L_probe:
        s_sleep 2
        s_memrealtime s[10:11]
        s_waitcnt lgkmcnt(0)
        s_sub_u32 s10, s10, s80
        s_cmp_lt_u32 s10, s8
        s_cbranch_scc1 L_probe
        """)
    if DEV:
        a(f"""
        s_waitcnt vmcnt(0)
        s_memrealtime s[100:101]
        s_waitcnt lgkmcnt(0)
        s_lshl_b32 s7, s2, 3
        s_add_u32 s7, s7, s3
        s_mul_i32 s7, s7, {NST*4}
        s_add_u32 s7, s7, {STAMP_OFF}
        s_mov_b64 exec, 1
        v_mov_b32 v3, s7
        """)
        for i in range(NST):
            a(f"v_mov_b32 v4, s{80+2*i}\nglobal_store_dword v3, v4, s[40:41] offset:{4*i}")
    a("L_end:\ns_endpgm")
    a(".fill 3600, 4, 0xbf800000")
    lines = hazard.fix(a.lines)
    nv = max(po_v, V.n, BIGEND, k_v)
    if DEV:
        for r_ in want: lines.insert(0, f"; STAMPS {r_} start " + " ".join(want[r_] + ["-"] * (NST - 2 - len(want[r_]))) + " end")
    return single("\n".join(lines) + "\n", 256, 512, 152064, vgpr=256, sgpr=102, accum=256), nv

if __name__ == "__main__":
    out = sys.argv[1]
    DEV = "dev" in sys.argv[2:]
    txt, nv = build(DEV, {k: True for k in sys.argv[2:]})
    open(out, "w").write(txt)
    print("vgprs", nv)
```

```python
import sys, math, struct
from genlib import *
import hazard

def f2u(x): return struct.unpack("<I", struct.pack("<f", x))[0]

QP_OFF, HP_OFF, FK_OFF, EP_OFF, FO_OFF, ML_OFF, PC_OFF, PF_OFF, QA_OFF, PB_OFF = 0x0, 0x40000, 0x60000, 0x64000, 0x68000, 0x70000, 0x80000, 0x100000, 0x180000, 0x200000
ROWB = 4096
SPIN = 200000
DPPM = "row_mask:0xf bank_mask:0xf"
NLOG2E = hex(f2u(-math.log2(math.e)))

def build(DEV=False, opts=None):
    o = dict(opts or {})
    def opt(name, dflt):
        for k in o:
            if k.startswith(name + "="): return int(k.split("=")[1])
        return dflt
    a = Asm()
    def nt(k): return " nt" if (o.get("nt") or o.get("nt_" + k)) else ""
    NST = 11
    probe = None
    for k in o:
        if k.startswith("probe"):
            _, role, idx, amp = k.split("_"); probe = (role, idx, int(amp))
    role = ["O"]
    want = {"O": "p1 wo go pb cp pc".split(), "K": "p1 wuk qp qa hp pf".split(), "A": "p1 ckv qap scm exp pbst fo pc out".split()}
    for k in o:
        for r_ in want:
            if k.startswith("s" + r_ + "="): want[r_] = k.split("=")[1].split(",")
    if probe: want = {"O": [], "K": [], "A": []}; want[probe[0]] = [probe[1]]
    def stamp(nm, wait=False):
        if not (DEV or probe): return
        if nm == "start": a("s_memrealtime s[80:81]"); return
        w = want[role[0]]
        if nm in w:
            i = w.index(nm) + 1
            a(f"s_memrealtime s[{80+2*i}:{81+2*i}]")
            if wait: a("s_waitcnt lgkmcnt(0)")
    class VA:
        def __init__(s, start): s.n = start
        def __call__(s, k=1, al=1):
            s.n = (s.n + al - 1) // al * al
            r = s.n; s.n += k
            assert s.n <= 254
            return r
    def vr(b, k): return f"v[{b}:{b+k-1}]"
    def srd(dst, src, size):
        a(f"s_mov_b32 s{dst}, s{src}\ns_mov_b32 s{dst+1}, s{src+1}\ns_mov_b32 s{dst+2}, {size}\ns_mov_b32 s{dst+3}, 0x20000")
    def setexec(mask):
        if mask == -1: a("s_mov_b64 exec, -1")
        elif mask < (1 << 31): a(f"s_mov_b64 exec, {hex(mask)}")
        else: a(f"s_mov_b32 exec_lo, {hex(mask & 0xffffffff)}\ns_mov_b32 exec_hi, {hex(mask >> 32)}")
    def spin_tail(Lp, Lo):
        a(f"s_cmp_gt_u32 s13, {SPIN}\ns_cbranch_scc1 {Lo}\ns_cbranch_vccnz {Lp}\n{Lo}:")
    def xrow(op, x, t):
        a(f"""
        v_mov_b32 v{t}, v{x}
        v_permlane16_swap_b32 v{x}, v{t}
        {op} v{x}, v{x}, v{t}
        v_mov_b32 v{t}, v{x}
        v_permlane32_swap_b32 v{x}, v{t}
        {op} v{x}, v{x}, v{t}
        """)
    def allred(op, dst, src, t):
        a(f"{op}_dpp v{dst}, v{src}, v{src} row_ror:1 {DPPM}")
        for d in (2, 4, 8): a(f"{op}_dpp v{dst}, v{dst}, v{dst} row_ror:{d} {DPPM}")
        xrow(op, dst, t)
    def red32(op, dst, src, t):
        a(f"{op}_dpp v{dst}, v{src}, v{src} quad_perm:[1,0,3,2] {DPPM}")
        a(f"{op}_dpp v{dst}, v{dst}, v{dst} quad_perm:[2,3,0,1] {DPPM}")
        a(f"{op}_dpp v{dst}, v{dst}, v{dst} row_ror:8 {DPPM}")
        xrow(op, dst, t)
    def rbf(dst, src):
        a(f"v_cvt_pk_bf16_f32 v{dst}, v{src}, v{src}\nv_and_b32 v{dst}, 0xffff0000, v{dst}")
    TAG = "s[70:71]"
    MK = ["s[72:73]", "s[74:75]", "s[76:77]", "s[66:67]", "s[64:65]", "s[62:63]"]
    def tagcheck(p): a(f"v_cmp_ne_u64 vcc, {TAG}, {vr(p,2)}")
    def sent_mask(k, R, t):
        a(f"v_max3_u32 v{t}, v{R}, v{R+1}, v{R+2}\nv_max_u32 v{t}, v{t}, v{R+3}\nv_cmp_eq_u32 {MK[k]}, -1, v{t}")
    def or_masks(n):
        a("s_nop 0")
        a(f"s_or_b64 vcc, {MK[0]}, {MK[1]}")
        for k in range(2, n): a(f"s_or_b64 vcc, vcc, {MK[k]}")
    def masked(loads):
        for k, l in enumerate(loads): a(f"s_mov_b64 exec, {MK[k]}\n{l}")
        a("s_mov_b64 exec, -1")
    def swz1280(dst, n, wsel):
        for j in range(n):
            a(f"""
            v_add_u32 v{t0}, {64*j}, v{vL}
            v_mul_u32_u24 v{t1}, 820, v{t0}
            v_lshrrev_b32 v{t1}, 16, v{t1}
            v_lshl_add_u32 v{t1}, v{t1}, 1, {wsel}
            v_xor_b32 v{t0}, v{t0}, v{t1}
            v_lshlrev_b32 v{dst+j}, 4, v{t0}
            """)
    def tr1280(dst, base):
        a(f"""
        v_lshrrev_b32 v{t1}, 2, v{vL}
        v_and_b32 v{t3}, 7, v{t1}
        v_and_b32 v{t2}, 3, v{vL}
        v_mul_u32_u24 v{t1}, 1280, v{t1}
        v_lshl_add_u32 v{t1}, v{t2}, 3, v{t1}
        v_add_u32 v{t1}, {base}, v{t1}
        s_mul_i32 s13, s3, 5
        """)
        for T in range(5):
            a(f"v_xor_b32 v{dst+T}, s13, v{t3}\nv_lshl_add_u32 v{dst+T}, v{dst+T}, 5, v{t1}\ns_add_u32 s13, s13, 1")
    def flag_store(sreg):
        a(f"""
        v_lshl_add_u32 v{t0}, v{vL}, 3, {sreg}
        s_mov_b64 exec, 0xffff
        global_store_dwordx2 v{t0}, {vr(pub+2,2)}, s[40:41] sc1
        s_mov_b64 exec, -1
        """)
    def flag_wait(va, R, lab, first=True):
        if first: a(f"s_mov_b32 s13, 0\ns_mov_b64 vcc, -1")
        else: a(f"s_mov_b32 s13, 0\ns_branch {lab}c")
        a(f"""
        {lab}p:
        s_mov_b64 exec, vcc
        global_load_dwordx2 {vr(R,2)}, v{va}, s[40:41] sc1
        s_mov_b64 exec, -1
        {lab}c:
        s_add_u32 s13, s13, 1
        s_waitcnt vmcnt(0)
        """)
        tagcheck(R)
        spin_tail(lab + "p", lab + "o")
    def rowmasks():
        a("s_mov_b32 s26, 0xffff0000\ns_mov_b32 s27, 0xffff0000\ns_mov_b32 s28, 0\ns_mov_b32 s29, -1")
    def rowstore(R, va):
        a(f"""
        v_cndmask_b32 v{R}, v{R}, v{R+4}, s[26:27]
        v_cndmask_b32 v{R+8}, v{R+8}, v{R+12}, s[26:27]
        v_cndmask_b32 v{R}, v{R}, v{R+8}, s[28:29]
        global_store_dword v{va}, v{R}, s[40:41] sc1
        s_mov_b32 exec_hi, 0
        global_store_dword v{va}, v{R+16}, s[40:41] offset:256 sc1
        s_mov_b32 exec_hi, -1
        """)
    def rowclear(sidx, off):
        a(f"""
        s_mul_i32 s8, {sidx}, {ROWB}
        s_add_u32 s8, s8, {off}
        v_lshl_add_u32 v{t0}, v{vL}, 4, s8
        s_mov_b32 exec_lo, 0xffffff
        s_mov_b32 exec_hi, 0xffffff
        global_store_dwordx4 v{t0}, {vr(Dq,4)}, s[40:41] sc1
        global_store_dwordx4 v{t0}, {vr(Dq,4)}, s[40:41] offset:1024 sc1
        global_store_dwordx4 v{t0}, {vr(Dq,4)}, s[40:41] offset:2048 sc1
        global_store_dwordx4 v{t0}, {vr(Dq,4)}, s[40:41] offset:3072 sc1
        s_mov_b64 exec, -1
        """)

    vL, vS, vE, vN, vG = 0, 1, 2, 3, 4
    t0, t1, t2, t3 = 6, 7, 8, 9
    pub = 10; msk = 14; Dq = 18; vWo = 5
    BIG = 22
    Y = BIG; WQ = BIG + 80; xd = BIG + 160; selE = BIG + 170; selO = BIG + 174
    BIGEND = BIG + 178
    if DEV or probe:
        for i in range(1, NST): a(f"s_mov_b32 s{80+2*i}, 0")
    stamp("start")
    a(f"""
    s_cmp_ge_u32 s2, 256
    s_cbranch_scc1 L_end
    s_load_dwordx16 s[16:31], s[0:1], 0
    s_load_dwordx2 s[40:41], s[0:1], 96
    s_load_dwordx8 s[32:39], s[0:1], 64
    v_lshrrev_b32 v1, 6, v0
    v_and_b32 v0, 63, v0
    v_readfirstlane_b32 s3, v1
    """)
    if not o.get("nocpf"):
        a(f"""
        s_cmp_lg_u32 s3, 3
        s_cbranch_scc1 L_nocpf
        s_cmp_ge_u32 s2, {opt("cpfn", 128)}
        s_cbranch_scc1 L_nocpf
        s_getpc_b64 s[42:43]
        v_lshlrev_b32 v{t0}, 6, v0
        v_add_u32 v{t1}, 8192, v{t0}
        global_load_dword v254, v{t0}, s[42:43]
        global_load_dword v255, v{t1}, s[42:43] offset:-4096
        global_load_dword v254, v{t1}, s[42:43]
        v_add_u32 v{t1}, 4096, v{t1}
        s_mov_b32 exec_hi, 0
        global_load_dword v255, v{t1}, s[42:43]
        s_mov_b32 exec_hi, -1
        L_nocpf:
        """)
    a(f"""
    s_and_b32 s4, s2, 7
    s_lshr_b32 s5, s2, 3
    v_and_b32 v3, 15, v0
    v_lshrrev_b32 v4, 4, v0
    v_lshrrev_b32 v1, 3, v0
    v_and_b32 v2, 7, v0
    v_mul_u32_u24 v{t0}, 40, v{vG}
    s_mul_i32 s8, s4, 160
    v_add_u32 v{t0}, s8, v{t0}
    v_mul_u32_u24 v{vWo}, {20*8192}, v{vG}
    v_lshl_add_u32 v{vWo}, v{vN}, 4, v{vWo}
    s_mul_i32 s8, s4, {80*8192}
    s_mov_b32 s9, s5                  ; q head
    s_lshl_b32 s10, s9, 8
    s_add_u32 s8, s8, s10
    s_mov_b32 s46, {SZ['wq']}
    s_mov_b32 s47, 0x20000
    s_lshr_b32 s68, s2, 6             ; 0,1: O  2: K  3: A
    s_cmp_eq_u32 s68, 2
    s_cselect_b32 s14, 2, 1
    s_cmp_ge_u32 s3, s14
    s_waitcnt lgkmcnt(0)
    s_load_dwordx2 {TAG}, s[40:41], {EP_OFF}
    s_cbranch_scc1 L_noP1a
    s_mov_b32 s44, s20
    s_mov_b32 s45, s21
    global_load_dwordx4 {vr(xd,4)}, v{t0}, s[16:17]
    global_load_dwordx4 {vr(xd+4,4)}, v{t0}, s[16:17] offset:16
    global_load_dwordx2 {vr(xd+8,2)}, v{t0}, s[16:17] offset:32
    s_cmp_lg_u32 s3, 0
    s_cbranch_scc1 L_nowq
    """)
    for u in range(20):
        a(f"buffer_load_dwordx4 {vr(WQ+4*u,4)}, v{vWo}, s[44:47], s8 offen{nt('wq')}\ns_add_u32 s8, s8, 8192")
    a(f"""
    L_nowq:
    s_barrier
    L_noP1a:
    v_and_b32 v{t0}, 1, v{vL}
    v_lshlrev_b32 v{t0}, 4, v{t0}
    v_mov_b32 v{t1}, 0xffff
    v_lshlrev_b32 v{t0}, v{t0}, v{t1}
    v_lshrrev_b32 v{t1}, 1, v{vE}
    s_and_b32 s7, s5, 3               ; O: sub
    s_bfe_u32 s6, s5, 0x20002
    s_lshl_b32 s6, s6, 3
    s_add_u32 s6, s6, s4              ; O: h
    s_and_b32 s15, s3, 3              ; cw
    s_and_b32 s78, s5, 1
    s_bfe_u32 s79, s5, 0x20001
    s_lshl_b32 s79, s79, 3
    s_add_u32 s79, s79, s4            ; K: h  A: chunk
    s_and_b32 s69, s2, 63
    """)
    for r in range(4):
        a(f"v_cmp_eq_u32 vcc, {r}, v{t1}\nv_cndmask_b32 v{msk+r}, 0, v{t0}, vcc")
    def gettag():
        a(f"s_waitcnt lgkmcnt(0)\ns_add_u32 s70, s70, 1\ns_add_u32 s71, s71, 0x9e3779b9\nv_mov_b32 v{pub+2}, s70\nv_mov_b32 v{pub+3}, s71")
    def gemv20(waits, vaddr, off):
        for u in range(20):
            if waits is not None: a(f"s_waitcnt vmcnt({19-u+waits})")
            a(f"v_mfma_f32_16x16x32_bf16 {vr(Dq,4)}, {vr(Y+4*u,4)}, {vr(WQ+4*u,4)}, {'0' if u == 0 else vr(Dq,4)}")
        a(f"""
        v_cvt_pk_bf16_f32 v{pub}, v{Dq}, v{Dq+1}
        v_cvt_pk_bf16_f32 v{pub+1}, v{Dq+2}, v{Dq+3}
        s_mov_b32 exec_hi, 0
        global_store_dwordx4 v{vaddr}, {vr(pub,4)}, s[40:41] offset:{off} sc1
        s_mov_b32 exec_hi, -1
        """)
    a(f"""
    s_cmp_ge_u32 s3, s14
    s_cbranch_scc1 L_noP1b
    v_mov_b32 v{t2}, 0x0c0c0c0c
    s_mov_b32 s12, 0x01000100
    s_mov_b32 s13, 0x03020302
    """)
    for r in range(4):
        a(f"v_bfi_b32 v{selE+r}, v{msk+r}, s12, v{t2}\nv_bfi_b32 v{selO+r}, v{msk+r}, s13, v{t2}")
    a(f"""
    s_lshl_b32 s12, s9, 3
    s_add_u32 s12, s12, s4
    s_lshl_b32 s12, s12, 10
    v_lshl_add_u32 v{t3}, v{vL}, 4, s12
    s_cmp_eq_u32 s3, 0
    s_cbranch_scc1 L_xw
    s_waitcnt vmcnt(0)
    L_xw:
    s_waitcnt vmcnt(20)
    """)
    for u in range(20):
        for r in range(4):
            a(f"v_perm_b32 v{Y+4*u+r}, v{xd+u//2}, v{xd+u//2}, v{(selO if u & 1 else selE)+r}")
    gettag()
    a("s_cmp_lg_u32 s3, 0\ns_cbranch_scc1 L_noP1b")
    gemv20(0, t3, QP_OFF + 512)
    if DEV: a("s_memrealtime s[82:83]")
    a(f"""
    L_noP1b:
    v_mov_b32 v{Dq}, -1
    v_mov_b32 v{Dq+1}, -1
    v_mov_b32 v{Dq+2}, -1
    v_mov_b32 v{Dq+3}, -1
    s_cmp_eq_u32 s68, 3
    s_cbranch_scc1 L_roleA
    s_cmp_match_placeholder
    """.replace("s_cmp_match_placeholder", "s_cmp_lt_u32 s68, 2\ns_cbranch_scc1 L_roleO"))
    role[0] = "K"
    WK = BIG; QPR = BIG + 64; qf = BIG + 80; D2 = BIG + 96; acc = BIG + 112; yI = BIG + 116; qp = BIG + 118
    V = VA(BIGEND)
    ba = V(5); vQs = V(2); vH = V(); vPF = V(); HR = V(4, 2); HP = V(8, 2); hs = V(4, 2)
    A2 = WQ; FO = WQ + 20
    QL, WKL = 0, 1024
    a(f"""
    s_lshl_b32 s8, s79, 11
    s_lshl_b32 s13, s78, 10
    s_add_u32 s12, s8, s13
    s_add_u32 s12, s12, {QA_OFF + 512}
    s_cmp_ge_u32 s3, 4
    s_cbranch_scc1 L_kK
    s_cmp_lt_u32 s3, 2
    s_cbranch_scc1 L_kH1
    s_cmp_lg_u32 s3, 3
    s_cbranch_scc1 L_kH0
    v_and_b32 v{t1}, 31, v{vL}
    v_lshl_add_u32 v{t1}, v{t1}, 4, s12
    v_lshrrev_b32 v{t2}, 5, v{vL}
    v_lshl_add_u32 v{t1}, v{t2}, 16, v{t1}
    """)
    for j in range(4): a(f"global_store_dwordx4 v{t1}, {vr(Dq,4)}, s[40:41] sc1\nv_add_u32 v{t1}, 0x20000, v{t1}")
    rowclear("s69", PF_OFF)
    a("L_kH0:\ns_barrier")
    gettag()
    a(f"""
    s_cmp_lg_u32 s3, 3
    s_cbranch_scc1 L_kH1
    s_lshl_b32 s8, s69, 8
    s_add_u32 s8, s8, {FK_OFF}
    s_waitcnt vmcnt(0)
    """)
    flag_store("s8")
    a(f"""
    L_kH1:
    s_barrier
    s_branch L_kJ
    L_kK:
    """)
    srd(48, 22, SZ['wuk'])
    a(f"""
    v_xor_b32 v{t0}, v{vN}, v{vG}
    v_lshlrev_b32 v{t1}, 15, v{vG}
    v_lshl_add_u32 v{ba}, v{t0}, 4, v{t1}
    v_xor_b32 v{ba+1}, 64, v{ba}
    v_xor_b32 v{ba+2}, 128, v{ba}
    v_xor_b32 v{ba+3}, 192, v{ba}
    s_lshl_b32 s10, s78, 21
    s_lshl_b32 s11, s15, 19
    s_add_u32 s10, s10, s11
    s_lshl_b32 s11, s79, 8
    s_add_u32 s10, s10, s11
    s_lshl_b32 s11, s15, 14
    s_add_u32 s11, s11, {WKL}
    s_barrier
    """)
    EK = opt("ek", 8)
    def wuk_ld(j):
        step = 16*8192 if (j & 3) != 3 else (1 - 48) * 8192
        a(f"s_mov_b32 m0, s11\ns_add_u32 s11, s11, 1024\nbuffer_load_dwordx4 v{ba+(j&3)}, s[48:51], s10 offen{nt('wuk')} lds\ns_add_u32 s10, s10, {hex(step & 0xffffffff)}")
    for j in range(EK): wuk_ld(j)
    gettag()
    a(f"""
    s_lshl_b32 s13, s15, 7
    s_add_u32 s8, s12, s13
    v_lshl_add_u32 v{vQs}, v{vN}, 3, s8
    v_lshl_add_u32 v{vQs}, v{vG}, 16, v{vQs}
    v_add_u32 v{vQs+1}, 0x40000, v{vQs}
    v_and_b32 v{acc}, 1, v{vG}
    v_cmp_eq_u32 vcc, 1, v{acc}
    v_cndmask_b32 v{yI}, v{msk}, v{msk+2}, vcc
    v_cndmask_b32 v{yI+1}, v{msk+1}, v{msk+3}, vcc
    v_and_b32 v{yI}, 0x3f803f80, v{yI}
    v_and_b32 v{yI+1}, 0x3f803f80, v{yI+1}
    s_lshl_b32 s8, s15, 8
    v_lshl_add_u32 v{acc+1}, v{vN}, 4, s8
    v_lshl_add_u32 v{acc+1}, v{vG}, 3, v{acc+1}
    v_lshl_add_u32 v{acc+2}, v{vG}, 4, s8
    s_lshl_b32 s8, s15, 14
    s_add_u32 s8, s8, {WKL}
    v_xor_b32 v{t0}, v{vN}, v{vG}
    v_lshl_add_u32 v{t1}, v{vN}, 8, s8
    v_lshl_add_u32 v{t0}, v{t0}, 4, v{t1}
    v_xor_b32 v{t1}, 64, v{t0}
    v_xor_b32 v{t2}, 128, v{t0}
    v_xor_b32 v{t3}, 192, v{t0}
    s_lshl_b32 s8, s79, 13
    s_add_u32 s8, s8, {QP_OFF + 4096 + 512}
    v_lshl_add_u32 v{acc}, v{vL}, 4, s8
    v_lshrrev_b32 v{acc+3}, 5, v{vL}
    v_lshl_add_u32 v{acc}, v{acc+3}, 9, v{acc}
    s_mov_b32 s13, 0
    s_barrier
    """)
    for j in range(EK, 16): wuk_ld(j)
    qpl = [f"global_load_dwordx4 {vr(QPR+4*j,4)}, v{acc}, s[40:41] offset:{2048*j-4096} sc1" for j in range(4)]
    QAT = opt("qat", 3)
    for tau in range(4):
        if tau == QAT:
            for l in qpl: a(l)
        a(f"s_waitcnt vmcnt({12-4*tau+(4 if tau >= QAT else 0)}) lgkmcnt(8)")
        for ks in range(4): a(f"ds_read_b128 {vr(WK+16*tau+4*ks,4)}, v{[t0,t1,t2,t3][ks]} offset:{4096*tau}")
    if QAT == 4:
        for l in qpl: a(l)
    stamp("wuk")
    a("s_branch L_qpc\nL_qpp:")
    masked(qpl)
    a("L_qpc:\ns_add_u32 s13, s13, 1\ns_waitcnt vmcnt(0)")
    for j in range(4):
        a(f"v_mfma_f32_16x16x16_bf16 {vr(Dq,4)}, {vr(yI,2)}, {vr(QPR+4*j,2)}, {'0' if j == 0 else vr(Dq,4)}")
        a(f"v_cmp_ne_u64 {MK[j]}, {TAG}, {vr(QPR+4*j+2,2)}")
    or_masks(4)
    spin_tail("L_qpp", "L_qpo")
    stamp("qp")
    a(f"""
    v_cvt_pk_bf16_f32 v{Dq}, v{Dq}, v{Dq+1}
    v_cvt_pk_bf16_f32 v{Dq+1}, v{Dq+2}, v{Dq+3}
    s_mov_b32 exec_hi, 0
    ds_write_b64 v{acc+1}, {vr(Dq,2)}
    s_mov_b32 exec_hi, -1
    s_mov_b32 s13, {hex(f2u(128**-0.5 * math.log2(math.e)))}
    s_waitcnt lgkmcnt(0)
    """)
    for ks in range(4): a(f"ds_read_b128 {vr(qf+4*ks,4)}, v{acc+2} offset:{64*ks}")
    for ks in range(4):
        a(f"s_waitcnt lgkmcnt({3-ks})")
        for tau in range(4):
            a(f"v_mfma_f32_16x16x32_bf16 {vr(D2+4*tau,4)}, {vr(qf+4*ks,4)}, {vr(WK+16*tau+4*ks,4)}, {'0' if ks == 0 else vr(D2+4*tau,4)}")
    for tau in range(4): a(f"v_mul_f32 v{D2+4*tau}, s13, v{D2+4*tau}")
    a(f"""
    v_cvt_pk_bf16_f32 v{qp}, v{D2}, v{D2+4}
    v_cvt_pk_bf16_f32 v{qp+1}, v{D2+8}, v{D2+12}
    global_store_dwordx2 v{vQs}, {vr(qp,2)}, s[40:41] sc1
    global_store_dwordx2 v{vQs+1}, {vr(qp,2)}, s[40:41] sc1
    """)
    stamp("qa")
    if o.get("qack"): a("s_waitcnt vmcnt(0)")
    a("L_kJ:")
    srd(60, 30, SZ['w1']); srd(52, 32, SZ['w2'])
    a(f"s_and_b32 s13, s3, 1\ns_lshl_b32 s13, s13, 3")
    swz1280(ba, 5, "s13")
    a(f"""
    s_mul_i32 s42, s69, {32*1280}
    s_mul_i32 s43, s3, 5120
    s_add_u32 s42, s42, s43
    s_add_u32 s43, s43, {WKL}
    v_mul_u32_u24 v{vWo}, {20*3456}, v{vG}
    v_lshl_add_u32 v{vWo}, v{vN}, 4, v{vWo}
    s_and_b32 s9, s5, 7
    s_lshl_b32 s9, s9, 1
    s_add_u32 s9, s9, s3
    s_mul_i32 s14, s4, {80*3456}
    s_lshl_b32 s8, s9, 8
    s_add_u32 s14, s14, s8
    s_lshl_b32 s9, s9, 3
    s_add_u32 s9, s9, s4
    s_lshl_b32 s9, s9, 10
    s_add_u32 s9, s9, {HP_OFF + 512}
    v_lshl_add_u32 v{vH}, v{vL}, 4, s9
    s_barrier
    s_cmp_ge_u32 s69, 56
    s_cbranch_scc1 L_fin
    s_cmp_ge_u32 s3, 2
    s_cbranch_scc1 L_now1
    """)
    for u in range(20):
        a(f"buffer_load_dwordx4 {vr(WQ+4*u,4)}, v{vWo}, s[60:63], s14 offen{nt('w1')}\ns_add_u32 s14, s14, 3456")
    a("L_now1:\ns_barrier\ns_cmp_ge_u32 s3, 2\ns_cbranch_scc1 L_now1b\ns_setprio 3")
    gemv20(0, vH, 0)
    stamp("hp")
    a("s_setprio 0\ns_branch L_w2d\nL_now1b:\ns_mov_b32 s8, s3\nL_w2l:")
    for j in range(5):
        a(f"s_mov_b32 m0, s43\ns_add_u32 s43, s43, 1024\nbuffer_load_dwordx4 v{ba+j}, s[52:55], s42 offen{nt('w2')} lds")
    a(f"""
    s_cmp_ge_u32 s8, 4
    s_cbranch_scc1 L_w2d
    s_mov_b32 s8, 4
    s_sub_u32 s42, s42, 10240
    s_sub_u32 s43, s43, 15360
    s_branch L_w2l
    L_w2d:
    """)
    tr1280(ba, WKL)
    rowmasks()
    a(f"""
    s_lshr_b32 s8, s69, 2
    s_lshl_b32 s8, s8, 13
    s_and_b32 s9, s69, 3
    s_lshl_b32 s9, s9, 6
    s_add_u32 s8, s8, s9
    s_add_u32 s8, s8, {HP_OFF + 512}
    v_lshl_add_u32 v{vH}, v{vE}, 10, s8
    v_and_b32 v{t1}, 1, v{vG}
    v_lshl_add_u32 v{vH}, v{t1}, 8, v{vH}
    v_lshrrev_b32 v{t1}, 1, v{vG}
    v_lshl_add_u32 v{vH}, v{t1}, 4, v{vH}
    v_and_b32 v{t1}, 1, v{vS}
    v_lshl_add_u32 v{vH}, v{t1}, 5, v{vH}
    s_mul_i32 s8, s69, {ROWB}
    s_lshl_b32 s9, s3, 9
    s_add_u32 s8, s8, s9
    s_add_u32 s8, s8, {PF_OFF}
    v_lshl_add_u32 v{vPF}, v{vL}, 2, s8
    s_waitcnt vmcnt(0)
    s_barrier
    s_cmp_ge_u32 s69, 54
    s_cbranch_scc1 L_fin
    global_load_dwordx4 {vr(HR,4)}, v{vH}, s[40:41] sc1
    """)
    for T in range(5):
        for aa in range(2): a(f"ds_read_b64_tr_b16 {vr(A2+4*T+2*aa,2)}, v{ba+T} offset:{aa*20480}")
    a(f"""
    s_mov_b32 s13, 0
    s_branch L_hpc
    L_hpp:
    s_mov_b64 exec, vcc
    global_load_dwordx4 {vr(HR,4)}, v{vH}, s[40:41] sc1
    s_mov_b64 exec, -1
    L_hpc:
    s_add_u32 s13, s13, 1
    s_waitcnt vmcnt(0)
    """)
    tagcheck(HR+2)
    spin_tail("L_hpp", "L_hpo")
    a(f"""
    v_lshlrev_b32 v{HP}, 16, v{HR}
    v_and_b32 v{HP+1}, 0xffff0000, v{HR}
    v_lshlrev_b32 v{HP+2}, 16, v{HR+1}
    v_and_b32 v{HP+3}, 0xffff0000, v{HR+1}
    """)
    for d in ("quad_perm:[1,0,3,2]", "quad_perm:[2,3,0,1]", "row_half_mirror"):
        for r in range(4): a(f"v_add_f32_dpp v{HP+r}, v{HP+r}, v{HP+r} {d} {DPPM}")
    for r in range(4): a(f"v_mul_f32 v{HP+4+r}, {NLOG2E}, v{HP+r}")
    for r in range(4): a(f"v_exp_f32 v{HP+4+r}, v{HP+4+r}")
    for r in range(4): a(f"v_add_f32 v{HP+4+r}, 1.0, v{HP+4+r}")
    for r in range(4): a(f"v_rcp_f32 v{HP+4+r}, v{HP+4+r}")
    for r in range(4): a(f"v_mul_f32 v{HP+r}, v{HP+r}, v{HP+4+r}")
    a(f"""
    v_cvt_pk_bf16_f32 v{hs}, v{HP}, v{HP+1}
    v_cvt_pk_bf16_f32 v{hs+1}, v{HP+2}, v{HP+3}
    v_mov_b32 v{hs+2}, v{hs}
    v_mov_b32 v{hs+3}, v{hs+1}
    v_mov_b32_dpp v{hs}, v{hs} row_ror:8 row_mask:0xf bank_mask:0xc
    v_mov_b32_dpp v{hs+1}, v{hs+1} row_ror:8 row_mask:0xf bank_mask:0xc
    v_mov_b32_dpp v{hs+2}, v{hs+2} row_ror:8 row_mask:0xf bank_mask:0x3
    v_mov_b32_dpp v{hs+3}, v{hs+3} row_ror:8 row_mask:0xf bank_mask:0x3
    s_waitcnt lgkmcnt(0)
    """)
    for T in range(5): a(f"v_mfma_f32_16x16x32_bf16 {vr(FO+4*T,4)}, {vr(hs,4)}, {vr(A2+4*T,4)}, 0")
    rowstore(FO, vPF)
    stamp("pf")
    a("s_branch L_fin")
    k_v = V.n
    role[0] = "O"
    V = VA(BIG)
    AO = V(40, 2); AUV = V(32, 2); YW = V(8, 2); PBR = V(8, 2); OUT = V(20, 2); D2 = V(16, 2)
    acc = V(4, 2); ml = V(4, 2); qp = V(8, 2); cf = V(8, 2)
    oW = V(5); ones = V(2, 2)
    vML, vPB, vCW, vCR, vCT, vPC, vMS, vFA, vSc, vM2 = [V() for _ in range(10)]; vUo = V(2)
    MLS, SCL, CP, CC, WUVL, WOL = 0, 1024, 2048, 4096, 8192, 40960
    a(f"""
    L_roleO:
    s_cmp_lg_u32 s3, 2
    s_cbranch_scc1 L_o1
    """)
    rowclear("s2", PC_OFF)
    a("L_o1:")
    srd(52, 24, SZ['wuv']); srd(56, 26, SZ['wo'])
    a(f"""
    s_lshr_b32 s13, s7, 1             ; ch
    s_and_b32 s10, s3, 1
    s_lshl_b32 s10, s10, 2
    v_xor_b32 v{t0}, s10, v{vE}
    v_and_b32 v{t1}, 4, v{vS}
    v_and_b32 v{t2}, 1, v{vS}
    v_lshl_add_u32 v{t1}, v{t2}, 1, v{t1}
    v_bfe_u32 v{t2}, v{vS}, 1, 1
    v_add_u32 v{t1}, v{t1}, v{t2}
    v_lshlrev_b32 v{vUo}, 13, v{t1}
    v_lshl_add_u32 v{vUo}, v{t0}, 4, v{vUo}
    v_xor_b32 v{vUo+1}, 32, v{vUo}
    s_lshl_b32 s10, s13, 21
    s_lshl_b32 s11, s3, 18
    s_add_u32 s10, s10, s11
    s_lshl_b32 s11, s6, 8
    s_add_u32 s10, s10, s11
    s_and_b32 s11, s7, 1
    s_lshl_b32 s11, s11, 7
    s_add_u32 s10, s10, s11
    s_lshl_b32 s11, s3, 12
    s_add_u32 s11, s11, {WUVL}
    s_cmp_eq_u32 s3, 0
    s_cbranch_scc1 L_o2
    s_barrier
    L_o2:
    """)
    EO = opt("eo", 0)
    def wuv_load(j):
        a(f"s_mov_b32 m0, s11\ns_add_u32 s11, s11, 1024\nbuffer_load_dwordx4 v{vUo+(j>>1)}, s[52:55], s10 offen{nt('wuv')} lds\ns_add_u32 s10, s10, 65536")
    if o.get("opk"):
        a(f"""
        s_cmp_lt_u32 s3, 4
        s_cbranch_scc1 L_nopk
        v_lshrrev_b32 v{t0}, 2, v{vL}
        v_and_b32 v{t1}, 1, v{t0}
        v_lshl_add_u32 v{t1}, v{vS}, 2, v{t1}
        v_and_b32 v{t2}, 3, v{vL}
        v_lshlrev_b32 v{t2}, 6, v{t2}
        v_lshl_add_u32 v{t1}, v{t1}, 13, v{t2}
        s_lshl_b32 s12, s7, 20
        s_lshl_b32 s8, s15, 18
        s_add_u32 s12, s12, s8
        s_lshl_b32 s8, s6, 8
        s_add_u32 s12, s12, s8
        s_add_u32 s12, s12, 16384
        v_add_u32 v{t1}, s12, v{t1}
        global_load_dword v254, v{t1}, s[22:23]{nt('pk')}
        """)
        if o.get("opk2"):
            a(f"v_add_u32 v{t1}, {(-16384) & 0xffffffff}, v{t1}\ns_mov_b32 exec_lo, 0xf0f0f0f0\ns_mov_b32 exec_hi, 0xf0f0f0f0\nglobal_load_dword v254, v{t1}, s[22:23]{nt('pk')}\ns_mov_b64 exec, -1")
        if o.get("opc"):
            a(f"""
            s_lshl_b32 s8, s6, 17
            s_lshl_b32 s12, s7, 15
            s_add_u32 s8, s8, s12
            s_lshl_b32 s12, s15, 13
            s_add_u32 s8, s8, s12
            s_add_u32 s8, s8, 4096
            v_lshl_add_u32 v{t0}, v{vL}, 6, s8
            global_load_dword v254, v{t0}, s[18:19]{nt('pc')}
            """)
        a("L_nopk:")
    for j in range(EO): wuv_load(j)
    a("s_cmp_eq_u32 s3, 0\ns_cbranch_scc1 L_o3")
    gettag()
    a("L_o3:")
    if o.get("bback"): a("s_cmp_lg_u32 s3, 0\ns_cbranch_scc1 L_o2b\ns_waitcnt vmcnt(0)\nL_o2b:")
    a(f"s_and_b32 s8, s3, 1\ns_lshl_b32 s8, s8, 3")
    swz1280(oW, 5, "s8")
    a(f"""
    s_and_b32 s12, s7, 1
    s_lshl_b32 s8, s6, 1
    s_add_u32 s12, s12, s8
    s_mul_i32 s12, s12, {64*1280}
    s_mul_i32 s14, s13, 40960
    s_mul_i32 s9, s3, 5120
    s_add_u32 s14, s14, s9
    s_add_u32 s12, s12, s14
    s_add_u32 s14, s14, {WOL}
    s_mul_i32 s9, s13, 81920
    s_sub_u32 s9, 40960, s9
    s_barrier
    """)
    OPF = opt("opf", 0)
    if OPF:
        a(f"""
        s_cmp_ge_u32 s3, {OPF}
        s_cbranch_scc1 L_nopf
        s_lshl_b32 s8, s6, 17
        s_lshl_b32 s42, s7, 15
        s_add_u32 s8, s8, s42
        s_and_b32 s42, s3, 3
        s_lshl_b32 s42, s42, 13
        s_add_u32 s8, s8, s42
        s_lshr_b32 s42, s3, 2
        s_lshl_b32 s42, s42, 12
        s_sub_u32 s8, s8, s42
        s_add_u32 s8, s8, 4096
        v_lshl_add_u32 v{t0}, v{vL}, 6, s8
        global_load_dword v254, v{t0}, s[18:19]{nt('pc')}
        L_nopf:
        """)
    TH = opt("th", 0); THN = opt("thn", 9)
    def wo_load(j, k='wo'):
        a(f"s_mov_b32 m0, s14\ns_add_u32 s14, s14, 1024\nbuffer_load_dwordx4 v{oW+j}, s[56:59], s12 offen{nt(k)} lds")
    cold = [lambda j=j: wuv_load(j) for j in range(EO, 4)] + [lambda j=j: wo_load(j) for j in range(5)]
    for n_, f in enumerate(cold):
        f()
        if TH and n_ < THN: a(f"s_waitcnt vmcnt({TH-1})")
    a(f"s_add_u32 s12, s12, s9\ns_add_u32 s14, s14, s9\ns_sub_u32 s14, s14, 5120")
    for j in range(5): wo_load(j, 'wo2')
    a(f"""
    s_lshr_b32 s8, s6, 4
    s_lshl_b32 s8, s8, 15
    s_and_b32 s42, s6, 15
    s_lshl_b32 s42, s42, 4
    s_add_u32 s8, s8, s42
    s_add_u32 s8, s8, {ML_OFF + 512}
    s_lshr_b32 s42, s3, 2             ; hh
    s_lshl_b32 s43, s42, 1
    v_and_b32 v{t0}, 3, v{vL}
    v_xor_b32 v{t0}, s43, v{t0}
    v_lshl_add_u32 v{t0}, v{vS}, 2, v{t0}
    v_lshl_add_u32 v{vML}, v{t0}, 10, s8
    s_lshl_b32 s43, s42, 3
    v_lshlrev_b32 v{vM2}, 2, v{vL}
    v_xor_b32 v{vM2}, s43, v{vM2}
    s_lshl_b32 s8, s6, 16
    s_lshl_b32 s43, s13, 10
    s_add_u32 s8, s8, s43
    s_lshl_b32 s43, s15, 7
    s_add_u32 s8, s8, s43
    s_lshl_b32 s43, s42, 12
    s_add_u32 s8, s8, s43
    s_add_u32 s8, s8, {PB_OFF + 512}
    v_lshl_add_u32 v{vPB}, v{vS}, 13, s8
    v_lshl_add_u32 v{vPB}, v{vE}, 4, v{vPB}
    s_lshl_b32 s8, s15, 9
    s_add_u32 s8, s8, {CC}
    s_lshl_b32 s43, s42, 8
    s_add_u32 s43, s43, s8
    v_lshrrev_b32 v{t2}, 1, v{vG}
    v_lshl_add_u32 v{vCW}, v{t2}, 7, s43
    v_lshl_add_u32 v{vCW}, v{vE}, 4, v{vCW}
    v_lshlrev_b32 v{t0}, 9, v{t2}             ; 4*(g>>1) rows
    v_and_b32 v{t2}, 1, v{vG}
    v_lshl_add_u32 v{vCW}, v{t2}, 3, v{vCW}
    v_lshl_add_u32 v{t0}, v{t2}, 7, v{t0}     ; + (g&1) rows
    v_and_b32 v{t2}, 3, v{vL}
    v_lshl_add_u32 v{vCR}, v{t2}, 7, s8
    v_lshl_add_u32 v{vCR}, v{vG}, 4, v{vCR}
    s_lshl_b32 s8, s15, 2
    v_add_u32 v{t2}, s8, v{t2}                ; p = 4u + j
    v_lshrrev_b32 v{t1}, 1, v{t2}
    s_lshl_b32 s8, s42, 2
    v_xor_b32 v{t1}, s8, v{t1}
    v_xor_b32 v{t1}, v{t1}, v{vG}
    v_lshlrev_b32 v{vCT}, 7, v{t2}
    v_lshl_add_u32 v{vCT}, v{t1}, 4, v{vCT}
    v_lshrrev_b32 v{t1}, 1, v{vN}
    v_xor_b32 v{t1}, v{t1}, v{vG}
    v_lshlrev_b32 v{vMS}, 7, v{vN}
    v_lshl_add_u32 v{vMS}, v{t1}, 4, v{vMS}
    v_xor_b32 v{ones}, 64, v{vMS}
    s_lshl_b32 s64, s42, 1
    s_mul_i32 s8, s2, {ROWB}
    s_lshl_b32 s42, s3, 9
    s_add_u32 s8, s8, s42
    s_add_u32 s8, s8, {PC_OFF}
    v_lshl_add_u32 v{vPC}, v{vL}, 2, s8
    v_bfe_u32 v{acc}, v{vL}, 2, 2             ; r
    v_lshl_add_u32 v{t0}, v{acc}, 11, v{t0}
    v_and_b32 v{t2}, 3, v{vL}
    v_lshl_add_u32 v{t0}, v{t2}, 3, v{t0}
    s_lshl_b32 s8, s15, 13
    s_add_u32 s8, s8, {WUVL}
    v_add_u32 v{t0}, s8, v{t0}
    """)
    a(f"v_xor_b32 v{acc}, s64, v{acc}")
    for Td in range(2):
        a(f"v_xor_b32 v{t2}, {Td}, v{acc}\nv_lshl_add_u32 v{cf+Td}, v{t2}, 5, v{t0}")
    tr1280(oW, WOL)
    rowmasks()
    a(f"""
    s_lshl_b32 s8, s2, 8
    s_add_u32 s8, s8, {FO_OFF}
    """)
    LW = opt("lw", 7)
    FOE = f"s_mov_b64 exec, 1\nglobal_store_dwordx2 v{vFA}, {vr(pub+2,2)}, s[40:41] sc1\ns_mov_b64 exec, -1\ns_mov_b32 s42, 0" if opt("fop", 0) == 2 else ""
    a(f"""
    v_lshl_add_u32 v{vFA}, v{vN}, 3, s8
    s_cmp_eq_u32 s3, {LW}
    s_cselect_b64 s[44:45], -1, 0
    s_cmp_eq_u32 s3, 0
    s_cselect_b32 s42, 0xffff, 0
    s_mov_b32 s43, 0
    s_cbranch_scc0 L_gow
    s_mov_b32 s13, 0
    s_mov_b64 vcc, -1
    s_waitcnt vmcnt({opt("mw", 0)})
    L_gop:
    s_mov_b64 exec, vcc
    global_load_dwordx4 {vr(ml,4)}, v{vML}, s[40:41] sc1
    s_mov_b64 exec, -1
    L_goc:
    s_add_u32 s13, s13, 1
    s_waitcnt vmcnt(0)
    """)
    tagcheck(ml+2)
    spin_tail("L_gop", "L_goo")
    a(f"""
    ds_write_b32 v{vM2}, v{ml} offset:{MLS}
    L_gow:
    s_waitcnt vmcnt(0)
    """)
    stamp("wo")
    a("s_waitcnt lgkmcnt(0)\ns_barrier")
    stamp("go")
    FO1 = 0
    pbl = [f"global_load_dwordx4 {vr(PBR+4*u,4)}, v{vPB}, s[40:41] offset:{2048*u} sc1" for u in range(2)]
    lrl = f"global_load_dwordx4 {vr(ml,4)}, v{vML}, s[40:41] offset:256 sc1"
    fost = f"s_mov_b64 exec, s[42:43]\nglobal_store_dwordx2 v{vFA}, {vr(pub+2,2)}, s[40:41] sc1\ns_mov_b64 exec, -1"
    for l in pbl: a(l)
    a(f"ds_read_b32 v{t3}, v{vM2} offset:{MLS}")
    a(f"s_mov_b64 exec, s[44:45]\n{lrl}")
    if FO1: a(fost)
    else: a("s_mov_b64 exec, -1")
    a("s_waitcnt lgkmcnt(0)")
    red32("v_max_f32", t0, t3, t1)
    a(f"""
    v_sub_f32 v{t3}, v{t3}, v{t0}
    v_exp_f32 v{t3}, v{t3}
    s_mov_b32 s13, 0
    v_cvt_pk_bf16_f32 v{t2}, v{t3}, v{t3}
    """)
    for u in range(2):
        for r in range(4):
            a(f"v_and_b32_dpp v{YW+4*u+r}, v{t2}, v{msk+r} quad_perm:[{u},{u},{u},{u}] {DPPM}")
    for ks in range(2):
        for Td in range(2):
            for aa in range(2):
                a(f"ds_read_b64_tr_b16 {vr(AUV+8*ks+4*Td+2*aa,2)}, v{cf+Td} offset:{(8*ks+2*aa)*128}")
        a("s_waitcnt lgkmcnt(5)")
    for T in range(5):
        for ks in range(2):
            for aa in range(2):
                a(f"ds_read_b64_tr_b16 {vr(AO+8*T+4*ks+2*aa,2)}, v{oW+T} offset:{(2*ks+aa)*20480}")
        if T in (1, 3): a("s_waitcnt lgkmcnt(5)")
    a(f"s_waitcnt vmcnt({1+FO1})\ns_branch L_pbc\nL_pbp:")
    masked(pbl)
    a("s_waitcnt vmcnt(0)\nL_pbc:\ns_add_u32 s13, s13, 1")
    for u in range(2):
        a(f"v_mfma_f32_16x16x32_bf16 {vr(Dq,4)}, {vr(YW+4*u,4)}, {vr(PBR+4*u,4)}, {'0' if u == 0 else vr(Dq,4)}")
        sent_mask(u, PBR+4*u, t2)
    or_masks(2)
    spin_tail("L_pbp", "L_pbo")
    stamp("pb")
    FOP = opt("fop", 0)
    if FOP in (0, 2): a(fost)
    a(f"""
    v_cvt_pk_bf16_f32 v{qp}, v{Dq}, v{Dq+1}
    v_cvt_pk_bf16_f32 v{qp+1}, v{Dq+2}, v{Dq+3}
    """)
    setexec(0xFF00FF0000FF00FF)
    a(f"ds_write_b64 v{vCW}, {vr(qp,2)}")
    setexec(-1)
    a(f"""
    s_waitcnt lgkmcnt(0)
    s_barrier
    ds_read_b128 {vr(cf,4)}, v{vCR}
    ds_read_b128 {vr(cf+4,4)}, v{vCR} offset:64
    """)
    if FOP == 1: a(fost)
    a(f"""
    v_mov_b32 v{t2}, {SCL}
    s_cmp_lg_u32 s3, {LW}
    s_cbranch_scc1 L_nolr
    s_mov_b32 s13, 0
    s_waitcnt vmcnt(1)
    s_branch L_lrc
    L_lrp:
    s_mov_b64 exec, vcc
    {lrl}
    s_mov_b64 exec, -1
    s_waitcnt vmcnt(0)
    L_lrc:
    s_add_u32 s13, s13, 1
    """)
    tagcheck(ml+2)
    spin_tail("L_lrp", "L_lro")
    a(f"v_mul_f32 v{t3}, v{t3}, v{ml}")
    red32("v_add_f32", t0, t3, t1)
    a(f"v_rcp_f32 v{t0}, v{t0}\ns_waitcnt lgkmcnt(0)\nds_write_b32 v{t2}, v{t0}\nL_nolr:")
    for ks in range(2):
        a(f"s_waitcnt lgkmcnt({1-ks})")
        for Td in range(2):
            a(f"v_mfma_f32_16x16x32_bf16 {vr(D2+4*Td,4)}, {vr(AUV+8*ks+4*Td,4)}, {vr(cf+4*ks,4)}, {'0' if ks == 0 else vr(D2+4*Td,4)}")
    for i in range(4): a(f"v_cvt_pk_bf16_f32 v{qp+i}, v{D2+2*i}, v{D2+2*i+1}")
    setexec(0x000F000F000F000F)
    a(f"ds_write_b128 v{vCT}, {vr(qp,4)} offset:{CP}")
    setexec(-1)
    a("s_waitcnt lgkmcnt(0)\ns_barrier")
    stamp("cp", True)
    a(f"""
    ds_read_b128 {vr(qp,4)}, v{vMS} offset:{CP}
    ds_read_b128 {vr(qp+4,4)}, v{ones} offset:{CP}
    ds_read_b32 v{vSc}, v{t2}
    """)
    TO = [4, 0, 2, 1, 3]
    for ks in range(2):
        a(f"s_waitcnt lgkmcnt({2-ks})")
        for T in TO:
            a(f"v_mfma_f32_16x16x32_bf16 {vr(OUT+4*T,4)}, {vr(qp+4*ks,4)}, {vr(AO+8*T+4*ks,4)}, {'0' if ks == 0 else vr(OUT+4*T,4)}")
    R = OUT
    for T in TO:
        a(f"v_pk_add_f32 {vr(R+4*T,2)}, {vr(R+4*T,2)}, {vr(R+4*T+2,2)}")
    for T in TO:
        a(f"v_add_f32 v{R+4*T}, v{R+4*T}, v{R+4*T+1}")
    a(f"""
    v_mov_b32 v{R+17}, v{R+16}
    v_permlane32_swap_b32 v{R}, v{R+8}
    v_permlane32_swap_b32 v{R+4}, v{R+12}
    v_permlane32_swap_b32 v{R+16}, v{R+17}
    v_add_f32 v{R}, v{R}, v{R+8}
    v_add_f32 v{R+4}, v{R+4}, v{R+12}
    v_add_f32 v{R+16}, v{R+16}, v{R+17}
    s_waitcnt lgkmcnt(0)
    v_mov_b32 v{R+17}, v{R+16}
    v_permlane16_swap_b32 v{R}, v{R+4}
    v_add_f32 v{R}, v{R}, v{R+4}
    v_permlane16_swap_b32 v{R+16}, v{R+17}
    v_mul_f32 v{R}, v{vSc}, v{R}
    v_add_f32 v{R+16}, v{R+16}, v{R+17}
    global_store_dword v{vPC}, v{R}, s[40:41] sc1
    v_mul_f32 v{R+16}, v{vSc}, v{R+16}
    s_mov_b32 exec_hi, 0
    global_store_dword v{vPC}, v{R+16}, s[40:41] offset:256 sc1
    s_mov_b32 exec_hi, -1
    """)
    stamp("pc")
    a("s_branch L_fin")
    po_v = V.n
    role[0] = "A"
    CK = BIG; CV = BIG + 64; QB = BIG + 128
    V = VA(BIG + 192)
    MXR = QB; U = QB + 8; DP = QB + 24; DL = QB + 40; on4 = QB + 44
    DS = Dq
    ba = V(8); vPBs = V(4); vMLs = V(); vq = V(); vqw = V(2); vqr = V(2); vPr = V(); vPw = V(); vMw = V(); vMr = V()
    QP = V(8, 2)
    ml = pub
    CKV, QAS, PL, MX = 0, 131072, 147456, 151552
    EA = opt("ea", 4); CLR = opt("clr", 1)
    def pbclear():
        a(f"""
        s_lshl_b32 s12, s78, 4
        s_lshl_b32 s13, s3, 1
        s_add_u32 s12, s12, s13
        s_lshl_b32 s12, s12, 16
        s_lshl_b32 s13, s79, 11
        s_add_u32 s12, s12, s13
        s_add_u32 s12, s12, {PB_OFF + 512}
        v_lshl_add_u32 v{t0}, v{vL}, 4, s12
        v_lshrrev_b32 v{t1}, 5, v{vL}
        v_lshl_add_u32 v{t0}, v{t1}, 9, v{t0}
        v_add_u32 v{t1}, 0x10000, v{t0}
        global_store_dwordx4 v{t0}, {vr(Dq,4)}, s[40:41] sc1
        global_store_dwordx4 v{t1}, {vr(Dq,4)}, s[40:41] sc1
        """)
    a("L_roleA:")
    if CLR == 0: pbclear()
    a(f"""
    s_lshl_b32 s8, s79, 17
    s_lshl_b32 s9, s3, 14
    s_add_u32 s8, s8, s9
    s_lshl_b32 s10, s78, 13                  ; rotation
    v_lshlrev_b32 v{t3}, 4, v{vL}
    """)
    for k in range(8): a(f"v_xor_b32 v{ba+k}, {32*k}, v{t3}")
    srd(48, 18, SZ['ckv'])
    def ckv_ld(jj):
        if jj % 4 == 0: a("s_add_u32 s11, s9, s10\ns_add_u32 s14, s8, s10\ns_mov_b32 m0, s11\ns_add_u32 s10, s10, 4096\ns_and_b32 s10, s10, 0x3fff")
        a(f"buffer_load_dwordx4 v{ba+(jj&7)}, s[48:51], s14 offen offset:{1024*(jj&3)}{nt('ckv')} lds")
    if o.get("apf"):
        a(f"""
        v_lshrrev_b32 v{t0}, 2, v{vL}
        v_and_b32 v{t1}, 1, v{t0}
        v_lshl_add_u32 v{t1}, v{vS}, 2, v{t1}
        v_and_b32 v{t2}, 3, v{vL}
        v_lshlrev_b32 v{t2}, 6, v{t2}
        v_lshl_add_u32 v{t1}, v{t1}, 13, v{t2}
        s_lshl_b32 s12, s78, 21
        s_lshl_b32 s13, s3, 18
        s_add_u32 s12, s12, s13
        s_lshl_b32 s13, s79, 8
        s_add_u32 s12, s12, s13
        s_add_u32 s12, s12, 16384
        v_add_u32 v{t1}, s12, v{t1}
        global_load_dword v254, v{t1}, s[22:23]{nt('pk')}
        s_barrier
        """)
    a("s_cmp_eq_u32 s3, 0\ns_cbranch_scc1 L_a1\ns_barrier\nL_a1:")
    if o.get("apf1"):
        a(f"""
        s_cmp_lt_u32 s3, 4
        s_cbranch_scc1 L_noapf
        v_lshrrev_b32 v{t0}, 2, v{vL}
        v_and_b32 v{t2}, 3, v{vL}
        v_lshlrev_b32 v{t2}, 6, v{t2}
        v_lshl_add_u32 v{t1}, v{t0}, 15, v{t2}
        s_lshl_b32 s12, s78, 21
        s_lshl_b32 s13, s15, 19
        s_add_u32 s12, s12, s13
        s_lshl_b32 s13, s79, 8
        s_add_u32 s12, s12, s13
        s_add_u32 s12, s12, 8192
        v_add_u32 v{t1}, s12, v{t1}
        global_load_dword v254, v{t1}, s[22:23]{nt('pk')}
        L_noapf:
        """)
        if EA: a("s_cmp_eq_u32 s3, 0\ns_cbranch_scc1 L_a1b\ns_waitcnt lgkmcnt(0)\nL_a1b:")
    for jj in range(EA): ckv_ld(jj)
    a("s_cmp_eq_u32 s3, 0\ns_cbranch_scc1 L_a2")
    gettag()
    a("L_a2:\ns_barrier")
    for jj in range(EA, 8): ckv_ld(jj)
    if CLR == 1: pbclear()
    QE = o.get("qe")
    if QE:
        a(f"""
        s_lshl_b32 s12, s78, 5
        s_lshr_b32 s13, s3, 2
        s_lshl_b32 s13, s13, 4
        s_add_u32 s12, s12, s13
        s_lshl_b32 s13, s15, 1
        s_add_u32 s12, s12, s13
        s_lshl_b32 s12, s12, 8
        s_add_u32 s12, s12, {FK_OFF}
        v_and_b32 v{t0}, 1, v{vL}
        v_lshl_add_u32 v{vWo}, v{t0}, 8, s12
        v_bfe_u32 v{t0}, v{vL}, 1, 1
        v_lshl_add_u32 v{vWo}, v{t0}, 11, v{vWo}
        global_load_dwordx2 {vr(QP,2)}, v{vWo}, s[40:41] sc1
        """)
    if not o.get("nocb"): a("s_barrier")
    for jj in range(8, 16): ckv_ld(jj)
    if CLR == 2: pbclear()
    a(f"""
    v_lshl_add_u32 v{t0}, v{vN}, 10, s9
    v_lshlrev_b32 v{t1}, 1, v{vE}
    v_xor_b32 v{t1}, v{t1}, v{vG}             ; g ^ 2(i&7)
    """)
    for q in range(4):
        a(f"v_xor_b32 v{t2}, {4*q}, v{t1}\nv_lshl_add_u32 v{ba+q}, v{t2}, 4, v{t0}")
    a(f"""
    v_xor_b32 v{t0}, v{vN}, v{vG}
    v_lshlrev_b32 v{t1}, 8, v{vG}
    v_lshl_add_u32 v{vqr}, v{t0}, 4, v{t1}
    v_add_u32 v{vqr}, {QAS}, v{vqr}
    v_xor_b32 v{vqr+1}, 64, v{vqr}
    s_lshl_b32 s12, s78, 20
    s_lshl_b32 s13, s79, 11
    s_add_u32 s12, s12, s13
    s_lshl_b32 s13, s15, 7
    s_add_u32 s12, s12, s13
    s_lshr_b32 s13, s3, 2
    s_lshl_b32 s13, s13, 10
    s_add_u32 s12, s12, s13
    s_add_u32 s12, s12, {PB_OFF + 512}
    v_lshl_add_u32 v{vPBs}, v{vG}, 18, s12
    v_lshl_add_u32 v{vPBs}, v{vN}, 3, v{vPBs}
    v_add_u32 v{vPBs+1}, 0x10000, v{vPBs}
    v_add_u32 v{vPBs+2}, 0x20000, v{vPBs}
    v_add_u32 v{vPBs+3}, 0x30000, v{vPBs}
    v_lshlrev_b32 v{vPr}, 4, v{vL}
    v_add_u32 v{vPr}, {PL}, v{vPr}
    s_lshr_b32 s8, s3, 1
    s_lshl_b32 s8, s8, 10
    s_and_b32 s13, s3, 1
    s_lshl_b32 s13, s13, 3
    s_add_u32 s8, s8, s13
    v_add_u32 v{vPw}, s8, v{vPr}
    v_lshlrev_b32 v{vMr}, 5, v{vN}
    v_add_u32 v{vMr}, {MX}, v{vMr}
    s_lshl_b32 s8, s3, 2
    v_add_u32 v{vMw}, s8, v{vMr}
    s_lshl_b32 s10, s78, 15
    s_lshl_b32 s8, s79, 10
    s_add_u32 s10, s10, s8
    s_add_u32 s10, s10, {ML_OFF + 512}
    v_lshl_add_u32 v{vMLs}, v{vN}, 4, s10
    s_lshl_b32 s11, s78, 15
    s_lshl_b32 s12, s3, 12
    s_add_u32 s11, s11, s12
    s_lshl_b32 s12, s4, 16
    s_add_u32 s11, s11, s12
    s_add_u32 s11, s11, {QA_OFF + 512}
    v_lshl_add_u32 v{vq}, v{vL}, 4, s11
    v_lshrrev_b32 v{t0}, 5, v{vL}
    v_lshl_add_u32 v{vq}, v{t0}, 9, v{vq}
    s_lshl_b32 s8, s3, 1
    v_xor_b32 v{t0}, s8, v{vE}
    v_lshlrev_b32 v{t1}, 8, v{vL}
    v_lshl_add_u32 v{vqw}, v{t0}, 4, v{t1}
    v_add_u32 v{vqw}, {QAS}, v{vqw}
    v_xor_b32 v{vqw+1}, 16, v{vqw}
    s_cmp_eq_u32 s3, 3
    s_cselect_b32 s42, 0xffff, 0
    s_mov_b32 s43, 0
    """)
    qal = [f"global_load_dwordx4 {vr(QP+4*j,4)}, v{vq}, s[40:41] offset:{2048*j} sc1" for j in range(2)]
    if QE:
        a(f"""
        s_mov_b32 s13, 0
        s_waitcnt vmcnt({opt("qew", 4)})
        s_branch L_fkc
        L_fkp:
        global_load_dwordx2 {vr(QP,2)}, v{vWo}, s[40:41] sc1
        s_waitcnt vmcnt(0)
        L_fkc:
        s_add_u32 s13, s13, 1
        """)
        tagcheck(QP)
        spin_tail("L_fkp", "L_fko")
        if o.get("qeb"): a("s_barrier")
        for l in qal: a(l)
        a("s_waitcnt vmcnt(2) lgkmcnt(0)")
    else:
        a(f"""
        s_cmp_lg_u32 s3, 1
        s_cbranch_scc1 L_fko
        s_lshl_b32 s11, s78, 13
        s_add_u32 s11, s11, {FK_OFF}
        v_and_b32 v{t0}, 31, v{vL}
        v_lshl_add_u32 v{t3}, v{t0}, 8, s11
        """)
        flag_wait(t3, QP, "L_fk")
        a("s_waitcnt vmcnt(0) lgkmcnt(0)")
    stamp("ckvl", True)
    for t in range(16):
        a(f"ds_read_b128 {vr(CK+4*t,4)}, v{ba+(t&3)} offset:{256*(t>>2)}")
        if t == 11: a("s_waitcnt lgkmcnt(6)")
    a(f"""
    v_lshrrev_b32 v{t0}, 2, v{vL}             ; 4g+r
    v_and_b32 v{t1}, 7, v{t0}                 ; key&7
    v_lshlrev_b32 v{t0}, 10, v{t0}
    v_and_b32 v{t2}, 3, v{vL}
    v_lshl_add_u32 v{t0}, v{t2}, 3, v{t0}
    s_lshr_b32 s8, s3, 1
    s_lshl_b32 s8, s8, 8
    v_add_u32 v{t0}, s8, v{t0}
    s_and_b32 s8, s3, 1
    s_lshl_b32 s8, s8, 2
    v_xor_b32 v{t1}, s8, v{t1}
    """)
    for T in range(4):
        a(f"v_xor_b32 v{t2}, {T}, v{t1}\nv_lshl_add_u32 v{ba+T}, v{t2}, 5, v{t0}\nv_add_u32 v{ba+4+T}, 0x10000, v{ba+T}")
    a("s_barrier")
    stamp("ckv")
    if not QE:
        for l in qal: a(l)
    for T in range(4):
        a("s_waitcnt lgkmcnt(4)")
        for t in range(4):
            for aa in range(2):
                off = (32*t + 16*aa) * 1024
                a(f"ds_read_b64_tr_b16 {vr(CV+16*T+4*t+2*aa,2)}, v{ba+T+4*(off>>16)} offset:{off & 0xffff}")
    a("s_mov_b32 s13, 0\ns_branch L_qac\nL_qap:")
    masked(qal)
    a("L_qac:\ns_add_u32 s13, s13, 1")
    for j in range(2):
        a(f"s_waitcnt vmcnt({1-j})")
        a(f"ds_write_b128 v{vqw+j}, {vr(QP+4*j,4)}")
        sent_mask(j, QP+4*j, t2)
    or_masks(2)
    spin_tail("L_qap", "L_qao")
    stamp("qap")
    a("s_waitcnt lgkmcnt(0)\ns_barrier")
    def qread(t): a(f"ds_read_b128 {vr(QB+4*t,4)}, v{vqr+(t&1)} offset:{1024*t}")
    PRE = 12
    for t in range(PRE): qread(t)
    for t in range(16):
        issued = min(16, PRE + t)
        a(f"s_waitcnt lgkmcnt({issued - t - 1})")
        a(f"v_mfma_f32_16x16x32_bf16 {vr(DS,4)}, {vr(CK+4*t,4)}, {vr(QB+4*t,4)}, {'0' if t == 0 else vr(DS,4)}")
        if t + PRE < 16: qread(t + PRE)
    stamp("scm")
    a(f"""
    v_max3_f32 v{t0}, v{DS}, v{DS+1}, v{DS+2}
    v_max_f32 v{t0}, v{t0}, v{DS+3}
    """)
    xrow("v_max_f32", t0, t1)
    a(f"""
    s_mov_b64 exec, 0xffff
    ds_write_b32 v{vMw}, v{t0}
    s_mov_b64 exec, -1
    v_mov_b32 v{on4}, 0x3f803f80
    v_mov_b32 v{on4+1}, 0x3f803f80
    v_mov_b32 v{on4+2}, 0x3f803f80
    v_mov_b32 v{on4+3}, 0x3f803f80
    s_waitcnt lgkmcnt(0)
    s_barrier
    ds_read_b128 {vr(MXR,4)}, v{vMr}
    ds_read_b128 {vr(MXR+4,4)}, v{vMr} offset:16
    """)
    a(f"""
    s_waitcnt lgkmcnt(1)
    v_max3_f32 v{t0}, v{MXR}, v{MXR+1}, v{MXR+2}
    s_waitcnt lgkmcnt(0)
    v_max3_f32 v{t1}, v{MXR+3}, v{MXR+4}, v{MXR+5}
    v_max3_f32 v{t0}, v{t0}, v{MXR+6}, v{MXR+7}
    v_max_f32 v{t0}, v{t0}, v{t1}
    v_ceil_f32 v{ml}, v{t0}
    """)
    mst = f"s_mov_b64 exec, s[42:43]\nglobal_store_dwordx4 v{vMLs}, {vr(ml,4)}, s[40:41] sc1\ns_mov_b64 exec, -1"
    MP = opt("mp", 0)
    if MP == 0: a(mst)
    for r in range(4): a(f"v_sub_f32 v{DS+r}, v{DS+r}, v{ml}")
    for r in range(4): a(f"v_exp_f32 v{DS+r}, v{DS+r}")
    a(f"""
    v_cvt_pk_bf16_f32 v{DS}, v{DS}, v{DS+1}
    v_cvt_pk_bf16_f32 v{DS+1}, v{DS+2}, v{DS+3}
    ds_write_b64 v{vPw}, {vr(DS,2)}
    {mst if MP == 1 else ""}
    s_waitcnt lgkmcnt(0)
    s_barrier
    """)
    stamp("exp", True)
    for t in range(4): a(f"ds_read_b128 {vr(U+4*t,4)}, v{vPr} offset:{1024*t}")
    if MP == 2: a(mst)
    a("s_cmp_lg_u32 s3, 0\ns_cbranch_scc1 L_nol")
    for t in range(4):
        a(f"s_waitcnt lgkmcnt({3-t})")
        a(f"v_mfma_f32_16x16x32_bf16 {vr(DL,4)}, {vr(on4,4)}, {vr(U+4*t,4)}, {'0' if t == 0 else vr(DL,4)}")
    a("L_nol:")
    for t in range(4):
        a(f"s_waitcnt lgkmcnt({3-t})")
        for T in range(4):
            a(f"v_mfma_f32_16x16x32_bf16 {vr(DP+4*T,4)}, {vr(U+4*t,4)}, {vr(CV+16*T+4*t,4)}, {'0' if t == 0 else vr(DP+4*T,4)}")
        if t == 1:
            a(f"""
            s_cmp_lg_u32 s3, 0
            s_cbranch_scc1 L_nol2
            v_mov_b32 v{ml}, v{DL}
            s_mov_b64 exec, 0xffff
            global_store_dwordx4 v{vMLs}, {vr(ml,4)}, s[40:41] offset:256 sc1
            s_mov_b64 exec, -1
            L_nol2:
            """)
    OB = CK
    for r in range(4): a(f"v_cvt_pk_bf16_f32 v{OB+2*r}, v{DP+r}, v{DP+4+r}")
    for r in range(4):
        a(f"v_cvt_pk_bf16_f32 v{OB+2*r+1}, v{DP+8+r}, v{DP+12+r}")
        a(f"global_store_dwordx2 v{vPBs+r}, {vr(OB+2*r,2)}, s[40:41] sc1")
    stamp("pbst")
    gx = CV; gg = CV + 6; vg = CV + 12; RB = CV + 16; RS = CV + 32; RC = CV + 48
    a(f"""
    s_lshr_b32 s8, s3, 1
    s_cmp_lg_u32 s8, 1
    s_cbranch_scc1 L_fin
    s_cmp_ge_u32 s69, 40
    s_cbranch_scc1 L_fin
    v_mul_u32_u24 v{t1}, 20, v{vL}
    global_load_dwordx4 {vr(gx,4)}, v{t1}, s[16:17]
    global_load_dword v{gx+4}, v{t1}, s[16:17] offset:16
    global_load_dwordx4 {vr(gg,4)}, v{t1}, s[34:35]
    global_load_dword v{gg+4}, v{t1}, s[34:35] offset:16
    s_lshr_b32 s8, s69, 3
    s_lshl_b32 s8, s8, 1
    s_and_b32 s9, s3, 1
    s_add_u32 s8, s8, s9
    s_mul_i32 s15, s4, 10
    s_add_u32 s15, s15, s8
    v_lshrrev_b32 v{t2}, 1, v{vL}
    v_mul_u32_u24 v{t0}, {ROWB}, v{t2}
    v_and_b32 v{t1}, 1, v{vL}
    v_lshl_add_u32 v{t0}, v{t1}, 4, v{t0}
    s_lshl_b32 s9, s4, 9
    s_lshl_b32 s8, s8, 5
    s_add_u32 s9, s9, s8
    s_add_u32 s9, s9, {PC_OFF}
    v_add_u32 v{ba}, s9, v{t0}
    v_add_u32 v{ba+1}, {32*ROWB}, v{ba}
    v_add_u32 v{ba+2}, {64*ROWB}, v{ba}
    v_add_u32 v{ba+3}, {96*ROWB}, v{ba}
    v_add_u32 v{vPBs}, {PF_OFF-PC_OFF}, v{ba}
    v_add_u32 v{vPBs+1}, {PF_OFF-PC_OFF}, v{ba+1}
    s_lshl_b32 s9, s15, 4
    v_lshl_add_u32 v{ba+4}, v{t1}, 3, s9
    v_lshl_add_u32 v{ba+4}, v{vG}, 1, v{ba+4}
    v_lshlrev_b32 v{ba+5}, 8, v{vL}
    v_add_u32 v{ba+7}, {FK_OFF}, v{ba+5}
    v_add_u32 v{ba+5}, {FO_OFF}, v{ba+5}
    v_add_u32 v{ba+6}, 16384, v{ba+5}
    v_mov_b32 v{RB+4}, 0
    v_mov_b32 v{RB+5}, 0
    v_mov_b32 v{RB+6}, 0
    v_mov_b32 v{RB+7}, 0
    """)
    if opt("fop", 0) == 2: flag_wait(ba+7, RS, "L_f2")
    a(f"v_mov_b32 v{t3}, 0\ns_waitcnt vmcnt(0)")
    for i in range(5):
        a(f"""
        v_lshlrev_b32 v{t0}, 16, v{gx+i}
        v_lshlrev_b32 v{t1}, 16, v{gg+i}
        v_mul_f32 v{t0}, v{t0}, v{t1}
        v_and_b32 v{t1}, 0xffff0000, v{gx+i}
        v_and_b32 v{t2}, 0xffff0000, v{gg+i}
        v_mul_f32 v{t1}, v{t1}, v{t2}
        v_cvt_pk_bf16_f32 v{t0}, v{t0}, v{t1}
        v_lshlrev_b32 v{t1}, 16, v{t0}
        v_and_b32 v{t0}, 0xffff0000, v{t0}
        v_add_f32 v{t3}, v{t3}, v{t1}
        v_add_f32 v{t3}, v{t3}, v{t0}
        """)
    allred("v_add_f32", t3, t3, t0)
    rbf(t3, t3)
    a(f"""
    v_mul_f32 v{t3}, {NLOG2E}, v{t3}
    v_exp_f32 v{t3}, v{t3}
    v_add_f32 v{t3}, 1.0, v{t3}
    v_rcp_f32 v{t3}, v{t3}
    """)
    rbf(vg, t3)
    a(f"v_sub_f32 v{vg+1}, 1.0, v{vg}")
    rbf(vg+1, vg+1)
    a(f"""
    s_mov_b32 s13, 0
    s_mov_b64 {MK[0]}, -1
    s_mov_b64 {MK[1]}, -1
    L_frp:
    """)
    masked([f"global_load_dwordx2 {vr(RS,2)}, v{ba+5}, s[40:41] sc1", f"global_load_dwordx2 {vr(RS+2,2)}, v{ba+6}, s[40:41] sc1"])
    a(f"""
    s_add_u32 s13, s13, 1
    s_waitcnt vmcnt(0)
    v_cmp_ne_u64 {MK[0]}, {TAG}, {vr(RS,2)}
    v_cmp_ne_u64 {MK[1]}, {TAG}, {vr(RS+2,2)}
    """)
    or_masks(2)
    spin_tail("L_frp", "L_fro")
    stamp("fo")
    pcl = [f"global_load_dwordx4 {vr(RB+4*j,4)}, v{vPBs+j}, s[40:41] sc1" for j in range(2)] + [f"global_load_dwordx4 {vr(RC+4*j,4)}, v{ba+j}, s[40:41] sc1" for j in range(4)]
    regs = [RB, RB+4, RC, RC+4, RC+8, RC+12]
    a(pcl[0])
    a(f"s_mov_b32 exec_hi, 0xfff\n{pcl[1]}\ns_mov_b32 exec_hi, -1")
    for l in pcl[2:]: a(l)
    a("s_mov_b32 s13, 0\ns_branch L_pcc\nL_pcp:")
    if opt("psl", 0): a(f"s_sleep {opt('psl', 0)}")
    masked(pcl)
    a("L_pcc:\ns_add_u32 s13, s13, 1")
    for j in range(6):
        a(f"s_waitcnt vmcnt({5-j})")
        sent_mask(j, regs[j], t2)
        if j == 1:
            for r in range(4): a(f"v_add_f32 v{RB+8+r}, v{RB+r}, v{RB+4+r}")
            for r in range(4): a(f"v_mul_f32 v{RB+8+r}, v{vg+1}, v{RB+8+r}")
    or_masks(6)
    spin_tail("L_pcp", "L_pco")
    stamp("pc")
    RB = RB + 8
    R = RC
    for r in range(0, 4, 2): a(f"v_pk_add_f32 {vr(R+r,2)}, {vr(R+r,2)}, {vr(R+4+r,2)}\nv_pk_add_f32 {vr(R+8+r,2)}, {vr(R+8+r,2)}, {vr(R+12+r,2)}")
    for r in range(0, 4, 2): a(f"v_pk_add_f32 {vr(R+r,2)}, {vr(R+r,2)}, {vr(R+8+r,2)}")
    for r in range(4): a(f"v_fmac_f32 v{RB+r}, v{vg}, v{RC+r}")
    R = RB
    a(f"""
    v_permlane32_swap_b32 v{R}, v{R+2}
    v_permlane32_swap_b32 v{R+1}, v{R+3}
    v_add_f32 v{R}, v{R}, v{R+2}
    v_add_f32 v{R+1}, v{R+1}, v{R+3}
    v_permlane16_swap_b32 v{R}, v{R+1}
    v_add_f32 v{R}, v{R}, v{R+1}
    v_add_f32_dpp v{R}, v{R}, v{R} row_ror:8 {DPPM}
    v_add_f32_dpp v{R}, v{R}, v{R} row_ror:4 {DPPM}
    v_add_f32_dpp v{R}, v{R}, v{R} row_ror:2 {DPPM}
    v_cvt_pk_bf16_f32 v{R}, v{R}, v{R}
    """)
    setexec(0x0003000300030003)
    a(f"global_store_short v{ba+4}, v{R}, s[36:37]{' sc1' if o.get('osc') else ''}")
    a(f"""
    s_cmp_lg_u32 s15, 0
    s_cbranch_scc1 L_noep
    s_mov_b64 exec, 1
    v_mov_b32 v{t0}, {EP_OFF}
    global_store_dwordx2 v{t0}, {vr(pub+2,2)}, s[40:41]{' sc1' if o.get('osc') else ''}
    L_noep:
    """)
    setexec(-1)
    stamp("out")
    a("L_fin:")
    if probe:
        prole, _, amp = probe; idx = 1
        a(f"""
        s_waitcnt lgkmcnt(0)
        s_cmp_eq_u32 s{80+2*idx}, 0
        s_cbranch_scc1 L_end
        s_sub_u32 s8, s{80+2*idx}, s80
        s_mul_i32 s8, s8, {amp}
        s_min_u32 s8, s8, {opt("fix", 100000)}
        L_probe:
        s_sleep 2
        s_memrealtime s[10:11]
        s_waitcnt lgkmcnt(0)
        s_sub_u32 s10, s10, s80
        s_cmp_lt_u32 s10, s8
        s_cbranch_scc1 L_probe
        """)
    if DEV:
        a(f"""
        s_waitcnt vmcnt(0)
        s_memrealtime s[100:101]
        s_waitcnt lgkmcnt(0)
        s_lshl_b32 s7, s2, 3
        s_add_u32 s7, s7, s3
        s_mul_i32 s7, s7, {NST*4}
        s_add_u32 s7, s7, {STAMP_OFF}
        s_mov_b64 exec, 1
        v_mov_b32 v3, s7
        """)
        for i in range(NST):
            a(f"v_mov_b32 v4, s{80+2*i}\nglobal_store_dword v3, v4, s[40:41] offset:{4*i}")
    a("L_end:\ns_endpgm")
    a(".fill 3600, 4, 0xbf800000")
    lines = hazard.fix(a.lines)
    nv = max(po_v, V.n, BIGEND, k_v)
    if DEV:
        for r_ in want: lines.insert(0, f"; STAMPS {r_} start " + " ".join(want[r_] + ["-"] * (NST - 2 - len(want[r_]))) + " end")
    return single("\n".join(lines) + "\n", 256, 512, 152064, vgpr=256, sgpr=102, accum=256), nv

if __name__ == "__main__":
    out = sys.argv[1]
    DEV = "dev" in sys.argv[2:]
    txt, nv = build(DEV, {k: True for k in sys.argv[2:]})
    open(out, "w").write(txt)
    print("vgprs", nv)
```

```python
import sys, math, struct
from genlib import *
import hazard

def f2u(x): return struct.unpack("<I", struct.pack("<f", x))[0]

QP_OFF, HP_OFF, FK_OFF, EP_OFF, FO_OFF, ML_OFF, PC_OFF, PF_OFF, QA_OFF, PB_OFF = 0x0, 0x40000, 0x60000, 0x64000, 0x68000, 0x70000, 0x80000, 0x100000, 0x180000, 0x200000
ROWB = 4096
SPIN = 200000
DPPM = "row_mask:0xf bank_mask:0xf"
NLOG2E = hex(f2u(-math.log2(math.e)))

def build(DEV=False, opts=None):
    o = dict(opts or {})
    def opt(name, dflt):
        for k in o:
            if k.startswith(name + "="): return int(k.split("=")[1])
        return dflt
    a = Asm()
    def nt(k): return " nt" if (o.get("nt") or o.get("nt_" + k)) else ""
    NST = 11
    probe = None
    for k in o:
        if k.startswith("probe"):
            _, role, idx, amp = k.split("_"); probe = (role, idx, int(amp))
    role = ["O"]
    want = {"O": "p1 wo go pb cp pc".split(), "K": "p1 wuk qp qa hp pf".split(), "A": "p1 ckv qap scm exp pbst fo pc out".split()}
    for k in o:
        for r_ in want:
            if k.startswith("s" + r_ + "="): want[r_] = k.split("=")[1].split(",")
    if probe: want = {"O": [], "K": [], "A": []}; want[probe[0]] = [probe[1]]
    def stamp(nm, wait=False):
        if not (DEV or probe): return
        if nm == "start": a("s_memrealtime s[80:81]"); return
        w = want[role[0]]
        if nm in w:
            i = w.index(nm) + 1
            a(f"s_memrealtime s[{80+2*i}:{81+2*i}]")
            if wait: a("s_waitcnt lgkmcnt(0)")
    class VA:
        def __init__(s, start): s.n = start
        def __call__(s, k=1, al=1):
            s.n = (s.n + al - 1) // al * al
            r = s.n; s.n += k
            assert s.n <= 254
            return r
    def vr(b, k): return f"v[{b}:{b+k-1}]"
    def srd(dst, src, size):
        a(f"s_mov_b32 s{dst}, s{src}\ns_mov_b32 s{dst+1}, s{src+1}\ns_mov_b32 s{dst+2}, {size}\ns_mov_b32 s{dst+3}, 0x20000")
    def setexec(mask):
        if mask == -1: a("s_mov_b64 exec, -1")
        elif mask < (1 << 31): a(f"s_mov_b64 exec, {hex(mask)}")
        else: a(f"s_mov_b32 exec_lo, {hex(mask & 0xffffffff)}\ns_mov_b32 exec_hi, {hex(mask >> 32)}")
    def spin_tail(Lp, Lo):
        a(f"s_cmp_gt_u32 s13, {SPIN}\ns_cbranch_scc1 {Lo}\ns_cbranch_vccnz {Lp}\n{Lo}:")
    def xrow(op, x, t):
        a(f"""
        v_mov_b32 v{t}, v{x}
        v_permlane16_swap_b32 v{x}, v{t}
        {op} v{x}, v{x}, v{t}
        v_mov_b32 v{t}, v{x}
        v_permlane32_swap_b32 v{x}, v{t}
        {op} v{x}, v{x}, v{t}
        """)
    def allred(op, dst, src, t):
        a(f"{op}_dpp v{dst}, v{src}, v{src} row_ror:1 {DPPM}")
        for d in (2, 4, 8): a(f"{op}_dpp v{dst}, v{dst}, v{dst} row_ror:{d} {DPPM}")
        xrow(op, dst, t)
    def red32(op, dst, src, t):
        a(f"{op}_dpp v{dst}, v{src}, v{src} quad_perm:[1,0,3,2] {DPPM}")
        a(f"{op}_dpp v{dst}, v{dst}, v{dst} quad_perm:[2,3,0,1] {DPPM}")
        a(f"{op}_dpp v{dst}, v{dst}, v{dst} row_ror:8 {DPPM}")
        xrow(op, dst, t)
    def rbf(dst, src):
        a(f"v_cvt_pk_bf16_f32 v{dst}, v{src}, v{src}\nv_and_b32 v{dst}, 0xffff0000, v{dst}")
    TAG = "s[70:71]"
    MK = ["s[72:73]", "s[74:75]", "s[76:77]", "s[66:67]", "s[64:65]", "s[62:63]"]
    def tagcheck(p): a(f"v_cmp_ne_u64 vcc, {TAG}, {vr(p,2)}")
    def sent_mask(k, R, t):
        a(f"v_max3_u32 v{t}, v{R}, v{R+1}, v{R+2}\nv_max_u32 v{t}, v{t}, v{R+3}\nv_cmp_eq_u32 {MK[k]}, -1, v{t}")
    def or_masks(n):
        a("s_nop 0")
        a(f"s_or_b64 vcc, {MK[0]}, {MK[1]}")
        for k in range(2, n): a(f"s_or_b64 vcc, vcc, {MK[k]}")
    def masked(loads):
        for k, l in enumerate(loads): a(f"s_mov_b64 exec, {MK[k]}\n{l}")
        a("s_mov_b64 exec, -1")
    def swz1280(dst, n, wsel):
        for j in range(n):
            a(f"""
            v_add_u32 v{t0}, {64*j}, v{vL}
            v_mul_u32_u24 v{t1}, 820, v{t0}
            v_lshrrev_b32 v{t1}, 16, v{t1}
            v_lshl_add_u32 v{t1}, v{t1}, 1, {wsel}
            v_xor_b32 v{t0}, v{t0}, v{t1}
            v_lshlrev_b32 v{dst+j}, 4, v{t0}
            """)
    def tr1280(dst, base):
        a(f"""
        v_lshrrev_b32 v{t1}, 2, v{vL}
        v_and_b32 v{t3}, 7, v{t1}
        v_and_b32 v{t2}, 3, v{vL}
        v_mul_u32_u24 v{t1}, 1280, v{t1}
        v_lshl_add_u32 v{t1}, v{t2}, 3, v{t1}
        v_add_u32 v{t1}, {base}, v{t1}
        s_mul_i32 s13, s3, 5
        """)
        for T in range(5):
            a(f"v_xor_b32 v{dst+T}, s13, v{t3}\nv_lshl_add_u32 v{dst+T}, v{dst+T}, 5, v{t1}\ns_add_u32 s13, s13, 1")
    def flag_store(sreg):
        a(f"""
        v_lshl_add_u32 v{t0}, v{vL}, 3, {sreg}
        s_mov_b64 exec, 0xffff
        global_store_dwordx2 v{t0}, {vr(pub+2,2)}, s[40:41] sc1
        s_mov_b64 exec, -1
        """)
    def flag_wait(va, R, lab, first=True):
        if first: a(f"s_mov_b32 s13, 0\ns_mov_b64 vcc, -1")
        else: a(f"s_mov_b32 s13, 0\ns_branch {lab}c")
        a(f"""
        {lab}p:
        s_mov_b64 exec, vcc
        global_load_dwordx2 {vr(R,2)}, v{va}, s[40:41] sc1
        s_mov_b64 exec, -1
        {lab}c:
        s_add_u32 s13, s13, 1
        s_waitcnt vmcnt(0)
        """)
        tagcheck(R)
        spin_tail(lab + "p", lab + "o")
    def rowmasks():
        a("s_mov_b32 s26, 0xffff0000\ns_mov_b32 s27, 0xffff0000\ns_mov_b32 s28, 0\ns_mov_b32 s29, -1")
    def rowstore(R, va):
        a(f"""
        v_cndmask_b32 v{R}, v{R}, v{R+4}, s[26:27]
        v_cndmask_b32 v{R+8}, v{R+8}, v{R+12}, s[26:27]
        v_cndmask_b32 v{R}, v{R}, v{R+8}, s[28:29]
        global_store_dword v{va}, v{R}, s[40:41] sc1
        s_mov_b32 exec_hi, 0
        global_store_dword v{va}, v{R+16}, s[40:41] offset:256 sc1
        s_mov_b32 exec_hi, -1
        """)
    def rowclear(sidx, off):
        a(f"""
        s_mul_i32 s8, {sidx}, {ROWB}
        s_add_u32 s8, s8, {off}
        v_lshl_add_u32 v{t0}, v{vL}, 4, s8
        s_mov_b32 exec_lo, 0xffffff
        s_mov_b32 exec_hi, 0xffffff
        global_store_dwordx4 v{t0}, {vr(Dq,4)}, s[40:41] sc1
        global_store_dwordx4 v{t0}, {vr(Dq,4)}, s[40:41] offset:1024 sc1
        global_store_dwordx4 v{t0}, {vr(Dq,4)}, s[40:41] offset:2048 sc1
        global_store_dwordx4 v{t0}, {vr(Dq,4)}, s[40:41] offset:3072 sc1
        s_mov_b64 exec, -1
        """)

    vL, vS, vE, vN, vG = 0, 1, 2, 3, 4
    t0, t1, t2, t3 = 6, 7, 8, 9
    pub = 10; msk = 14; Dq = 18; vWo = 5
    BIG = 22
    Y = BIG; WQ = BIG + 80; xd = BIG + 160; selE = BIG + 170; selO = BIG + 174
    BIGEND = BIG + 178
    if DEV or probe:
        for i in range(1, NST): a(f"s_mov_b32 s{80+2*i}, 0")
    stamp("start")
    a(f"""
    s_cmp_ge_u32 s2, 256
    s_cbranch_scc1 L_end
    s_load_dwordx16 s[16:31], s[0:1], 0
    s_load_dwordx2 s[40:41], s[0:1], 96
    s_load_dwordx8 s[32:39], s[0:1], 64
    v_lshrrev_b32 v1, 6, v0
    v_and_b32 v0, 63, v0
    v_readfirstlane_b32 s3, v1
    """)
    if not o.get("nocpf"):
        a(f"""
        s_cmp_lg_u32 s3, 3
        s_cbranch_scc1 L_nocpf
        s_cmp_ge_u32 s2, {opt("cpfn", 128)}
        s_cbranch_scc1 L_nocpf
        s_getpc_b64 s[42:43]
        v_lshlrev_b32 v{t0}, 6, v0
        v_add_u32 v{t1}, 8192, v{t0}
        global_load_dword v254, v{t0}, s[42:43]
        global_load_dword v255, v{t1}, s[42:43] offset:-4096
        global_load_dword v254, v{t1}, s[42:43]
        v_add_u32 v{t1}, 4096, v{t1}
        s_mov_b32 exec_hi, 0
        global_load_dword v255, v{t1}, s[42:43]
        s_mov_b32 exec_hi, -1
        L_nocpf:
        """)
    a(f"""
    s_and_b32 s4, s2, 7
    s_lshr_b32 s5, s2, 3
    v_and_b32 v3, 15, v0
    v_lshrrev_b32 v4, 4, v0
    v_lshrrev_b32 v1, 3, v0
    v_and_b32 v2, 7, v0
    v_mul_u32_u24 v{t0}, 40, v{vG}
    s_mul_i32 s8, s4, 160
    v_add_u32 v{t0}, s8, v{t0}
    v_mul_u32_u24 v{vWo}, {20*8192}, v{vG}
    v_lshl_add_u32 v{vWo}, v{vN}, 4, v{vWo}
    s_mul_i32 s8, s4, {80*8192}
    s_mov_b32 s9, s5                  ; q head
    s_lshl_b32 s10, s9, 8
    s_add_u32 s8, s8, s10
    s_mov_b32 s46, {SZ['wq']}
    s_mov_b32 s47, 0x20000
    s_lshr_b32 s68, s2, 6             ; 0,1: O  2: K  3: A
    s_cmp_eq_u32 s68, 2
    s_cselect_b32 s14, 2, 1
    s_cmp_ge_u32 s3, s14
    s_waitcnt lgkmcnt(0)
    s_load_dwordx2 {TAG}, s[40:41], {EP_OFF}
    s_cbranch_scc1 L_noP1a
    s_mov_b32 s44, s20
    s_mov_b32 s45, s21
    global_load_dwordx4 {vr(xd,4)}, v{t0}, s[16:17]
    global_load_dwordx4 {vr(xd+4,4)}, v{t0}, s[16:17] offset:16
    global_load_dwordx2 {vr(xd+8,2)}, v{t0}, s[16:17] offset:32
    s_cmp_lg_u32 s3, 0
    s_cbranch_scc1 L_nowq
    """)
    for u in range(20):
        a(f"buffer_load_dwordx4 {vr(WQ+4*u,4)}, v{vWo}, s[44:47], s8 offen{nt('wq')}\ns_add_u32 s8, s8, 8192")
    a(f"""
    L_nowq:
    {"s_waitcnt vmcnt(%d)" % opt("b1w", 0) if opt("b1w", 0) else ""}
    s_barrier
    L_noP1a:
    v_and_b32 v{t0}, 1, v{vL}
    v_lshlrev_b32 v{t0}, 4, v{t0}
    v_mov_b32 v{t1}, 0xffff
    v_lshlrev_b32 v{t0}, v{t0}, v{t1}
    v_lshrrev_b32 v{t1}, 1, v{vE}
    s_and_b32 s7, s5, 3               ; O: sub
    s_bfe_u32 s6, s5, 0x20002
    s_lshl_b32 s6, s6, 3
    s_add_u32 s6, s6, s4              ; O: h
    s_and_b32 s15, s3, 3              ; cw
    s_and_b32 s78, s5, 1
    s_bfe_u32 s79, s5, 0x20001
    s_lshl_b32 s79, s79, 3
    s_add_u32 s79, s79, s4            ; K: h  A: chunk
    s_and_b32 s69, s2, 63
    """)
    for r in range(4):
        a(f"v_cmp_eq_u32 vcc, {r}, v{t1}\nv_cndmask_b32 v{msk+r}, 0, v{t0}, vcc")
    def gettag():
        a(f"s_waitcnt lgkmcnt(0)\ns_add_u32 s70, s70, 1\ns_add_u32 s71, s71, 0x9e3779b9\nv_mov_b32 v{pub+2}, s70\nv_mov_b32 v{pub+3}, s71")
    def gemv20(waits, vaddr, off):
        for u in range(20):
            if waits is not None: a(f"s_waitcnt vmcnt({19-u+waits})")
            a(f"v_mfma_f32_16x16x32_bf16 {vr(Dq,4)}, {vr(Y+4*u,4)}, {vr(WQ+4*u,4)}, {'0' if u == 0 else vr(Dq,4)}")
        a(f"""
        v_cvt_pk_bf16_f32 v{pub}, v{Dq}, v{Dq+1}
        v_cvt_pk_bf16_f32 v{pub+1}, v{Dq+2}, v{Dq+3}
        s_mov_b32 exec_hi, 0
        global_store_dwordx4 v{vaddr}, {vr(pub,4)}, s[40:41] offset:{off} sc1
        s_mov_b32 exec_hi, -1
        """)
    a(f"""
    s_cmp_ge_u32 s3, s14
    s_cbranch_scc1 L_noP1b
    v_mov_b32 v{t2}, 0x0c0c0c0c
    s_mov_b32 s12, 0x01000100
    s_mov_b32 s13, 0x03020302
    """)
    for r in range(4):
        a(f"v_bfi_b32 v{selE+r}, v{msk+r}, s12, v{t2}\nv_bfi_b32 v{selO+r}, v{msk+r}, s13, v{t2}")
    a(f"""
    s_lshl_b32 s12, s9, 3
    s_add_u32 s12, s12, s4
    s_lshl_b32 s12, s12, 10
    v_lshl_add_u32 v{t3}, v{vL}, 4, s12
    s_cmp_eq_u32 s3, 0
    s_cbranch_scc1 L_xw
    s_waitcnt vmcnt(0)
    L_xw:
    s_waitcnt vmcnt(20)
    """)
    def perm(u):
        for r in range(4):
            a(f"v_perm_b32 v{Y+4*u+r}, v{xd+u//2}, v{xd+u//2}, v{(selO if u & 1 else selE)+r}")
    if o.get("ilv"):
        LA = opt("la", 6)
        for u in range(LA): perm(u)
        for u in range(20):
            a(f"s_waitcnt vmcnt({19-u})")
            a(f"v_mfma_f32_16x16x32_bf16 {vr(Dq,4)}, {vr(Y+4*u,4)}, {vr(WQ+4*u,4)}, {'0' if u == 0 else vr(Dq,4)}")
            if u + LA < 20: perm(u + LA)
            if u + LA == 20: gettag()
        a(f"""
        s_cmp_lg_u32 s3, 0
        s_cbranch_scc1 L_noP1b
        v_cvt_pk_bf16_f32 v{pub}, v{Dq}, v{Dq+1}
        v_cvt_pk_bf16_f32 v{pub+1}, v{Dq+2}, v{Dq+3}
        s_mov_b32 exec_hi, 0
        global_store_dwordx4 v{t3}, {vr(pub,4)}, s[40:41] offset:{QP_OFF+512} sc1
        s_mov_b32 exec_hi, -1
        """)
    else:
        for u in range(20): perm(u)
        gettag()
        a("s_cmp_lg_u32 s3, 0\ns_cbranch_scc1 L_noP1b")
        gemv20(0, t3, QP_OFF + 512)
    if DEV: a("s_memrealtime s[82:83]")
    a(f"""
    L_noP1b:
    {"s_nop 7" if o.get("ilv") else ""}
    v_mov_b32 v{Dq}, -1
    v_mov_b32 v{Dq+1}, -1
    v_mov_b32 v{Dq+2}, -1
    v_mov_b32 v{Dq+3}, -1
    s_cmp_eq_u32 s68, 3
    s_cbranch_scc1 L_roleA
    s_cmp_match_placeholder
    """.replace("s_cmp_match_placeholder", "s_cmp_lt_u32 s68, 2\ns_cbranch_scc1 L_roleO"))
    role[0] = "K"
    WK = BIG; QPR = BIG + 64; qf = BIG + 80; D2 = BIG + 96; acc = BIG + 112; yI = BIG + 116; qp = BIG + 118
    V = VA(BIGEND)
    ba = V(5); vQs = V(2); vH = V(); vPF = V(); HR = V(4, 2); HP = V(8, 2); hs = V(4, 2)
    A2 = WQ; FO = WQ + 20
    QL, WKL = 0, 1024
    a(f"""
    s_lshl_b32 s8, s79, 11
    s_lshl_b32 s13, s78, 10
    s_add_u32 s12, s8, s13
    s_add_u32 s12, s12, {QA_OFF + 512}
    s_cmp_ge_u32 s3, 4
    s_cbranch_scc1 L_kK
    s_cmp_lt_u32 s3, 2
    s_cbranch_scc1 L_kH1
    s_cmp_lg_u32 s3, 3
    s_cbranch_scc1 L_kH0
    v_and_b32 v{t1}, 31, v{vL}
    v_lshl_add_u32 v{t1}, v{t1}, 4, s12
    v_lshrrev_b32 v{t2}, 5, v{vL}
    v_lshl_add_u32 v{t1}, v{t2}, 16, v{t1}
    """)
    for j in range(4): a(f"global_store_dwordx4 v{t1}, {vr(Dq,4)}, s[40:41] sc1\nv_add_u32 v{t1}, 0x20000, v{t1}")
    rowclear("s69", PF_OFF)
    a("L_kH0:\ns_barrier")
    gettag()
    a(f"""
    s_cmp_lg_u32 s3, 3
    s_cbranch_scc1 L_kH1
    s_lshl_b32 s8, s69, 8
    s_add_u32 s8, s8, {FK_OFF}
    s_waitcnt vmcnt(0)
    """)
    flag_store("s8")
    a(f"""
    L_kH1:
    s_barrier
    s_branch L_kJ
    L_kK:
    """)
    srd(48, 22, SZ['wuk'])
    a(f"""
    v_xor_b32 v{t0}, v{vN}, v{vG}
    v_lshlrev_b32 v{t1}, 15, v{vG}
    v_lshl_add_u32 v{ba}, v{t0}, 4, v{t1}
    v_xor_b32 v{ba+1}, 64, v{ba}
    v_xor_b32 v{ba+2}, 128, v{ba}
    v_xor_b32 v{ba+3}, 192, v{ba}
    s_lshl_b32 s10, s78, 21
    s_lshl_b32 s11, s15, 19
    s_add_u32 s10, s10, s11
    s_lshl_b32 s11, s79, 8
    s_add_u32 s10, s10, s11
    s_lshl_b32 s11, s15, 14
    s_add_u32 s11, s11, {WKL}
    s_barrier
    """)
    EK = opt("ek", 8)
    def wuk_ld(j):
        step = 16*8192 if (j & 3) != 3 else (1 - 48) * 8192
        a(f"s_mov_b32 m0, s11\ns_add_u32 s11, s11, 1024\nbuffer_load_dwordx4 v{ba+(j&3)}, s[48:51], s10 offen{nt('wuk')} lds\ns_add_u32 s10, s10, {hex(step & 0xffffffff)}")
    for j in range(EK): wuk_ld(j)
    gettag()
    a(f"""
    s_lshl_b32 s13, s15, 7
    s_add_u32 s8, s12, s13
    v_lshl_add_u32 v{vQs}, v{vN}, 3, s8
    v_lshl_add_u32 v{vQs}, v{vG}, 16, v{vQs}
    v_add_u32 v{vQs+1}, 0x40000, v{vQs}
    v_and_b32 v{acc}, 1, v{vG}
    v_cmp_eq_u32 vcc, 1, v{acc}
    v_cndmask_b32 v{yI}, v{msk}, v{msk+2}, vcc
    v_cndmask_b32 v{yI+1}, v{msk+1}, v{msk+3}, vcc
    v_and_b32 v{yI}, 0x3f803f80, v{yI}
    v_and_b32 v{yI+1}, 0x3f803f80, v{yI+1}
    s_lshl_b32 s8, s15, 8
    v_lshl_add_u32 v{acc+1}, v{vN}, 4, s8
    v_lshl_add_u32 v{acc+1}, v{vG}, 3, v{acc+1}
    v_lshl_add_u32 v{acc+2}, v{vG}, 4, s8
    s_lshl_b32 s8, s15, 14
    s_add_u32 s8, s8, {WKL}
    v_xor_b32 v{t0}, v{vN}, v{vG}
    v_lshl_add_u32 v{t1}, v{vN}, 8, s8
    v_lshl_add_u32 v{t0}, v{t0}, 4, v{t1}
    v_xor_b32 v{t1}, 64, v{t0}
    v_xor_b32 v{t2}, 128, v{t0}
    v_xor_b32 v{t3}, 192, v{t0}
    s_lshl_b32 s8, s79, 13
    s_add_u32 s8, s8, {QP_OFF + 4096 + 512}
    v_lshl_add_u32 v{acc}, v{vL}, 4, s8
    v_lshrrev_b32 v{acc+3}, 5, v{vL}
    v_lshl_add_u32 v{acc}, v{acc+3}, 9, v{acc}
    s_mov_b32 s13, 0
    s_barrier
    """)
    for j in range(EK, 16): wuk_ld(j)
    qpl = [f"global_load_dwordx4 {vr(QPR+4*j,4)}, v{acc}, s[40:41] offset:{2048*j-4096} sc1" for j in range(4)]
    QAT = opt("qat", 3)
    for tau in range(4):
        if tau == QAT:
            for l in qpl: a(l)
        a(f"s_waitcnt vmcnt({12-4*tau+(4 if tau >= QAT else 0)}) lgkmcnt(8)")
        for ks in range(4): a(f"ds_read_b128 {vr(WK+16*tau+4*ks,4)}, v{[t0,t1,t2,t3][ks]} offset:{4096*tau}")
    if QAT == 4:
        for l in qpl: a(l)
    stamp("wuk")
    a("s_branch L_qpc\nL_qpp:")
    masked(qpl)
    a("L_qpc:\ns_add_u32 s13, s13, 1\ns_waitcnt vmcnt(0)")
    for j in range(4):
        a(f"v_mfma_f32_16x16x16_bf16 {vr(Dq,4)}, {vr(yI,2)}, {vr(QPR+4*j,2)}, {'0' if j == 0 else vr(Dq,4)}")
        a(f"v_cmp_ne_u64 {MK[j]}, {TAG}, {vr(QPR+4*j+2,2)}")
    or_masks(4)
    spin_tail("L_qpp", "L_qpo")
    stamp("qp")
    a(f"""
    v_cvt_pk_bf16_f32 v{Dq}, v{Dq}, v{Dq+1}
    v_cvt_pk_bf16_f32 v{Dq+1}, v{Dq+2}, v{Dq+3}
    s_mov_b32 exec_hi, 0
    ds_write_b64 v{acc+1}, {vr(Dq,2)}
    s_mov_b32 exec_hi, -1
    s_mov_b32 s13, {hex(f2u(128**-0.5 * math.log2(math.e)))}
    s_waitcnt lgkmcnt(0)
    """)
    for ks in range(4): a(f"ds_read_b128 {vr(qf+4*ks,4)}, v{acc+2} offset:{64*ks}")
    for ks in range(4):
        a(f"s_waitcnt lgkmcnt({3-ks})")
        for tau in range(4):
            a(f"v_mfma_f32_16x16x32_bf16 {vr(D2+4*tau,4)}, {vr(qf+4*ks,4)}, {vr(WK+16*tau+4*ks,4)}, {'0' if ks == 0 else vr(D2+4*tau,4)}")
    for tau in range(4): a(f"v_mul_f32 v{D2+4*tau}, s13, v{D2+4*tau}")
    a(f"""
    v_cvt_pk_bf16_f32 v{qp}, v{D2}, v{D2+4}
    v_cvt_pk_bf16_f32 v{qp+1}, v{D2+8}, v{D2+12}
    global_store_dwordx2 v{vQs}, {vr(qp,2)}, s[40:41] sc1
    global_store_dwordx2 v{vQs+1}, {vr(qp,2)}, s[40:41] sc1
    """)
    stamp("qa")
    if o.get("qack"): a("s_waitcnt vmcnt(0)")
    a("L_kJ:")
    srd(60, 30, SZ['w1']); srd(52, 32, SZ['w2'])
    a(f"s_and_b32 s13, s3, 1\ns_lshl_b32 s13, s13, 3")
    swz1280(ba, 5, "s13")
    a(f"""
    s_mul_i32 s42, s69, {32*1280}
    s_mul_i32 s43, s3, 5120
    s_add_u32 s42, s42, s43
    s_add_u32 s43, s43, {WKL}
    v_mul_u32_u24 v{vWo}, {20*3456}, v{vG}
    v_lshl_add_u32 v{vWo}, v{vN}, 4, v{vWo}
    s_and_b32 s9, s5, 7
    s_lshl_b32 s9, s9, 1
    s_add_u32 s9, s9, s3
    s_mul_i32 s14, s4, {80*3456}
    s_lshl_b32 s8, s9, 8
    s_add_u32 s14, s14, s8
    s_lshl_b32 s9, s9, 3
    s_add_u32 s9, s9, s4
    s_lshl_b32 s9, s9, 10
    s_add_u32 s9, s9, {HP_OFF + 512}
    v_lshl_add_u32 v{vH}, v{vL}, 4, s9
    s_barrier
    s_cmp_ge_u32 s69, 56
    s_cbranch_scc1 L_fin
    s_cmp_ge_u32 s3, 2
    s_cbranch_scc1 L_now1
    """)
    for u in range(20):
        a(f"buffer_load_dwordx4 {vr(WQ+4*u,4)}, v{vWo}, s[60:63], s14 offen{nt('w1')}\ns_add_u32 s14, s14, 3456")
    a("L_now1:\ns_barrier\ns_cmp_ge_u32 s3, 2\ns_cbranch_scc1 L_now1b\ns_setprio 3")
    gemv20(0, vH, 0)
    stamp("hp")
    a("s_setprio 0\ns_branch L_w2d\nL_now1b:\ns_mov_b32 s8, s3\nL_w2l:")
    for j in range(5):
        a(f"s_mov_b32 m0, s43\ns_add_u32 s43, s43, 1024\nbuffer_load_dwordx4 v{ba+j}, s[52:55], s42 offen{nt('w2')} lds")
    a(f"""
    s_cmp_ge_u32 s8, 4
    s_cbranch_scc1 L_w2d
    s_mov_b32 s8, 4
    s_sub_u32 s42, s42, 10240
    s_sub_u32 s43, s43, 15360
    s_branch L_w2l
    L_w2d:
    """)
    tr1280(ba, WKL)
    rowmasks()
    a(f"""
    s_lshr_b32 s8, s69, 2
    s_lshl_b32 s8, s8, 13
    s_and_b32 s9, s69, 3
    s_lshl_b32 s9, s9, 6
    s_add_u32 s8, s8, s9
    s_add_u32 s8, s8, {HP_OFF + 512}
    v_lshl_add_u32 v{vH}, v{vE}, 10, s8
    v_and_b32 v{t1}, 1, v{vG}
    v_lshl_add_u32 v{vH}, v{t1}, 8, v{vH}
    v_lshrrev_b32 v{t1}, 1, v{vG}
    v_lshl_add_u32 v{vH}, v{t1}, 4, v{vH}
    v_and_b32 v{t1}, 1, v{vS}
    v_lshl_add_u32 v{vH}, v{t1}, 5, v{vH}
    s_mul_i32 s8, s69, {ROWB}
    s_lshl_b32 s9, s3, 9
    s_add_u32 s8, s8, s9
    s_add_u32 s8, s8, {PF_OFF}
    v_lshl_add_u32 v{vPF}, v{vL}, 2, s8
    s_waitcnt vmcnt(0)
    s_barrier
    s_cmp_ge_u32 s69, 54
    s_cbranch_scc1 L_fin
    global_load_dwordx4 {vr(HR,4)}, v{vH}, s[40:41] sc1
    """)
    for T in range(5):
        for aa in range(2): a(f"ds_read_b64_tr_b16 {vr(A2+4*T+2*aa,2)}, v{ba+T} offset:{aa*20480}")
    a(f"""
    s_mov_b32 s13, 0
    s_branch L_hpc
    L_hpp:
    s_mov_b64 exec, vcc
    global_load_dwordx4 {vr(HR,4)}, v{vH}, s[40:41] sc1
    s_mov_b64 exec, -1
    L_hpc:
    s_add_u32 s13, s13, 1
    s_waitcnt vmcnt(0)
    """)
    tagcheck(HR+2)
    spin_tail("L_hpp", "L_hpo")
    a(f"""
    v_lshlrev_b32 v{HP}, 16, v{HR}
    v_and_b32 v{HP+1}, 0xffff0000, v{HR}
    v_lshlrev_b32 v{HP+2}, 16, v{HR+1}
    v_and_b32 v{HP+3}, 0xffff0000, v{HR+1}
    """)
    for d in ("quad_perm:[1,0,3,2]", "quad_perm:[2,3,0,1]", "row_half_mirror"):
        for r in range(4): a(f"v_add_f32_dpp v{HP+r}, v{HP+r}, v{HP+r} {d} {DPPM}")
    for r in range(4): a(f"v_mul_f32 v{HP+4+r}, {NLOG2E}, v{HP+r}")
    for r in range(4): a(f"v_exp_f32 v{HP+4+r}, v{HP+4+r}")
    for r in range(4): a(f"v_add_f32 v{HP+4+r}, 1.0, v{HP+4+r}")
    for r in range(4): a(f"v_rcp_f32 v{HP+4+r}, v{HP+4+r}")
    for r in range(4): a(f"v_mul_f32 v{HP+r}, v{HP+r}, v{HP+4+r}")
    a(f"""
    v_cvt_pk_bf16_f32 v{hs}, v{HP}, v{HP+1}
    v_cvt_pk_bf16_f32 v{hs+1}, v{HP+2}, v{HP+3}
    v_mov_b32 v{hs+2}, v{hs}
    v_mov_b32 v{hs+3}, v{hs+1}
    v_mov_b32_dpp v{hs}, v{hs} row_ror:8 row_mask:0xf bank_mask:0xc
    v_mov_b32_dpp v{hs+1}, v{hs+1} row_ror:8 row_mask:0xf bank_mask:0xc
    v_mov_b32_dpp v{hs+2}, v{hs+2} row_ror:8 row_mask:0xf bank_mask:0x3
    v_mov_b32_dpp v{hs+3}, v{hs+3} row_ror:8 row_mask:0xf bank_mask:0x3
    s_waitcnt lgkmcnt(0)
    """)
    for T in range(5): a(f"v_mfma_f32_16x16x32_bf16 {vr(FO+4*T,4)}, {vr(hs,4)}, {vr(A2+4*T,4)}, 0")
    rowstore(FO, vPF)
    stamp("pf")
    a("s_branch L_fin")
    k_v = V.n
    role[0] = "O"
    V = VA(BIG)
    AO = V(40, 2); AUV = V(32, 2); YW = V(8, 2); PBR = V(8, 2); OUT = V(20, 2); D2 = V(16, 2)
    acc = V(4, 2); ml = V(4, 2); qp = V(8, 2); cf = V(8, 2)
    oW = V(5); ones = V(2, 2)
    vML, vPB, vCW, vCR, vCT, vPC, vMS, vFA, vSc, vM2 = [V() for _ in range(10)]; vUo = V(2)
    MLS, SCL, CP, CC, WUVL, WOL = 0, 1024, 2048, 4096, 8192, 40960
    a(f"""
    L_roleO:
    s_cmp_lg_u32 s3, 2
    s_cbranch_scc1 L_o1
    """)
    rowclear("s2", PC_OFF)
    a("L_o1:")
    srd(52, 24, SZ['wuv']); srd(56, 26, SZ['wo'])
    a(f"""
    s_lshr_b32 s13, s7, 1             ; ch
    s_and_b32 s10, s3, 1
    s_lshl_b32 s10, s10, 2
    v_xor_b32 v{t0}, s10, v{vE}
    v_and_b32 v{t1}, 4, v{vS}
    v_and_b32 v{t2}, 1, v{vS}
    v_lshl_add_u32 v{t1}, v{t2}, 1, v{t1}
    v_bfe_u32 v{t2}, v{vS}, 1, 1
    v_add_u32 v{t1}, v{t1}, v{t2}
    v_lshlrev_b32 v{vUo}, 13, v{t1}
    v_lshl_add_u32 v{vUo}, v{t0}, 4, v{vUo}
    v_xor_b32 v{vUo+1}, 32, v{vUo}
    s_lshl_b32 s10, s13, 21
    s_lshl_b32 s11, s3, 18
    s_add_u32 s10, s10, s11
    s_lshl_b32 s11, s6, 8
    s_add_u32 s10, s10, s11
    s_and_b32 s11, s7, 1
    s_lshl_b32 s11, s11, 7
    s_add_u32 s10, s10, s11
    s_lshl_b32 s11, s3, 12
    s_add_u32 s11, s11, {WUVL}
    s_cmp_eq_u32 s3, 0
    s_cbranch_scc1 L_o2
    s_barrier
    L_o2:
    """)
    EO = opt("eo", 0)
    def wuv_load(j):
        a(f"s_mov_b32 m0, s11\ns_add_u32 s11, s11, 1024\nbuffer_load_dwordx4 v{vUo+(j>>1)}, s[52:55], s10 offen{nt('wuv')} lds\ns_add_u32 s10, s10, 65536")
    if o.get("opk"):
        a(f"""
        s_cmp_lt_u32 s3, 4
        s_cbranch_scc1 L_nopk
        v_lshrrev_b32 v{t0}, 2, v{vL}
        v_and_b32 v{t1}, 1, v{t0}
        v_lshl_add_u32 v{t1}, v{vS}, 2, v{t1}
        v_and_b32 v{t2}, 3, v{vL}
        v_lshlrev_b32 v{t2}, 6, v{t2}
        v_lshl_add_u32 v{t1}, v{t1}, 13, v{t2}
        s_lshl_b32 s12, s7, 20
        s_lshl_b32 s8, s15, 18
        s_add_u32 s12, s12, s8
        s_lshl_b32 s8, s6, 8
        s_add_u32 s12, s12, s8
        s_add_u32 s12, s12, {8192 if o.get("tord") else 16384}
        v_add_u32 v{t1}, s12, v{t1}
        global_load_dword v254, v{t1}, s[22:23]{nt('pk')}
        """)
        if o.get("opk2"):
            a(f"v_add_u32 v{t1}, {8192 if o.get('tord') else (-16384) & 0xffffffff}, v{t1}\ns_mov_b32 exec_lo, 0xf0f0f0f0\ns_mov_b32 exec_hi, 0xf0f0f0f0\nglobal_load_dword v254, v{t1}, s[22:23]{nt('pk')}\ns_mov_b64 exec, -1")
        if o.get("opc"):
            a(f"""
            s_lshl_b32 s8, s6, 17
            s_lshl_b32 s12, s7, 15
            s_add_u32 s8, s8, s12
            s_lshl_b32 s12, s15, 13
            s_add_u32 s8, s8, s12
            s_add_u32 s8, s8, 4096
            v_lshl_add_u32 v{t0}, v{vL}, 6, s8
            global_load_dword v254, v{t0}, s[18:19]{nt('pc')}
            """)
        a("L_nopk:")
    for j in range(EO): wuv_load(j)
    a("s_cmp_eq_u32 s3, 0\ns_cbranch_scc1 L_o3")
    gettag()
    a("L_o3:")
    if o.get("bback"): a("s_cmp_lg_u32 s3, 0\ns_cbranch_scc1 L_o2b\ns_waitcnt vmcnt(0)\nL_o2b:")
    a(f"s_and_b32 s8, s3, 1\ns_lshl_b32 s8, s8, 3")
    swz1280(oW, 5, "s8")
    a(f"""
    s_and_b32 s12, s7, 1
    s_lshl_b32 s8, s6, 1
    s_add_u32 s12, s12, s8
    s_mul_i32 s12, s12, {64*1280}
    s_mul_i32 s14, s13, 40960
    s_mul_i32 s9, s3, 5120
    s_add_u32 s14, s14, s9
    s_add_u32 s12, s12, s14
    s_add_u32 s14, s14, {WOL}
    s_mul_i32 s9, s13, 81920
    s_sub_u32 s9, 40960, s9
    s_barrier
    """)
    OPF = opt("opf", 0)
    if OPF:
        a(f"""
        s_cmp_ge_u32 s3, {OPF}
        s_cbranch_scc1 L_nopf
        s_lshl_b32 s8, s6, 17
        s_lshl_b32 s42, s7, 15
        s_add_u32 s8, s8, s42
        s_and_b32 s42, s3, 3
        s_lshl_b32 s42, s42, 13
        s_add_u32 s8, s8, s42
        s_lshr_b32 s42, s3, 2
        s_lshl_b32 s42, s42, 12
        s_sub_u32 s8, s8, s42
        s_add_u32 s8, s8, 4096
        v_lshl_add_u32 v{t0}, v{vL}, 6, s8
        global_load_dword v254, v{t0}, s[18:19]{nt('pc')}
        L_nopf:
        """)
    TH = opt("th", 0); THN = opt("thn", 9)
    def wo_load(j, k='wo'):
        a(f"s_mov_b32 m0, s14\ns_add_u32 s14, s14, 1024\nbuffer_load_dwordx4 v{oW+j}, s[56:59], s12 offen{nt(k)} lds")
    cold = [lambda j=j: wuv_load(j) for j in range(EO, 4)] + [lambda j=j: wo_load(j) for j in range(5)]
    for n_, f in enumerate(cold):
        f()
        if TH and n_ < THN: a(f"s_waitcnt vmcnt({TH-1})")
    a(f"s_add_u32 s12, s12, s9\ns_add_u32 s14, s14, s9\ns_sub_u32 s14, s14, 5120")
    for j in range(5): wo_load(j, 'wo2')
    a(f"""
    s_lshr_b32 s8, s6, 4
    s_lshl_b32 s8, s8, 15
    s_and_b32 s42, s6, 15
    s_lshl_b32 s42, s42, 4
    s_add_u32 s8, s8, s42
    s_add_u32 s8, s8, {ML_OFF + 512}
    s_lshr_b32 s42, s3, 2             ; hh
    s_lshl_b32 s43, s42, 1
    v_and_b32 v{t0}, 3, v{vL}
    v_xor_b32 v{t0}, s43, v{t0}
    v_lshl_add_u32 v{t0}, v{vS}, 2, v{t0}
    v_lshl_add_u32 v{vML}, v{t0}, 10, s8
    s_lshl_b32 s43, s42, 3
    v_lshlrev_b32 v{vM2}, 2, v{vL}
    v_xor_b32 v{vM2}, s43, v{vM2}
    s_lshl_b32 s8, s6, 16
    s_lshl_b32 s43, s13, 10
    s_add_u32 s8, s8, s43
    s_lshl_b32 s43, s15, 7
    s_add_u32 s8, s8, s43
    s_lshl_b32 s43, s42, 12
    s_add_u32 s8, s8, s43
    s_add_u32 s8, s8, {PB_OFF + 512}
    v_lshl_add_u32 v{vPB}, v{vS}, 13, s8
    v_lshl_add_u32 v{vPB}, v{vE}, 4, v{vPB}
    s_lshl_b32 s8, s15, 9
    s_add_u32 s8, s8, {CC}
    s_lshl_b32 s43, s42, 8
    s_add_u32 s43, s43, s8
    v_lshrrev_b32 v{t2}, 1, v{vG}
    v_lshl_add_u32 v{vCW}, v{t2}, 7, s43
    v_lshl_add_u32 v{vCW}, v{vE}, 4, v{vCW}
    v_lshlrev_b32 v{t0}, 9, v{t2}             ; 4*(g>>1) rows
    v_and_b32 v{t2}, 1, v{vG}
    v_lshl_add_u32 v{vCW}, v{t2}, 3, v{vCW}
    v_lshl_add_u32 v{t0}, v{t2}, 7, v{t0}     ; + (g&1) rows
    v_and_b32 v{t2}, 3, v{vL}
    v_lshl_add_u32 v{vCR}, v{t2}, 7, s8
    v_lshl_add_u32 v{vCR}, v{vG}, 4, v{vCR}
    s_lshl_b32 s8, s15, 2
    v_add_u32 v{t2}, s8, v{t2}                ; p = 4u + j
    v_lshrrev_b32 v{t1}, 1, v{t2}
    s_lshl_b32 s8, s42, 2
    v_xor_b32 v{t1}, s8, v{t1}
    v_xor_b32 v{t1}, v{t1}, v{vG}
    v_lshlrev_b32 v{vCT}, 7, v{t2}
    v_lshl_add_u32 v{vCT}, v{t1}, 4, v{vCT}
    v_lshrrev_b32 v{t1}, 1, v{vN}
    v_xor_b32 v{t1}, v{t1}, v{vG}
    v_lshlrev_b32 v{vMS}, 7, v{vN}
    v_lshl_add_u32 v{vMS}, v{t1}, 4, v{vMS}
    v_xor_b32 v{ones}, 64, v{vMS}
    s_lshl_b32 s64, s42, 1
    s_mul_i32 s8, s2, {ROWB}
    s_lshl_b32 s42, s3, 9
    s_add_u32 s8, s8, s42
    s_add_u32 s8, s8, {PC_OFF}
    v_lshl_add_u32 v{vPC}, v{vL}, 2, s8
    v_bfe_u32 v{acc}, v{vL}, 2, 2             ; r
    v_lshl_add_u32 v{t0}, v{acc}, 11, v{t0}
    v_and_b32 v{t2}, 3, v{vL}
    v_lshl_add_u32 v{t0}, v{t2}, 3, v{t0}
    s_lshl_b32 s8, s15, 13
    s_add_u32 s8, s8, {WUVL}
    v_add_u32 v{t0}, s8, v{t0}
    """)
    a(f"v_xor_b32 v{acc}, s64, v{acc}")
    for Td in range(2):
        a(f"v_xor_b32 v{t2}, {Td}, v{acc}\nv_lshl_add_u32 v{cf+Td}, v{t2}, 5, v{t0}")
    tr1280(oW, WOL)
    rowmasks()
    a(f"""
    s_lshl_b32 s8, s2, 8
    s_add_u32 s8, s8, {FO_OFF}
    """)
    LW = opt("lw", 7)
    FOE = f"s_mov_b64 exec, 1\nglobal_store_dwordx2 v{vFA}, {vr(pub+2,2)}, s[40:41] sc1\ns_mov_b64 exec, -1\ns_mov_b32 s42, 0" if opt("fop", 0) == 2 else ""
    a(f"""
    v_lshl_add_u32 v{vFA}, v{vN}, 3, s8
    s_cmp_eq_u32 s3, {LW}
    s_cselect_b64 s[44:45], -1, 0
    s_cmp_eq_u32 s3, 0
    s_cselect_b32 s42, 0xffff, 0
    s_mov_b32 s43, 0
    s_cbranch_scc0 L_gow
    s_mov_b32 s13, 0
    s_mov_b64 vcc, -1
    s_waitcnt vmcnt({opt("mw", 0)})
    L_gop:
    s_mov_b64 exec, vcc
    global_load_dwordx4 {vr(ml,4)}, v{vML}, s[40:41] sc1
    s_mov_b64 exec, -1
    L_goc:
    s_add_u32 s13, s13, 1
    s_waitcnt vmcnt(0)
    """)
    tagcheck(ml+2)
    spin_tail("L_gop", "L_goo")
    a(f"""
    ds_write_b32 v{vM2}, v{ml} offset:{MLS}
    L_gow:
    s_waitcnt vmcnt(0)
    """)
    stamp("wo")
    a("s_waitcnt lgkmcnt(0)\ns_barrier")
    stamp("go")
    FO1 = 0
    pbl = [f"global_load_dwordx4 {vr(PBR+4*u,4)}, v{vPB}, s[40:41] offset:{2048*u} sc1" for u in range(2)]
    lrl = f"global_load_dwordx4 {vr(ml,4)}, v{vML}, s[40:41] offset:256 sc1"
    fost = f"s_mov_b64 exec, s[42:43]\nglobal_store_dwordx2 v{vFA}, {vr(pub+2,2)}, s[40:41] sc1\ns_mov_b64 exec, -1"
    for l in pbl: a(l)
    a(f"ds_read_b32 v{t3}, v{vM2} offset:{MLS}")
    a(f"s_mov_b64 exec, s[44:45]\n{lrl}")
    if FO1: a(fost)
    else: a("s_mov_b64 exec, -1")
    a("s_waitcnt lgkmcnt(0)")
    red32("v_max_f32", t0, t3, t1)
    a(f"""
    v_sub_f32 v{t3}, v{t3}, v{t0}
    v_exp_f32 v{t3}, v{t3}
    s_mov_b32 s13, 0
    v_cvt_pk_bf16_f32 v{t2}, v{t3}, v{t3}
    """)
    for u in range(2):
        for r in range(4):
            a(f"v_and_b32_dpp v{YW+4*u+r}, v{t2}, v{msk+r} quad_perm:[{u},{u},{u},{u}] {DPPM}")
    for ks in range(2):
        for Td in range(2):
            for aa in range(2):
                a(f"ds_read_b64_tr_b16 {vr(AUV+8*ks+4*Td+2*aa,2)}, v{cf+Td} offset:{(8*ks+2*aa)*128}")
        a("s_waitcnt lgkmcnt(5)")
    for T in range(5):
        for ks in range(2):
            for aa in range(2):
                a(f"ds_read_b64_tr_b16 {vr(AO+8*T+4*ks+2*aa,2)}, v{oW+T} offset:{(2*ks+aa)*20480}")
        if T in (1, 3): a("s_waitcnt lgkmcnt(5)")
    a(f"s_waitcnt vmcnt({1+FO1})\ns_branch L_pbc\nL_pbp:")
    masked(pbl)
    a("s_waitcnt vmcnt(0)\nL_pbc:\ns_add_u32 s13, s13, 1")
    for u in range(2):
        a(f"v_mfma_f32_16x16x32_bf16 {vr(Dq,4)}, {vr(YW+4*u,4)}, {vr(PBR+4*u,4)}, {'0' if u == 0 else vr(Dq,4)}")
        sent_mask(u, PBR+4*u, t2)
    or_masks(2)
    spin_tail("L_pbp", "L_pbo")
    stamp("pb")
    FOP = opt("fop", 0)
    if FOP in (0, 2): a(fost)
    a(f"""
    v_cvt_pk_bf16_f32 v{qp}, v{Dq}, v{Dq+1}
    v_cvt_pk_bf16_f32 v{qp+1}, v{Dq+2}, v{Dq+3}
    """)
    setexec(0xFF00FF0000FF00FF)
    a(f"ds_write_b64 v{vCW}, {vr(qp,2)}")
    setexec(-1)
    a(f"""
    s_waitcnt lgkmcnt(0)
    s_barrier
    ds_read_b128 {vr(cf,4)}, v{vCR}
    ds_read_b128 {vr(cf+4,4)}, v{vCR} offset:64
    """)
    if FOP == 1: a(fost)
    a(f"""
    v_mov_b32 v{t2}, {SCL}
    s_cmp_lg_u32 s3, {LW}
    s_cbranch_scc1 L_nolr
    s_mov_b32 s13, 0
    s_waitcnt vmcnt(1)
    s_branch L_lrc
    L_lrp:
    s_mov_b64 exec, vcc
    {lrl}
    s_mov_b64 exec, -1
    s_waitcnt vmcnt(0)
    L_lrc:
    s_add_u32 s13, s13, 1
    """)
    tagcheck(ml+2)
    spin_tail("L_lrp", "L_lro")
    a(f"v_mul_f32 v{t3}, v{t3}, v{ml}")
    red32("v_add_f32", t0, t3, t1)
    a(f"v_rcp_f32 v{t0}, v{t0}\ns_waitcnt lgkmcnt(0)\nds_write_b32 v{t2}, v{t0}\nL_nolr:")
    for ks in range(2):
        a(f"s_waitcnt lgkmcnt({1-ks})")
        for Td in range(2):
            a(f"v_mfma_f32_16x16x32_bf16 {vr(D2+4*Td,4)}, {vr(AUV+8*ks+4*Td,4)}, {vr(cf+4*ks,4)}, {'0' if ks == 0 else vr(D2+4*Td,4)}")
    for i in range(4): a(f"v_cvt_pk_bf16_f32 v{qp+i}, v{D2+2*i}, v{D2+2*i+1}")
    setexec(0x000F000F000F000F)
    a(f"ds_write_b128 v{vCT}, {vr(qp,4)} offset:{CP}")
    setexec(-1)
    a("s_waitcnt lgkmcnt(0)\ns_barrier")
    stamp("cp", True)
    a(f"""
    ds_read_b128 {vr(qp,4)}, v{vMS} offset:{CP}
    ds_read_b128 {vr(qp+4,4)}, v{ones} offset:{CP}
    ds_read_b32 v{vSc}, v{t2}
    """)
    TO = [4, 0, 2, 1, 3]
    for ks in range(2):
        a(f"s_waitcnt lgkmcnt({2-ks})")
        for T in TO:
            a(f"v_mfma_f32_16x16x32_bf16 {vr(OUT+4*T,4)}, {vr(qp+4*ks,4)}, {vr(AO+8*T+4*ks,4)}, {'0' if ks == 0 else vr(OUT+4*T,4)}")
    R = OUT
    for T in TO:
        a(f"v_pk_add_f32 {vr(R+4*T,2)}, {vr(R+4*T,2)}, {vr(R+4*T+2,2)}")
    for T in TO:
        a(f"v_add_f32 v{R+4*T}, v{R+4*T}, v{R+4*T+1}")
    a(f"""
    v_mov_b32 v{R+17}, v{R+16}
    v_permlane32_swap_b32 v{R}, v{R+8}
    v_permlane32_swap_b32 v{R+4}, v{R+12}
    v_permlane32_swap_b32 v{R+16}, v{R+17}
    v_add_f32 v{R}, v{R}, v{R+8}
    v_add_f32 v{R+4}, v{R+4}, v{R+12}
    v_add_f32 v{R+16}, v{R+16}, v{R+17}
    s_waitcnt lgkmcnt(0)
    v_mov_b32 v{R+17}, v{R+16}
    v_permlane16_swap_b32 v{R}, v{R+4}
    v_add_f32 v{R}, v{R}, v{R+4}
    v_permlane16_swap_b32 v{R+16}, v{R+17}
    v_mul_f32 v{R}, v{vSc}, v{R}
    v_add_f32 v{R+16}, v{R+16}, v{R+17}
    global_store_dword v{vPC}, v{R}, s[40:41] sc1
    v_mul_f32 v{R+16}, v{vSc}, v{R+16}
    s_mov_b32 exec_hi, 0
    global_store_dword v{vPC}, v{R+16}, s[40:41] offset:256 sc1
    s_mov_b32 exec_hi, -1
    """)
    stamp("pc")
    a("s_branch L_fin")
    po_v = V.n
    role[0] = "A"
    CK = BIG; CV = BIG + 64; QB = BIG + 128
    V = VA(BIG + 192)
    MXR = QB; U = QB + 8; DP = QB + 24; DL = QB + 40; on4 = QB + 44
    DS = Dq
    ba = V(8); vPBs = V(4); vMLs = V(); vq = V(); vqw = V(2); vqr = V(2); vPr = V(); vPw = V(); vMw = V(); vMr = V()
    QP = V(8, 2)
    ml = pub
    CKV, QAS, PL, MX = 0, 131072, 147456, 151552
    EA = opt("ea", 4); CLR = opt("clr", 1)
    def pbclear():
        a(f"""
        s_lshl_b32 s12, s78, 4
        s_lshl_b32 s13, s3, 1
        s_add_u32 s12, s12, s13
        s_lshl_b32 s12, s12, 16
        s_lshl_b32 s13, s79, 11
        s_add_u32 s12, s12, s13
        s_add_u32 s12, s12, {PB_OFF + 512}
        v_lshl_add_u32 v{t0}, v{vL}, 4, s12
        v_lshrrev_b32 v{t1}, 5, v{vL}
        v_lshl_add_u32 v{t0}, v{t1}, 9, v{t0}
        v_add_u32 v{t1}, 0x10000, v{t0}
        global_store_dwordx4 v{t0}, {vr(Dq,4)}, s[40:41] sc1
        global_store_dwordx4 v{t1}, {vr(Dq,4)}, s[40:41] sc1
        """)
    a("L_roleA:")
    if CLR == 0: pbclear()
    a(f"""
    s_lshl_b32 s8, s79, 17
    s_lshl_b32 s9, s3, 14
    s_add_u32 s8, s8, s9
    s_lshl_b32 s10, s78, 13                  ; rotation
    v_lshlrev_b32 v{t3}, 4, v{vL}
    """)
    for k in range(8): a(f"v_xor_b32 v{ba+k}, {32*k}, v{t3}")
    srd(48, 18, SZ['ckv'])
    def ckv_ld(jj):
        if jj % 4 == 0: a("s_add_u32 s11, s9, s10\ns_add_u32 s14, s8, s10\ns_mov_b32 m0, s11\ns_add_u32 s10, s10, 4096\ns_and_b32 s10, s10, 0x3fff")
        a(f"buffer_load_dwordx4 v{ba+(jj&7)}, s[48:51], s14 offen offset:{1024*(jj&3)}{nt('ckv')} lds")
    if o.get("apf"):
        a(f"""
        v_lshrrev_b32 v{t0}, 2, v{vL}
        v_and_b32 v{t1}, 1, v{t0}
        v_lshl_add_u32 v{t1}, v{vS}, 2, v{t1}
        v_and_b32 v{t2}, 3, v{vL}
        v_lshlrev_b32 v{t2}, 6, v{t2}
        v_lshl_add_u32 v{t1}, v{t1}, 13, v{t2}
        s_lshl_b32 s12, s78, 21
        s_lshl_b32 s13, s3, 18
        s_add_u32 s12, s12, s13
        s_lshl_b32 s13, s79, 8
        s_add_u32 s12, s12, s13
        s_add_u32 s12, s12, 16384
        v_add_u32 v{t1}, s12, v{t1}
        global_load_dword v254, v{t1}, s[22:23]{nt('pk')}
        s_barrier
        """)
    a("s_cmp_eq_u32 s3, 0\ns_cbranch_scc1 L_a1\ns_barrier\nL_a1:")
    if o.get("apf1"):
        a(f"""
        s_cmp_lt_u32 s3, 4
        s_cbranch_scc1 L_noapf
        v_lshrrev_b32 v{t0}, 2, v{vL}
        v_and_b32 v{t2}, 3, v{vL}
        v_lshlrev_b32 v{t2}, 6, v{t2}
        v_lshl_add_u32 v{t1}, v{t0}, 15, v{t2}
        s_lshl_b32 s12, s78, 21
        s_lshl_b32 s13, s15, 19
        s_add_u32 s12, s12, s13
        s_lshl_b32 s13, s79, 8
        s_add_u32 s12, s12, s13
        s_add_u32 s12, s12, 8192
        v_add_u32 v{t1}, s12, v{t1}
        global_load_dword v254, v{t1}, s[22:23]{nt('pk')}
        L_noapf:
        """)
        if EA: a("s_cmp_eq_u32 s3, 0\ns_cbranch_scc1 L_a1b\ns_waitcnt lgkmcnt(0)\nL_a1b:")
    for jj in range(EA): ckv_ld(jj)
    a("s_cmp_eq_u32 s3, 0\ns_cbranch_scc1 L_a2")
    gettag()
    stamp("c1")
    a("L_a2:\ns_barrier")
    stamp("c2")
    for jj in range(EA, 8): ckv_ld(jj)
    stamp("c2b")
    if CLR == 1: pbclear()
    QE = o.get("qe")
    if QE:
        a(f"""
        s_lshl_b32 s12, s78, 5
        s_lshr_b32 s13, s3, 2
        s_lshl_b32 s13, s13, 4
        s_add_u32 s12, s12, s13
        s_lshl_b32 s13, s15, 1
        s_add_u32 s12, s12, s13
        s_lshl_b32 s12, s12, 8
        s_add_u32 s12, s12, {FK_OFF}
        v_and_b32 v{t0}, 1, v{vL}
        v_lshl_add_u32 v{vWo}, v{t0}, 8, s12
        v_bfe_u32 v{t0}, v{vL}, 1, 1
        v_lshl_add_u32 v{vWo}, v{t0}, 11, v{vWo}
        global_load_dwordx2 {vr(QP,2)}, v{vWo}, s[40:41] sc1
        """)
    if not o.get("nocb"): a("s_barrier")
    stamp("c3")
    for jj in range(8, 16): ckv_ld(jj)
    stamp("c4")
    if CLR == 2: pbclear()
    a(f"""
    v_lshl_add_u32 v{t0}, v{vN}, 10, s9
    v_lshlrev_b32 v{t1}, 1, v{vE}
    v_xor_b32 v{t1}, v{t1}, v{vG}             ; g ^ 2(i&7)
    """)
    for q in range(4):
        a(f"v_xor_b32 v{t2}, {4*q}, v{t1}\nv_lshl_add_u32 v{ba+q}, v{t2}, 4, v{t0}")
    a(f"""
    v_xor_b32 v{t0}, v{vN}, v{vG}
    v_lshlrev_b32 v{t1}, 8, v{vG}
    v_lshl_add_u32 v{vqr}, v{t0}, 4, v{t1}
    v_add_u32 v{vqr}, {QAS}, v{vqr}
    v_xor_b32 v{vqr+1}, 64, v{vqr}
    s_lshl_b32 s12, s78, 20
    s_lshl_b32 s13, s79, 11
    s_add_u32 s12, s12, s13
    s_lshl_b32 s13, s15, 7
    s_add_u32 s12, s12, s13
    s_lshr_b32 s13, s3, 2
    s_lshl_b32 s13, s13, 10
    s_add_u32 s12, s12, s13
    s_add_u32 s12, s12, {PB_OFF + 512}
    v_lshl_add_u32 v{vPBs}, v{vG}, 18, s12
    v_lshl_add_u32 v{vPBs}, v{vN}, 3, v{vPBs}
    v_add_u32 v{vPBs+1}, 0x10000, v{vPBs}
    v_add_u32 v{vPBs+2}, 0x20000, v{vPBs}
    v_add_u32 v{vPBs+3}, 0x30000, v{vPBs}
    v_lshlrev_b32 v{vPr}, 4, v{vL}
    v_add_u32 v{vPr}, {PL}, v{vPr}
    s_lshr_b32 s8, s3, 1
    s_lshl_b32 s8, s8, 10
    s_and_b32 s13, s3, 1
    s_lshl_b32 s13, s13, 3
    s_add_u32 s8, s8, s13
    v_add_u32 v{vPw}, s8, v{vPr}
    v_lshlrev_b32 v{vMr}, 5, v{vN}
    v_add_u32 v{vMr}, {MX}, v{vMr}
    s_lshl_b32 s8, s3, 2
    v_add_u32 v{vMw}, s8, v{vMr}
    s_lshl_b32 s10, s78, 15
    s_lshl_b32 s8, s79, 10
    s_add_u32 s10, s10, s8
    s_add_u32 s10, s10, {ML_OFF + 512}
    v_lshl_add_u32 v{vMLs}, v{vN}, 4, s10
    s_lshl_b32 s11, s78, 15
    s_lshl_b32 s12, s3, 12
    s_add_u32 s11, s11, s12
    s_lshl_b32 s12, s4, 16
    s_add_u32 s11, s11, s12
    s_add_u32 s11, s11, {QA_OFF + 512}
    v_lshl_add_u32 v{vq}, v{vL}, 4, s11
    v_lshrrev_b32 v{t0}, 5, v{vL}
    v_lshl_add_u32 v{vq}, v{t0}, 9, v{vq}
    s_lshl_b32 s8, s3, 1
    v_xor_b32 v{t0}, s8, v{vE}
    v_lshlrev_b32 v{t1}, 8, v{vL}
    v_lshl_add_u32 v{vqw}, v{t0}, 4, v{t1}
    v_add_u32 v{vqw}, {QAS}, v{vqw}
    v_xor_b32 v{vqw+1}, 16, v{vqw}
    s_cmp_eq_u32 s3, 3
    s_cselect_b32 s42, 0xffff, 0
    s_mov_b32 s43, 0
    """)
    qal = [f"global_load_dwordx4 {vr(QP+4*j,4)}, v{vq}, s[40:41] offset:{2048*j} sc1" for j in range(2)]
    if QE:
        a(f"""
        s_mov_b32 s13, 0
        s_waitcnt vmcnt({opt("qew", 4)})
        s_branch L_fkc
        L_fkp:
        global_load_dwordx2 {vr(QP,2)}, v{vWo}, s[40:41] sc1
        s_waitcnt vmcnt(0)
        L_fkc:
        s_add_u32 s13, s13, 1
        """)
        tagcheck(QP)
        spin_tail("L_fkp", "L_fko")
        if o.get("qeb"): a("s_barrier")
        for l in qal: a(l)
        a("s_waitcnt vmcnt(2) lgkmcnt(0)")
    else:
        a(f"""
        s_cmp_lg_u32 s3, 1
        s_cbranch_scc1 L_fko
        s_lshl_b32 s11, s78, 13
        s_add_u32 s11, s11, {FK_OFF}
        v_and_b32 v{t0}, 31, v{vL}
        v_lshl_add_u32 v{t3}, v{t0}, 8, s11
        """)
        flag_wait(t3, QP, "L_fk")
        a("s_waitcnt vmcnt(0) lgkmcnt(0)")
    stamp("ckvl", True)
    for t in range(16):
        a(f"ds_read_b128 {vr(CK+4*t,4)}, v{ba+(t&3)} offset:{256*(t>>2)}")
        if t == 11: a("s_waitcnt lgkmcnt(6)")
    a(f"""
    v_lshrrev_b32 v{t0}, 2, v{vL}             ; 4g+r
    v_and_b32 v{t1}, 7, v{t0}                 ; key&7
    v_lshlrev_b32 v{t0}, 10, v{t0}
    v_and_b32 v{t2}, 3, v{vL}
    v_lshl_add_u32 v{t0}, v{t2}, 3, v{t0}
    s_lshr_b32 s8, s3, 1
    s_lshl_b32 s8, s8, 8
    v_add_u32 v{t0}, s8, v{t0}
    s_and_b32 s8, s3, 1
    s_lshl_b32 s8, s8, 2
    v_xor_b32 v{t1}, s8, v{t1}
    """)
    for T in range(4):
        a(f"v_xor_b32 v{t2}, {T}, v{t1}\nv_lshl_add_u32 v{ba+T}, v{t2}, 5, v{t0}\nv_add_u32 v{ba+4+T}, 0x10000, v{ba+T}")
    a("s_barrier")
    stamp("ckv")
    if not QE:
        for l in qal: a(l)
    for T in range(4):
        a("s_waitcnt lgkmcnt(4)")
        for t in range(4):
            for aa in range(2):
                off = (32*t + 16*aa) * 1024
                a(f"ds_read_b64_tr_b16 {vr(CV+16*T+4*t+2*aa,2)}, v{ba+T+4*(off>>16)} offset:{off & 0xffff}")
    a("s_mov_b32 s13, 0\ns_branch L_qac\nL_qap:")
    masked(qal)
    a("L_qac:\ns_add_u32 s13, s13, 1")
    for j in range(2):
        a(f"s_waitcnt vmcnt({1-j})")
        a(f"ds_write_b128 v{vqw+j}, {vr(QP+4*j,4)}")
        sent_mask(j, QP+4*j, t2)
    or_masks(2)
    spin_tail("L_qap", "L_qao")
    stamp("qap")
    a("s_waitcnt lgkmcnt(0)\ns_barrier")
    def qread(t): a(f"ds_read_b128 {vr(QB+4*t,4)}, v{vqr+(t&1)} offset:{1024*t}")
    PRE = 12
    for t in range(PRE): qread(t)
    for t in range(16):
        issued = min(16, PRE + t)
        a(f"s_waitcnt lgkmcnt({issued - t - 1})")
        a(f"v_mfma_f32_16x16x32_bf16 {vr(DS,4)}, {vr(CK+4*t,4)}, {vr(QB+4*t,4)}, {'0' if t == 0 else vr(DS,4)}")
        if t + PRE < 16: qread(t + PRE)
    stamp("scm")
    a(f"""
    v_max3_f32 v{t0}, v{DS}, v{DS+1}, v{DS+2}
    v_max_f32 v{t0}, v{t0}, v{DS+3}
    """)
    xrow("v_max_f32", t0, t1)
    a(f"""
    s_mov_b64 exec, 0xffff
    ds_write_b32 v{vMw}, v{t0}
    s_mov_b64 exec, -1
    v_mov_b32 v{on4}, 0x3f803f80
    v_mov_b32 v{on4+1}, 0x3f803f80
    v_mov_b32 v{on4+2}, 0x3f803f80
    v_mov_b32 v{on4+3}, 0x3f803f80
    s_waitcnt lgkmcnt(0)
    s_barrier
    ds_read_b128 {vr(MXR,4)}, v{vMr}
    ds_read_b128 {vr(MXR+4,4)}, v{vMr} offset:16
    """)
    a(f"""
    s_waitcnt lgkmcnt(1)
    v_max3_f32 v{t0}, v{MXR}, v{MXR+1}, v{MXR+2}
    s_waitcnt lgkmcnt(0)
    v_max3_f32 v{t1}, v{MXR+3}, v{MXR+4}, v{MXR+5}
    v_max3_f32 v{t0}, v{t0}, v{MXR+6}, v{MXR+7}
    v_max_f32 v{t0}, v{t0}, v{t1}
    v_ceil_f32 v{ml}, v{t0}
    """)
    mst = f"s_mov_b64 exec, s[42:43]\nglobal_store_dwordx4 v{vMLs}, {vr(ml,4)}, s[40:41] sc1\ns_mov_b64 exec, -1"
    MP = opt("mp", 0)
    if MP == 0: a(mst)
    for r in range(4): a(f"v_sub_f32 v{DS+r}, v{DS+r}, v{ml}")
    for r in range(4): a(f"v_exp_f32 v{DS+r}, v{DS+r}")
    a(f"""
    v_cvt_pk_bf16_f32 v{DS}, v{DS}, v{DS+1}
    v_cvt_pk_bf16_f32 v{DS+1}, v{DS+2}, v{DS+3}
    ds_write_b64 v{vPw}, {vr(DS,2)}
    {mst if MP == 1 else ""}
    s_waitcnt lgkmcnt(0)
    s_barrier
    """)
    stamp("exp", True)
    for t in range(4): a(f"ds_read_b128 {vr(U+4*t,4)}, v{vPr} offset:{1024*t}")
    if MP == 2: a(mst)
    a("s_cmp_lg_u32 s3, 0\ns_cbranch_scc1 L_nol")
    for t in range(4):
        a(f"s_waitcnt lgkmcnt({3-t})")
        a(f"v_mfma_f32_16x16x32_bf16 {vr(DL,4)}, {vr(on4,4)}, {vr(U+4*t,4)}, {'0' if t == 0 else vr(DL,4)}")
    a("L_nol:")
    for t in range(4):
        a(f"s_waitcnt lgkmcnt({3-t})")
        for T in range(4):
            a(f"v_mfma_f32_16x16x32_bf16 {vr(DP+4*T,4)}, {vr(U+4*t,4)}, {vr(CV+16*T+4*t,4)}, {'0' if t == 0 else vr(DP+4*T,4)}")
        if t == 1:
            a(f"""
            s_cmp_lg_u32 s3, 0
            s_cbranch_scc1 L_nol2
            v_mov_b32 v{ml}, v{DL}
            s_mov_b64 exec, 0xffff
            global_store_dwordx4 v{vMLs}, {vr(ml,4)}, s[40:41] offset:256 sc1
            s_mov_b64 exec, -1
            L_nol2:
            """)
    OB = CK
    for r in range(4): a(f"v_cvt_pk_bf16_f32 v{OB+2*r}, v{DP+r}, v{DP+4+r}")
    for r in range(4):
        a(f"v_cvt_pk_bf16_f32 v{OB+2*r+1}, v{DP+8+r}, v{DP+12+r}")
        a(f"global_store_dwordx2 v{vPBs+r}, {vr(OB+2*r,2)}, s[40:41] sc1")
    stamp("pbst")
    gx = CV; gg = CV + 6; vg = CV + 12; RB = CV + 16; RS = CV + 32; RC = CV + 48
    a(f"""
    s_lshr_b32 s8, s3, 1
    s_cmp_lg_u32 s8, 1
    s_cbranch_scc1 L_fin
    s_cmp_ge_u32 s69, 40
    s_cbranch_scc1 L_fin
    v_mul_u32_u24 v{t1}, 20, v{vL}
    global_load_dwordx4 {vr(gx,4)}, v{t1}, s[16:17]
    global_load_dword v{gx+4}, v{t1}, s[16:17] offset:16
    global_load_dwordx4 {vr(gg,4)}, v{t1}, s[34:35]
    global_load_dword v{gg+4}, v{t1}, s[34:35] offset:16
    s_lshr_b32 s8, s69, 3
    s_lshl_b32 s8, s8, 1
    s_and_b32 s9, s3, 1
    s_add_u32 s8, s8, s9
    s_mul_i32 s15, s4, 10
    s_add_u32 s15, s15, s8
    v_lshrrev_b32 v{t2}, 1, v{vL}
    v_mul_u32_u24 v{t0}, {ROWB}, v{t2}
    v_and_b32 v{t1}, 1, v{vL}
    v_lshl_add_u32 v{t0}, v{t1}, 4, v{t0}
    s_lshl_b32 s9, s4, 9
    s_lshl_b32 s8, s8, 5
    s_add_u32 s9, s9, s8
    s_add_u32 s9, s9, {PC_OFF}
    v_add_u32 v{ba}, s9, v{t0}
    v_add_u32 v{ba+1}, {32*ROWB}, v{ba}
    v_add_u32 v{ba+2}, {64*ROWB}, v{ba}
    v_add_u32 v{ba+3}, {96*ROWB}, v{ba}
    v_add_u32 v{vPBs}, {PF_OFF-PC_OFF}, v{ba}
    v_add_u32 v{vPBs+1}, {PF_OFF-PC_OFF}, v{ba+1}
    s_lshl_b32 s9, s15, 4
    v_lshl_add_u32 v{ba+4}, v{t1}, 3, s9
    v_lshl_add_u32 v{ba+4}, v{vG}, 1, v{ba+4}
    v_lshlrev_b32 v{ba+5}, 8, v{vL}
    v_add_u32 v{ba+7}, {FK_OFF}, v{ba+5}
    v_add_u32 v{ba+5}, {FO_OFF}, v{ba+5}
    v_add_u32 v{ba+6}, 16384, v{ba+5}
    v_mov_b32 v{RB+4}, 0
    v_mov_b32 v{RB+5}, 0
    v_mov_b32 v{RB+6}, 0
    v_mov_b32 v{RB+7}, 0
    """)
    if opt("fop", 0) == 2: flag_wait(ba+7, RS, "L_f2")
    a(f"v_mov_b32 v{t3}, 0\ns_waitcnt vmcnt(0)")
    for i in range(5):
        a(f"""
        v_lshlrev_b32 v{t0}, 16, v{gx+i}
        v_lshlrev_b32 v{t1}, 16, v{gg+i}
        v_mul_f32 v{t0}, v{t0}, v{t1}
        v_and_b32 v{t1}, 0xffff0000, v{gx+i}
        v_and_b32 v{t2}, 0xffff0000, v{gg+i}
        v_mul_f32 v{t1}, v{t1}, v{t2}
        v_cvt_pk_bf16_f32 v{t0}, v{t0}, v{t1}
        v_lshlrev_b32 v{t1}, 16, v{t0}
        v_and_b32 v{t0}, 0xffff0000, v{t0}
        v_add_f32 v{t3}, v{t3}, v{t1}
        v_add_f32 v{t3}, v{t3}, v{t0}
        """)
    allred("v_add_f32", t3, t3, t0)
    rbf(t3, t3)
    a(f"""
    v_mul_f32 v{t3}, {NLOG2E}, v{t3}
    v_exp_f32 v{t3}, v{t3}
    v_add_f32 v{t3}, 1.0, v{t3}
    v_rcp_f32 v{t3}, v{t3}
    """)
    rbf(vg, t3)
    a(f"v_sub_f32 v{vg+1}, 1.0, v{vg}")
    rbf(vg+1, vg+1)
    a(f"""
    s_mov_b32 s13, 0
    s_mov_b64 {MK[0]}, -1
    s_mov_b64 {MK[1]}, -1
    L_frp:
    """)
    masked([f"global_load_dwordx2 {vr(RS,2)}, v{ba+5}, s[40:41] sc1", f"global_load_dwordx2 {vr(RS+2,2)}, v{ba+6}, s[40:41] sc1"])
    a(f"""
    s_add_u32 s13, s13, 1
    s_waitcnt vmcnt(0)
    v_cmp_ne_u64 {MK[0]}, {TAG}, {vr(RS,2)}
    v_cmp_ne_u64 {MK[1]}, {TAG}, {vr(RS+2,2)}
    """)
    or_masks(2)
    spin_tail("L_frp", "L_fro")
    stamp("fo")
    pcl = [f"global_load_dwordx4 {vr(RB+4*j,4)}, v{vPBs+j}, s[40:41] sc1" for j in range(2)] + [f"global_load_dwordx4 {vr(RC+4*j,4)}, v{ba+j}, s[40:41] sc1" for j in range(4)]
    regs = [RB, RB+4, RC, RC+4, RC+8, RC+12]
    a(pcl[0])
    a(f"s_mov_b32 exec_hi, 0xfff\n{pcl[1]}\ns_mov_b32 exec_hi, -1")
    for l in pcl[2:]: a(l)
    a("s_mov_b32 s13, 0\ns_branch L_pcc\nL_pcp:")
    if opt("psl", 0): a(f"s_sleep {opt('psl', 0)}")
    masked(pcl)
    a("L_pcc:\ns_add_u32 s13, s13, 1")
    for j in range(6):
        a(f"s_waitcnt vmcnt({5-j})")
        sent_mask(j, regs[j], t2)
        if j == 1:
            for r in range(4): a(f"v_add_f32 v{RB+8+r}, v{RB+r}, v{RB+4+r}")
            for r in range(4): a(f"v_mul_f32 v{RB+8+r}, v{vg+1}, v{RB+8+r}")
    or_masks(6)
    spin_tail("L_pcp", "L_pco")
    stamp("pc")
    RB = RB + 8
    R = RC
    for r in range(0, 4, 2): a(f"v_pk_add_f32 {vr(R+r,2)}, {vr(R+r,2)}, {vr(R+4+r,2)}\nv_pk_add_f32 {vr(R+8+r,2)}, {vr(R+8+r,2)}, {vr(R+12+r,2)}")
    for r in range(0, 4, 2): a(f"v_pk_add_f32 {vr(R+r,2)}, {vr(R+r,2)}, {vr(R+8+r,2)}")
    for r in range(4): a(f"v_fmac_f32 v{RB+r}, v{vg}, v{RC+r}")
    R = RB
    a(f"""
    v_permlane32_swap_b32 v{R}, v{R+2}
    v_permlane32_swap_b32 v{R+1}, v{R+3}
    v_add_f32 v{R}, v{R}, v{R+2}
    v_add_f32 v{R+1}, v{R+1}, v{R+3}
    v_permlane16_swap_b32 v{R}, v{R+1}
    v_add_f32 v{R}, v{R}, v{R+1}
    v_add_f32_dpp v{R}, v{R}, v{R} row_ror:8 {DPPM}
    v_add_f32_dpp v{R}, v{R}, v{R} row_ror:4 {DPPM}
    v_add_f32_dpp v{R}, v{R}, v{R} row_ror:2 {DPPM}
    v_cvt_pk_bf16_f32 v{R}, v{R}, v{R}
    """)
    setexec(0x0003000300030003)
    a(f"global_store_short v{ba+4}, v{R}, s[36:37]{' sc1' if o.get('osc') else ''}")
    a(f"""
    s_cmp_lg_u32 s15, 0
    s_cbranch_scc1 L_noep
    s_mov_b64 exec, 1
    v_mov_b32 v{t0}, {EP_OFF}
    global_store_dwordx2 v{t0}, {vr(pub+2,2)}, s[40:41]{' sc1' if (o.get('osc') or o.get('esc')) else ''}
    L_noep:
    """)
    setexec(-1)
    stamp("out")
    a("L_fin:")
    if probe:
        prole, _, amp = probe; idx = 1
        a(f"""
        s_waitcnt lgkmcnt(0)
        s_cmp_eq_u32 s{80+2*idx}, 0
        s_cbranch_scc1 L_end
        s_sub_u32 s8, s{80+2*idx}, s80
        s_mul_i32 s8, s8, {amp}
        s_min_u32 s8, s8, {opt("fix", 100000)}
        L_probe:
        s_sleep 2
        s_memrealtime s[10:11]
        s_waitcnt lgkmcnt(0)
        s_sub_u32 s10, s10, s80
        s_cmp_lt_u32 s10, s8
        s_cbranch_scc1 L_probe
        """)
    if DEV:
        a(f"""
        s_waitcnt vmcnt(0)
        s_memrealtime s[100:101]
        s_waitcnt lgkmcnt(0)
        s_lshl_b32 s7, s2, 3
        s_add_u32 s7, s7, s3
        s_mul_i32 s7, s7, {NST*4}
        s_add_u32 s7, s7, {STAMP_OFF}
        s_mov_b64 exec, 1
        v_mov_b32 v3, s7
        """)
        for i in range(NST):
            a(f"v_mov_b32 v4, s{80+2*i}\nglobal_store_dword v3, v4, s[40:41] offset:{4*i}")
    a("L_end:\ns_endpgm")
    a(".fill 3600, 4, 0xbf800000")
    lines = hazard.fix(a.lines)
    nv = max(po_v, V.n, BIGEND, k_v)
    if DEV:
        for r_ in want: lines.insert(0, f"; STAMPS {r_} start " + " ".join(want[r_] + ["-"] * (NST - 2 - len(want[r_]))) + " end")
    return single("\n".join(lines) + "\n", 256, 512, 152064, vgpr=256, sgpr=102, accum=256), nv

if __name__ == "__main__":
    out = sys.argv[1]
    DEV = "dev" in sys.argv[2:]
    txt, nv = build(DEV, {k: True for k in sys.argv[2:]})
    open(out, "w").write(txt)
    print("vgprs", nv)
```

```python
import sys, math, struct
from genlib import *
import hazard

def f2u(x): return struct.unpack("<I", struct.pack("<f", x))[0]

QP_OFF, HP_OFF, FK_OFF, EP_OFF, FO_OFF, ML_OFF, PC_OFF, PF_OFF, QA_OFF, PB_OFF = 0x0, 0x160000, 0x440000, 0x444000, 0x448000, 0x450000, 0x80000, 0x100000, 0x180000, 0x200000
ROWB = 4096
MR_OFF, FR_OFF = 0x140000, 0x400000
SPIN = 200000
DPPM = "row_mask:0xf bank_mask:0xf"
NLOG2E = hex(f2u(-math.log2(math.e)))

def build(DEV=False, opts=None):
    o = dict(opts or {})
    def opt(name, dflt):
        for k in o:
            if k.startswith(name + "="): return int(k.split("=")[1])
        return dflt
    a = Asm()
    def nt(k): return " nt" if (o.get("nt") or o.get("nt_" + k)) else ""
    NST = 11
    probe = None
    for k in o:
        if k.startswith("probe"):
            _, role, idx, amp = k.split("_"); probe = (role, idx, int(amp))
    role = ["O"]
    want = {"O": "p1 wo go pb cp pc".split(), "K": "p1 wuk qp qa hp pf".split(), "A": "p1 ckv qap scm exp pbst fo pc out".split()}
    for k in o:
        for r_ in want:
            if k.startswith("s" + r_ + "="): want[r_] = k.split("=")[1].split(",")
    if probe: want = {"O": [], "K": [], "A": []}; want[probe[0]] = [probe[1]]
    def stamp(nm, wait=False):
        if not (DEV or probe): return
        if nm == "start": a("s_memrealtime s[80:81]"); return
        w = want[role[0]]
        if nm in w:
            i = w.index(nm) + 1
            a(f"s_memrealtime s[{80+2*i}:{81+2*i}]")
            if wait: a("s_waitcnt lgkmcnt(0)")
    class VA:
        def __init__(s, start): s.n = start
        def __call__(s, k=1, al=1):
            s.n = (s.n + al - 1) // al * al
            r = s.n; s.n += k
            assert s.n <= 254
            return r
    def vr(b, k): return f"v[{b}:{b+k-1}]"
    def srd(dst, src, size):
        if (o.get("noo") and src in (24, 26)) or (o.get("nof") and src in (30, 32)): size = 0
        a(f"s_mov_b32 s{dst}, s{src}\ns_mov_b32 s{dst+1}, s{src+1}\ns_mov_b32 s{dst+2}, {size}\ns_mov_b32 s{dst+3}, 0x20000")
    def setexec(mask):
        if mask == -1: a("s_mov_b64 exec, -1")
        elif mask < (1 << 31): a(f"s_mov_b64 exec, {hex(mask)}")
        else: a(f"s_mov_b32 exec_lo, {hex(mask & 0xffffffff)}\ns_mov_b32 exec_hi, {hex(mask >> 32)}")
    def spin_tail(Lp, Lo):
        a(f"s_cmp_gt_u32 s13, {SPIN}\ns_cbranch_scc1 {Lo}\ns_cbranch_vccnz {Lp}\n{Lo}:")
    def xrow(op, x, t):
        a(f"""
        v_mov_b32 v{t}, v{x}
        v_permlane16_swap_b32 v{x}, v{t}
        {op} v{x}, v{x}, v{t}
        v_mov_b32 v{t}, v{x}
        v_permlane32_swap_b32 v{x}, v{t}
        {op} v{x}, v{x}, v{t}
        """)
    def allred(op, dst, src, t):
        a(f"{op}_dpp v{dst}, v{src}, v{src} row_ror:1 {DPPM}")
        for d in (2, 4, 8): a(f"{op}_dpp v{dst}, v{dst}, v{dst} row_ror:{d} {DPPM}")
        xrow(op, dst, t)
    def red32(op, dst, src, t):
        a(f"{op}_dpp v{dst}, v{src}, v{src} quad_perm:[1,0,3,2] {DPPM}")
        a(f"{op}_dpp v{dst}, v{dst}, v{dst} quad_perm:[2,3,0,1] {DPPM}")
        a(f"{op}_dpp v{dst}, v{dst}, v{dst} row_ror:8 {DPPM}")
        xrow(op, dst, t)
    def rbf(dst, src):
        a(f"v_cvt_pk_bf16_f32 v{dst}, v{src}, v{src}\nv_and_b32 v{dst}, 0xffff0000, v{dst}")
    TAG = "s[70:71]"
    MK = ["s[72:73]", "s[74:75]", "s[76:77]", "s[66:67]", "s[64:65]", "s[62:63]"]
    def tagcheck(p): a(f"v_cmp_ne_u64 vcc, {TAG}, {vr(p,2)}")
    def sent_mask(k, R, t):
        a(f"v_max3_u32 v{t}, v{R}, v{R+1}, v{R+2}\nv_max_u32 v{t}, v{t}, v{R+3}\nv_cmp_eq_u32 {MK[k]}, -1, v{t}")
    def or_masks(n):
        a("s_nop 0")
        a(f"s_or_b64 vcc, {MK[0]}, {MK[1]}")
        for k in range(2, n): a(f"s_or_b64 vcc, vcc, {MK[k]}")
    def masked(loads):
        for k, l in enumerate(loads): a(f"s_mov_b64 exec, {MK[k]}\n{l}")
        a("s_mov_b64 exec, -1")
    def swz1280(dst, n, wsel):
        for j in range(n):
            a(f"""
            v_add_u32 v{t0}, {64*j}, v{vL}
            v_mul_u32_u24 v{t1}, 820, v{t0}
            v_lshrrev_b32 v{t1}, 16, v{t1}
            v_lshl_add_u32 v{t1}, v{t1}, 1, {wsel}
            v_xor_b32 v{t0}, v{t0}, v{t1}
            v_lshlrev_b32 v{dst+j}, 4, v{t0}
            """)
    def tr1280(dst, base):
        a(f"""
        v_lshrrev_b32 v{t1}, 2, v{vL}
        v_and_b32 v{t3}, 7, v{t1}
        v_and_b32 v{t2}, 3, v{vL}
        v_mul_u32_u24 v{t1}, 1280, v{t1}
        v_lshl_add_u32 v{t1}, v{t2}, 3, v{t1}
        v_add_u32 v{t1}, {base}, v{t1}
        s_mul_i32 s13, s3, 5
        """)
        for T in range(5):
            a(f"v_xor_b32 v{dst+T}, s13, v{t3}\nv_lshl_add_u32 v{dst+T}, v{dst+T}, 5, v{t1}\ns_add_u32 s13, s13, 1")
    def flag_store(sreg):
        a(f"""
        v_lshl_add_u32 v{t0}, v{vL}, 3, {sreg}
        s_mov_b64 exec, 0xffff
        global_store_dwordx2 v{t0}, {vr(pub+2,2)}, s[40:41] sc1
        s_mov_b64 exec, -1
        """)
    def flag_wait(va, R, lab, first=True):
        if first: a(f"s_mov_b32 s13, 0\ns_mov_b64 vcc, -1")
        else: a(f"s_mov_b32 s13, 0\ns_branch {lab}c")
        a(f"""
        {lab}p:
        s_mov_b64 exec, vcc
        global_load_dwordx2 {vr(R,2)}, v{va}, s[40:41] sc1
        s_mov_b64 exec, -1
        {lab}c:
        s_add_u32 s13, s13, 1
        s_waitcnt vmcnt(0)
        """)
        tagcheck(R)
        spin_tail(lab + "p", lab + "o")
    def vt_issue(va, R):
        a(f"v_lshlrev_b32 v{va}, 4, v{vL}\nv_add_u32 v{va}, {FK_OFF}, v{va}\nglobal_load_dwordx4 {vr(R,4)}, v{va}, s[40:41] sc1")
    def vt_finish(va, R, lab, fix):
        a(f"""
        s_mov_b32 s13, 0
        s_branch {lab}c
        {lab}p:
        global_load_dwordx4 {vr(R,4)}, v{va}, s[40:41] sc1
        s_waitcnt vmcnt(0)
        {lab}c:
        s_add_u32 s13, s13, 1
        v_cmp_eq_u32 {MK[0]}, 1, v{R}
        """)
        tagcheck(R+2)
        spin_tail(lab + "p", lab + "o")
        a(f"""
        s_bcnt1_i32_b64 s38, {MK[0]}
        s_cmp_gt_u32 s38, 32
        s_cselect_b32 s38, 0x2000, 0
        """)
        if opt("P", -1) >= 0: a(f"s_mov_b32 s38, {opt('P', 0) << 13}")
        for r_ in fix: a(f"v_xor_b32 v{r_}, s38, v{r_}")
    def rowmasks():
        a("s_mov_b32 s26, 0xffff0000\ns_mov_b32 s27, 0xffff0000\ns_mov_b32 s28, 0\ns_mov_b32 s29, -1")
    def rowstore(R, va):
        a(f"""
        v_cndmask_b32 v{R}, v{R}, v{R+4}, s[26:27]
        v_cndmask_b32 v{R+8}, v{R+8}, v{R+12}, s[26:27]
        v_cndmask_b32 v{R}, v{R}, v{R+8}, s[28:29]
        global_store_dword v{va}, v{R}, s[40:41] sc1
        s_mov_b32 exec_hi, 0
        global_store_dword v{va}, v{R+16}, s[40:41] offset:256 sc1
        s_mov_b32 exec_hi, -1
        """)
    def rowoff(dst, src, tmp):
        a(f"s_lshr_b32 {dst}, {src}, 2\ns_lshl_b32 {dst}, {dst}, 14\ns_and_b32 {tmp}, {src}, 3\ns_lshl_b32 {tmp}, {tmp}, 11\ns_add_u32 {dst}, {dst}, {tmp}")
    def segoff(dst, seg, tmp):
        a(f"s_and_b32 {tmp}, {seg}, 3\ns_lshl_b32 {tmp}, {tmp}, 9\ns_add_u32 {dst}, {dst}, {tmp}\ns_lshr_b32 {tmp}, {seg}, 2\ns_lshl_b32 {tmp}, {tmp}, 13\ns_add_u32 {dst}, {dst}, {tmp}\ns_xor_b32 {dst}, {dst}, s38")
    def rowclear(sidx, off):
        rowoff("s8", sidx, "s39")
        a(f"""
        s_add_u32 s8, s8, {off}
        v_lshl_add_u32 v{t0}, v{vL}, 4, s8
        v_add_u32 v{t2}, 8192, v{t0}
        s_mov_b32 exec_lo, 0xffffff
        s_mov_b32 exec_hi, 0xffffff
        global_store_dwordx4 v{t0}, {vr(Dq,4)}, s[40:41] sc1
        global_store_dwordx4 v{t0}, {vr(Dq,4)}, s[40:41] offset:1024 sc1
        global_store_dwordx4 v{t2}, {vr(Dq,4)}, s[40:41] sc1
        global_store_dwordx4 v{t2}, {vr(Dq,4)}, s[40:41] offset:1024 sc1
        s_mov_b64 exec, -1
        """)

    vL, vS, vE, vN, vG = 0, 1, 2, 3, 4
    t0, t1, t2, t3 = 6, 7, 8, 9
    pub = 10; msk = 14; Dq = 18; vWo = 5
    BIG = 22
    Y = BIG; WQ = BIG + 80; xd = BIG + 160; selE = BIG + 170; selO = BIG + 174
    BIGEND = BIG + 178
    if DEV or probe:
        for i in range(1, NST): a(f"s_mov_b32 s{80+2*i}, 0")
    stamp("start")
    a(f"""
    s_cmp_ge_u32 s2, 256
    s_cbranch_scc1 L_end
    s_load_dwordx16 s[16:31], s[0:1], 0
    s_load_dwordx2 s[40:41], s[0:1], 96
    s_load_dwordx8 s[32:39], s[0:1], 64
    v_lshrrev_b32 v1, 6, v0
    v_and_b32 v0, 63, v0
    v_readfirstlane_b32 s3, v1
    """)
    if not o.get("nocpf"):
        a(f"""
        s_cmp_lg_u32 s3, 3
        s_cbranch_scc1 L_nocpf
        s_cmp_ge_u32 s2, {opt("cpfn", 128)}
        s_cbranch_scc1 L_nocpf
        s_getpc_b64 s[42:43]
        v_lshlrev_b32 v{t0}, 6, v0
        v_add_u32 v{t1}, 8192, v{t0}
        global_load_dword v254, v{t0}, s[42:43]
        global_load_dword v255, v{t1}, s[42:43] offset:-4096
        global_load_dword v254, v{t1}, s[42:43]
        v_add_u32 v{t1}, 4096, v{t1}
        s_mov_b32 exec_hi, 0
        global_load_dword v255, v{t1}, s[42:43]
        s_mov_b32 exec_hi, -1
        L_nocpf:
        """)
    a(f"""
    s_and_b32 s4, s2, 7
    s_lshr_b32 s5, s2, 3
    v_and_b32 v3, 15, v0
    v_lshrrev_b32 v4, 4, v0
    v_lshrrev_b32 v1, 3, v0
    v_and_b32 v2, 7, v0
    v_mul_u32_u24 v{t0}, 40, v{vG}
    s_mul_i32 s8, s4, 160
    v_add_u32 v{t0}, s8, v{t0}
    v_mul_u32_u24 v{vWo}, {20*8192}, v{vG}
    v_lshl_add_u32 v{vWo}, v{vN}, 4, v{vWo}
    s_mul_i32 s8, s4, {80*8192}
    s_mov_b32 s9, s5                  ; q head
    s_lshl_b32 s10, s9, 8
    s_add_u32 s8, s8, s10
    s_mov_b32 s46, {SZ['wq']}
    s_mov_b32 s47, 0x20000
    s_lshr_b32 s68, s2, 6             ; 0,1: O  2: K  3: A
    s_cmp_eq_u32 s68, 2
    s_cselect_b32 s14, 2, 1
    s_cmp_ge_u32 s3, s14
    s_waitcnt lgkmcnt(0)
    s_mov_b32 s38, {EP_OFF}
    s_load_dwordx2 {TAG}, s[40:41], s38
    s_mov_b32 s38, 0
    s_cbranch_scc1 L_noP1a
    s_mov_b32 s44, s20
    s_mov_b32 s45, s21
    global_load_dwordx4 {vr(xd,4)}, v{t0}, s[16:17]
    global_load_dwordx4 {vr(xd+4,4)}, v{t0}, s[16:17] offset:16
    global_load_dwordx2 {vr(xd+8,2)}, v{t0}, s[16:17] offset:32
    s_cmp_lg_u32 s3, 0
    s_cbranch_scc1 L_nowq
    """)
    for u in range(20):
        a(f"buffer_load_dwordx4 {vr(WQ+4*u,4)}, v{vWo}, s[44:47], s8 offen{nt('wq')}\ns_add_u32 s8, s8, 8192")
    a(f"""
    L_nowq:
    {"s_waitcnt vmcnt(%d)" % opt("b1w", 0) if opt("b1w", 0) else ""}
    s_barrier
    L_noP1a:
    v_and_b32 v{t0}, 1, v{vL}
    v_lshlrev_b32 v{t0}, 4, v{t0}
    v_mov_b32 v{t1}, 0xffff
    v_lshlrev_b32 v{t0}, v{t0}, v{t1}
    v_lshrrev_b32 v{t1}, 1, v{vE}
    s_and_b32 s7, s5, 3               ; O: sub
    s_bfe_u32 s6, s5, 0x20002
    s_lshl_b32 s6, s6, 3
    s_add_u32 s6, s6, s4              ; O: h
    s_and_b32 s15, s3, 3              ; cw
    s_and_b32 s78, s5, 1
    s_bfe_u32 s79, s5, 0x20001
    s_lshl_b32 s79, s79, 3
    s_add_u32 s79, s79, s4            ; K: h  A: chunk
    s_and_b32 s69, s2, 63
    """)
    for r in range(4):
        a(f"v_cmp_eq_u32 vcc, {r}, v{t1}\nv_cndmask_b32 v{msk+r}, 0, v{t0}, vcc")
    def gettag():
        a(f"s_waitcnt lgkmcnt(0)\ns_add_u32 s70, s70, 1\ns_add_u32 s71, s71, 0x9e3779b9\nv_mov_b32 v{pub+2}, s70\nv_mov_b32 v{pub+3}, s71")
    def gemv20(waits, vaddr, off, both=False):
        for u in range(20):
            if waits is not None: a(f"s_waitcnt vmcnt({19-u+waits})")
            a(f"v_mfma_f32_16x16x32_bf16 {vr(Dq,4)}, {vr(Y+4*u,4)}, {vr(WQ+4*u,4)}, {'0' if u == 0 else vr(Dq,4)}")
        a(f"""
        v_cvt_pk_bf16_f32 v{pub}, v{Dq}, v{Dq+1}
        v_cvt_pk_bf16_f32 v{pub+1}, v{Dq+2}, v{Dq+3}
        {"" if both else "s_mov_b32 exec_hi, 0"}
        global_store_dwordx4 v{vaddr}, {vr(pub,4)}, s[40:41] offset:{off} sc1
        {"" if both else "s_mov_b32 exec_hi, -1"}
        """)
    a(f"""
    s_cmp_ge_u32 s3, s14
    s_cbranch_scc1 L_noP1b
    v_mov_b32 v{t2}, 0x0c0c0c0c
    s_mov_b32 s12, 0x01000100
    s_mov_b32 s13, 0x03020302
    """)
    for r in range(4):
        a(f"v_bfi_b32 v{selE+r}, v{msk+r}, s12, v{t2}\nv_bfi_b32 v{selO+r}, v{msk+r}, s13, v{t2}")
    a(f"""
    s_lshl_b32 s12, s9, 4
    s_add_u32 s12, s12, s4
    s_lshl_b32 s12, s12, 10
    v_and_b32 v{t3}, 31, v{vL}
    v_lshl_add_u32 v{t3}, v{t3}, 4, s12
    v_lshrrev_b32 v{t2}, 5, v{vL}
    v_lshl_add_u32 v{t3}, v{t2}, 13, v{t3}
    s_cmp_eq_u32 s3, 0
    s_cbranch_scc1 L_xw
    s_waitcnt vmcnt(0)
    L_xw:
    s_waitcnt vmcnt(20)
    """)
    def perm(u):
        for r in range(4):
            a(f"v_perm_b32 v{Y+4*u+r}, v{xd+u//2}, v{xd+u//2}, v{(selO if u & 1 else selE)+r}")
    if o.get("ilv"):
        LA = opt("la", 6)
        for u in range(LA): perm(u)
        for u in range(20):
            a(f"s_waitcnt vmcnt({19-u})")
            a(f"v_mfma_f32_16x16x32_bf16 {vr(Dq,4)}, {vr(Y+4*u,4)}, {vr(WQ+4*u,4)}, {'0' if u == 0 else vr(Dq,4)}")
            if u + LA < 20: perm(u + LA)
            if u + LA == 20: gettag()
        a(f"""
        s_cmp_lg_u32 s3, 0
        s_cbranch_scc1 L_noP1b
        v_cvt_pk_bf16_f32 v{pub}, v{Dq}, v{Dq+1}
        v_cvt_pk_bf16_f32 v{pub+1}, v{Dq+2}, v{Dq+3}
        s_mov_b32 exec_hi, 0
        global_store_dwordx4 v{t3}, {vr(pub,4)}, s[40:41] offset:{QP_OFF+512} sc1
        s_mov_b32 exec_hi, -1
        """)
    else:
        for u in range(20): perm(u)
        gettag()
        a("s_cmp_lg_u32 s3, 0\ns_cbranch_scc1 L_noP1b")
        gemv20(0, t3, QP_OFF + 512, True)
    if DEV: a("s_memrealtime s[82:83]")
    a(f"""
    L_noP1b:
    {"s_nop 7" if o.get("ilv") else ""}
    v_mov_b32 v{Dq}, -1
    v_mov_b32 v{Dq+1}, -1
    v_mov_b32 v{Dq+2}, -1
    v_mov_b32 v{Dq+3}, -1
    s_cmp_eq_u32 s68, 3
    s_cbranch_scc1 L_roleA
    s_cmp_match_placeholder
    """.replace("s_cmp_match_placeholder", "s_cmp_lt_u32 s68, 2\ns_cbranch_scc1 L_roleO"))
    role[0] = "K"
    WK = BIG; QPR = BIG + 64; qf = BIG + 80; D2 = BIG + 96; acc = BIG + 112; yI = BIG + 116; qp = BIG + 118
    V = VA(BIGEND)
    ba = V(5); vQs = V(2); vH = V(); vPF = V(); HR = V(4, 2); HP = V(8, 2); hs = V(4, 2)
    A2 = WQ; FO = WQ + 20
    QL, WKL, VL = 0, 1024, 66560
    a(f"""
    s_lshr_b32 s8, s79, 2
    s_lshl_b32 s8, s8, 14
    s_and_b32 s13, s79, 3
    s_lshl_b32 s13, s13, 11
    s_add_u32 s8, s8, s13
    s_lshl_b32 s13, s78, 10
    s_add_u32 s12, s8, s13
    s_add_u32 s12, s12, {QA_OFF + 512}
    s_cmp_ge_u32 s3, 4
    s_cbranch_scc1 L_kK
    s_cmp_lt_u32 s3, 2
    s_cbranch_scc1 L_kH1
    s_cmp_lg_u32 s3, 3
    s_cbranch_scc1 L_kH2
    v_and_b32 v{t1}, 31, v{vL}
    v_lshl_add_u32 v{t1}, v{t1}, 4, s12
    v_lshrrev_b32 v{t2}, 5, v{vL}
    v_lshl_add_u32 v{t1}, v{t2}, 13, v{t1}
    """)
    for j in range(4): a(f"global_store_dwordx4 v{t1}, {vr(Dq,4)}, s[40:41] sc1\nv_add_u32 v{t1}, 0x20000, v{t1}")
    rowclear("s69", PF_OFF)
    a("s_branch L_kH0\nL_kH2:")
    def kclear():
        a(f"""
        s_lshl_b32 s8, s69, 15
        s_add_u32 s8, s8, {PB_OFF + 512}
        v_lshl_add_u32 v{t1}, v{vL}, 4, s8
        v_lshrrev_b32 v{t2}, 5, v{vL}
        v_lshl_add_u32 v{t1}, v{t2}, 9, v{t1}
        """)
        for j in range(8): a(f"global_store_dwordx4 v{t1}, {vr(Dq,4)}, s[40:41] sc1\nglobal_store_dwordx4 v{t1}, {vr(Dq,4)}, s[40:41] offset:2048 sc1\nv_add_u32 v{t1}, 4096, v{t1}")
    if opt("clr", 1) == 4: kclear()
    a("L_kH0:\ns_barrier")
    if opt("clr", 1) == 5:
        a("s_cmp_lg_u32 s3, 2\ns_cbranch_scc1 L_kH3")
        kclear()
        a("L_kH3:")
    gettag()
    a(f"""
    s_and_b32 s13, s3, 1
    s_lshl_b32 s8, s13, 13
    s_add_u32 s12, s12, s8
    s_lshl_b32 s13, s13, 2
    s_add_u32 s13, s13, {VL}
    v_mov_b32 v{t0}, s13
    s_memtime s[24:25]
    s_waitcnt lgkmcnt(0)
    s_load_dword s22, s[40:41], s12 glc
    s_waitcnt lgkmcnt(0)
    s_memtime s[26:27]
    s_waitcnt lgkmcnt(0)
    s_sub_u32 s22, s26, s24
    v_mov_b32 v{t1}, s22
    ds_write_b32 v{t0}, v{t1}
    """)
    stamp("m1")
    a(f"""
    s_waitcnt vmcnt(0) lgkmcnt(0)
    s_cmp_lg_u32 s3, 3
    s_cbranch_scc1 L_kH1
    s_barrier
    v_mov_b32 v{t0}, {VL}
    ds_read_b64 v[{t2}:{t3}], v{t0}
    s_lshl_b32 s8, s69, 4
    s_add_u32 s8, s8, {FK_OFF}
    v_mov_b32 v{t0}, s8
    s_lshr_b32 s21, s4, 2
    s_waitcnt lgkmcnt(0)
    v_cmp_gt_u32 vcc, v{t2}, v{t3}
    v_cndmask_b32 v{pub}, 0, 1, vcc
    v_xor_b32 v{pub}, s21, v{pub}
    s_mov_b64 exec, 1
    global_store_dwordx4 v{t0}, {vr(pub,4)}, s[40:41] sc1
    s_mov_b64 exec, -1
    s_branch L_kJ
    """)
    a(f"""
    L_kH1:
    s_barrier
    s_branch L_kJ
    L_kK:
    """)
    srd(48, 22, SZ['wuk'])
    a(f"""
    v_xor_b32 v{t0}, v{vN}, v{vG}
    v_lshlrev_b32 v{t1}, 15, v{vG}
    v_lshl_add_u32 v{ba}, v{t0}, 4, v{t1}
    v_xor_b32 v{ba+1}, 64, v{ba}
    v_xor_b32 v{ba+2}, 128, v{ba}
    v_xor_b32 v{ba+3}, 192, v{ba}
    s_lshl_b32 s10, s78, 21
    s_lshl_b32 s11, s15, 19
    s_add_u32 s10, s10, s11
    s_lshl_b32 s11, s79, 8
    s_add_u32 s10, s10, s11
    s_lshl_b32 s11, s15, 14
    s_add_u32 s11, s11, {WKL}
    s_barrier
    """)
    EK = opt("ek", 8)
    def wuk_ld(j):
        step = 16*8192 if (j & 3) != 3 else (1 - 48) * 8192
        a(f"s_mov_b32 m0, s11\ns_add_u32 s11, s11, 1024\nbuffer_load_dwordx4 v{ba+(j&3)}, s[48:51], s10 offen{nt('wuk')} lds\ns_add_u32 s10, s10, {hex(step & 0xffffffff)}")
    for j in range(EK): wuk_ld(j)
    gettag()
    a(f"""
    s_lshl_b32 s13, s15, 7
    s_add_u32 s8, s12, s13
    v_lshl_add_u32 v{vQs}, v{vN}, 3, s8
    v_lshl_add_u32 v{vQs}, v{vG}, 17, v{vQs}
    v_add_u32 v{vQs+1}, 0x2000, v{vQs}
    v_and_b32 v{acc}, 1, v{vG}
    v_cmp_eq_u32 vcc, 1, v{acc}
    v_cndmask_b32 v{yI}, v{msk}, v{msk+2}, vcc
    v_cndmask_b32 v{yI+1}, v{msk+1}, v{msk+3}, vcc
    v_and_b32 v{yI}, 0x3f803f80, v{yI}
    v_and_b32 v{yI+1}, 0x3f803f80, v{yI+1}
    s_lshl_b32 s8, s15, 8
    v_lshl_add_u32 v{acc+1}, v{vN}, 4, s8
    v_lshl_add_u32 v{acc+1}, v{vG}, 3, v{acc+1}
    v_lshl_add_u32 v{acc+2}, v{vG}, 4, s8
    s_lshl_b32 s8, s15, 14
    s_add_u32 s8, s8, {WKL}
    v_xor_b32 v{t0}, v{vN}, v{vG}
    v_lshl_add_u32 v{t1}, v{vN}, 8, s8
    v_lshl_add_u32 v{t0}, v{t0}, 4, v{t1}
    v_xor_b32 v{t1}, 64, v{t0}
    v_xor_b32 v{t2}, 128, v{t0}
    v_xor_b32 v{t3}, 192, v{t0}
    s_lshl_b32 s8, s79, 14
    s_add_u32 s8, s8, {QP_OFF + 4096 + 512}
    v_lshl_add_u32 v{acc}, v{vL}, 4, s8
    v_lshrrev_b32 v{acc+3}, 5, v{vL}
    v_lshl_add_u32 v{acc}, v{acc+3}, 9, v{acc}
    s_mov_b32 s13, 0
    s_barrier
    """)
    a(f"v_mov_b32 v{qf}, {VL}\nds_read_b64 {vr(qf,2)}, v{qf}")
    for j in range(EK, 16): wuk_ld(j)
    a(f"s_waitcnt lgkmcnt(0)\nv_cmp_gt_u32 vcc, v{qf}, v{qf+1}\nv_add_u32 v{qf}, 0x2000, v{acc}\nv_cndmask_b32 v{acc}, v{acc}, v{qf}, vcc")
    qpl = [f"global_load_dwordx4 {vr(QPR+4*j,4)}, v{acc}, s[40:41] offset:{2048*j-4096} sc1" for j in range(4)]
    QAT = opt("qat", 3)
    for tau in range(4):
        if tau == QAT:
            for l in qpl: a(l)
        a(f"s_waitcnt vmcnt({12-4*tau+(4 if tau >= QAT else 0)}) lgkmcnt(8)")
        for ks in range(4): a(f"ds_read_b128 {vr(WK+16*tau+4*ks,4)}, v{[t0,t1,t2,t3][ks]} offset:{4096*tau}")
    if QAT == 4:
        for l in qpl: a(l)
    stamp("wuk")
    a("s_branch L_qpc\nL_qpp:")
    masked(qpl)
    a("L_qpc:\ns_add_u32 s13, s13, 1\ns_waitcnt vmcnt(0)")
    for j in range(4):
        a(f"v_mfma_f32_16x16x16_bf16 {vr(Dq,4)}, {vr(yI,2)}, {vr(QPR+4*j,2)}, {'0' if j == 0 else vr(Dq,4)}")
        a(f"v_cmp_ne_u64 {MK[j]}, {TAG}, {vr(QPR+4*j+2,2)}")
    or_masks(4)
    spin_tail("L_qpp", "L_qpo")
    stamp("qp")
    a(f"""
    v_cvt_pk_bf16_f32 v{Dq}, v{Dq}, v{Dq+1}
    v_cvt_pk_bf16_f32 v{Dq+1}, v{Dq+2}, v{Dq+3}
    s_mov_b32 exec_hi, 0
    ds_write_b64 v{acc+1}, {vr(Dq,2)}
    s_mov_b32 exec_hi, -1
    s_mov_b32 s13, {hex(f2u(128**-0.5 * math.log2(math.e)))}
    s_waitcnt lgkmcnt(0)
    """)
    for ks in range(4): a(f"ds_read_b128 {vr(qf+4*ks,4)}, v{acc+2} offset:{64*ks}")
    for ks in range(4):
        a(f"s_waitcnt lgkmcnt({3-ks})")
        for tau in range(4):
            a(f"v_mfma_f32_16x16x32_bf16 {vr(D2+4*tau,4)}, {vr(qf+4*ks,4)}, {vr(WK+16*tau+4*ks,4)}, {'0' if ks == 0 else vr(D2+4*tau,4)}")
    for tau in range(4): a(f"v_mul_f32 v{D2+4*tau}, s13, v{D2+4*tau}")
    a(f"""
    v_cvt_pk_bf16_f32 v{qp}, v{D2}, v{D2+4}
    v_cvt_pk_bf16_f32 v{qp+1}, v{D2+8}, v{D2+12}
    global_store_dwordx2 v{vQs}, {vr(qp,2)}, s[40:41] sc1
    global_store_dwordx2 v{vQs+1}, {vr(qp,2)}, s[40:41] sc1
    """)
    stamp("qa")
    if o.get("qack"): a("s_waitcnt vmcnt(0)")
    a("L_kJ:")
    srd(60, 30, SZ['w1']); srd(52, 32, SZ['w2'])
    a(f"s_and_b32 s13, s3, 1\ns_lshl_b32 s13, s13, 3")
    swz1280(ba, 5, "s13")
    a(f"""
    s_mul_i32 s42, s69, {32*1280}
    s_mul_i32 s43, s3, 5120
    s_add_u32 s42, s42, s43
    s_add_u32 s43, s43, {WKL}
    v_mul_u32_u24 v{vWo}, {20*3456}, v{vG}
    v_lshl_add_u32 v{vWo}, v{vN}, 4, v{vWo}
    s_and_b32 s9, s5, 7
    s_lshl_b32 s9, s9, 1
    s_add_u32 s9, s9, s3
    s_mul_i32 s14, s4, {80*3456}
    s_lshl_b32 s8, s9, 8
    s_add_u32 s14, s14, s8
    s_lshl_b32 s9, s9, 3
    s_add_u32 s9, s9, s4
    s_lshl_b32 s9, s9, 10
    s_add_u32 s9, s9, {HP_OFF + 512}
    v_lshl_add_u32 v{vH}, v{vL}, 4, s9
    s_barrier
    s_cmp_ge_u32 s69, 56
    s_cbranch_scc1 L_fin
    s_cmp_ge_u32 s3, 2
    s_cbranch_scc1 L_now1
    """)
    FT = opt("ft", 0); FTN = opt("ftn", 20)
    for u in range(20):
        a(f"buffer_load_dwordx4 {vr(WQ+4*u,4)}, v{vWo}, s[60:63], s14 offen{nt('w1')}\ns_add_u32 s14, s14, 3456")
        if FT and FT - 1 <= u < FTN: a(f"s_waitcnt vmcnt({FT-1})")
    a("L_now1:\ns_barrier\ns_cmp_ge_u32 s3, 2\ns_cbranch_scc1 L_now1b\ns_setprio 3")
    gemv20(0, vH, 0)
    stamp("hp")
    a("s_setprio 0\ns_branch L_w2d\nL_now1b:\ns_mov_b32 s8, s3\nL_w2l:")
    for j in range(5):
        a(f"s_mov_b32 m0, s43\ns_add_u32 s43, s43, 1024\nbuffer_load_dwordx4 v{ba+j}, s[52:55], s42 offen{nt('w2')} lds")
    a(f"""
    s_cmp_ge_u32 s8, 4
    s_cbranch_scc1 L_w2d
    s_mov_b32 s8, 4
    s_sub_u32 s42, s42, 10240
    s_sub_u32 s43, s43, 15360
    s_branch L_w2l
    L_w2d:
    """)
    vt_issue(vQs, HP)
    tr1280(ba, WKL)
    rowmasks()
    a(f"""
    s_lshr_b32 s8, s69, 2
    s_lshl_b32 s8, s8, 13
    s_and_b32 s9, s69, 3
    s_lshl_b32 s9, s9, 6
    s_add_u32 s8, s8, s9
    s_add_u32 s8, s8, {HP_OFF + 512}
    v_lshl_add_u32 v{vH}, v{vE}, 10, s8
    v_and_b32 v{t1}, 1, v{vG}
    v_lshl_add_u32 v{vH}, v{t1}, 8, v{vH}
    v_lshrrev_b32 v{t1}, 1, v{vG}
    v_lshl_add_u32 v{vH}, v{t1}, 4, v{vH}
    v_and_b32 v{t1}, 1, v{vS}
    v_lshl_add_u32 v{vH}, v{t1}, 5, v{vH}
    """)
    rowoff("s8", "s69", "s9"); segoff("s8", "s3", "s9")
    a(f"""
    s_add_u32 s8, s8, {PF_OFF}
    v_lshl_add_u32 v{vPF}, v{vL}, 2, s8
    {"s_cmp_lt_u32 s3, 2" + chr(10) + "s_cbranch_scc1 L_nack" if o.get("nack") else ""}
    s_waitcnt vmcnt(0)
    """)
    vt_finish(vQs, HP, "L_vk", [vPF])
    a(f"""
    s_barrier
    s_cmp_ge_u32 s69, 54
    s_cbranch_scc1 L_fin
    global_load_dwordx4 {vr(HR,4)}, v{vH}, s[40:41] sc1
    """)
    for T in range(5):
        for aa in range(2): a(f"ds_read_b64_tr_b16 {vr(A2+4*T+2*aa,2)}, v{ba+T} offset:{aa*20480}")
    a(f"""
    s_mov_b32 s13, 0
    s_branch L_hpc
    L_hpp:
    s_mov_b64 exec, vcc
    global_load_dwordx4 {vr(HR,4)}, v{vH}, s[40:41] sc1
    s_mov_b64 exec, -1
    L_hpc:
    s_add_u32 s13, s13, 1
    s_waitcnt vmcnt(0)
    """)
    tagcheck(HR+2)
    spin_tail("L_hpp", "L_hpo")
    a(f"""
    v_lshlrev_b32 v{HP}, 16, v{HR}
    v_and_b32 v{HP+1}, 0xffff0000, v{HR}
    v_lshlrev_b32 v{HP+2}, 16, v{HR+1}
    v_and_b32 v{HP+3}, 0xffff0000, v{HR+1}
    """)
    for d in ("quad_perm:[1,0,3,2]", "quad_perm:[2,3,0,1]", "row_half_mirror"):
        for r in range(4): a(f"v_add_f32_dpp v{HP+r}, v{HP+r}, v{HP+r} {d} {DPPM}")
    for r in range(4): a(f"v_mul_f32 v{HP+4+r}, {NLOG2E}, v{HP+r}")
    for r in range(4): a(f"v_exp_f32 v{HP+4+r}, v{HP+4+r}")
    for r in range(4): a(f"v_add_f32 v{HP+4+r}, 1.0, v{HP+4+r}")
    for r in range(4): a(f"v_rcp_f32 v{HP+4+r}, v{HP+4+r}")
    for r in range(4): a(f"v_mul_f32 v{HP+r}, v{HP+r}, v{HP+4+r}")
    a(f"""
    v_cvt_pk_bf16_f32 v{hs}, v{HP}, v{HP+1}
    v_cvt_pk_bf16_f32 v{hs+1}, v{HP+2}, v{HP+3}
    v_mov_b32 v{hs+2}, v{hs}
    v_mov_b32 v{hs+3}, v{hs+1}
    v_mov_b32_dpp v{hs}, v{hs} row_ror:8 row_mask:0xf bank_mask:0xc
    v_mov_b32_dpp v{hs+1}, v{hs+1} row_ror:8 row_mask:0xf bank_mask:0xc
    v_mov_b32_dpp v{hs+2}, v{hs+2} row_ror:8 row_mask:0xf bank_mask:0x3
    v_mov_b32_dpp v{hs+3}, v{hs+3} row_ror:8 row_mask:0xf bank_mask:0x3
    s_waitcnt lgkmcnt(0)
    """)
    for T in range(5): a(f"v_mfma_f32_16x16x32_bf16 {vr(FO+4*T,4)}, {vr(hs,4)}, {vr(A2+4*T,4)}, 0")
    rowstore(FO, vPF)
    stamp("pf")
    a("s_branch L_fin")
    k_v = V.n
    role[0] = "O"
    V = VA(BIG)
    AO = V(40, 2); AUV = V(32, 2); YW = V(8, 2); PBR = V(8, 2); OUT = V(20, 2); D2 = V(16, 2)
    acc = V(4, 2); ml = V(4, 2); qp = V(8, 2); cf = V(8, 2)
    oW = V(5); ones = V(2, 2)
    vML, vPB, vCW, vCR, vCT, vPC, vMS, vFA, vSc, vM2, vMR = [V() for _ in range(11)]; vUo = V(2)
    MLS, SCL, CP, CC, WUVL, WOL = 0, 1024, 2048, 4096, 8192, 40960
    a(f"""
    L_roleO:
    s_cmp_lg_u32 s3, 2
    s_cbranch_scc1 L_o1
    """)
    rowclear("s2", PC_OFF)
    a("L_o1:")
    srd(52, 24, SZ['wuv']); srd(56, 26, SZ['wo'])
    a(f"""
    s_lshr_b32 s13, s7, 1             ; ch
    s_and_b32 s10, s3, 1
    s_lshl_b32 s10, s10, 2
    v_xor_b32 v{t0}, s10, v{vE}
    v_and_b32 v{t1}, 4, v{vS}
    v_and_b32 v{t2}, 1, v{vS}
    v_lshl_add_u32 v{t1}, v{t2}, 1, v{t1}
    v_bfe_u32 v{t2}, v{vS}, 1, 1
    v_add_u32 v{t1}, v{t1}, v{t2}
    v_lshlrev_b32 v{vUo}, 13, v{t1}
    v_lshl_add_u32 v{vUo}, v{t0}, 4, v{vUo}
    v_xor_b32 v{vUo+1}, 32, v{vUo}
    s_lshl_b32 s10, s13, 21
    s_lshl_b32 s11, s3, 18
    s_add_u32 s10, s10, s11
    s_lshl_b32 s11, s6, 8
    s_add_u32 s10, s10, s11
    s_and_b32 s11, s7, 1
    s_lshl_b32 s11, s11, 7
    s_add_u32 s10, s10, s11
    s_lshl_b32 s11, s3, 12
    s_add_u32 s11, s11, {WUVL}
    s_cmp_eq_u32 s3, 0
    s_cbranch_scc1 L_o2
    s_barrier
    L_o2:
    """)
    EO = opt("eo", 0)
    def wuv_load(j):
        a(f"s_mov_b32 m0, s11\ns_add_u32 s11, s11, 1024\nbuffer_load_dwordx4 v{vUo+(j>>1)}, s[52:55], s10 offen{nt('wuv')} lds\ns_add_u32 s10, s10, 65536")
    if o.get("opk"):
        a(f"""
        s_cmp_lt_u32 s3, 4
        s_cbranch_scc1 L_nopk
        v_lshrrev_b32 v{t0}, 2, v{vL}
        v_and_b32 v{t1}, 1, v{t0}
        v_lshl_add_u32 v{t1}, v{vS}, 2, v{t1}
        v_and_b32 v{t2}, 3, v{vL}
        v_lshlrev_b32 v{t2}, 6, v{t2}
        v_lshl_add_u32 v{t1}, v{t1}, 13, v{t2}
        s_lshl_b32 s12, s7, 20
        s_lshl_b32 s8, s15, 18
        s_add_u32 s12, s12, s8
        s_lshl_b32 s8, s6, 8
        s_add_u32 s12, s12, s8
        s_add_u32 s12, s12, {8192 if o.get("tord") else 16384}
        v_add_u32 v{t1}, s12, v{t1}
        global_load_dword v254, v{t1}, s[22:23]{nt('pk')}
        """)
        if o.get("opk2"):
            a(f"v_add_u32 v{t1}, {8192 if o.get('tord') else (-16384) & 0xffffffff}, v{t1}\ns_mov_b32 exec_lo, 0xf0f0f0f0\ns_mov_b32 exec_hi, 0xf0f0f0f0\nglobal_load_dword v254, v{t1}, s[22:23]{nt('pk')}\ns_mov_b64 exec, -1")
        if o.get("opc"):
            a(f"""
            s_lshl_b32 s8, s6, 17
            s_lshl_b32 s12, s7, 15
            s_add_u32 s8, s8, s12
            s_lshl_b32 s12, s15, 13
            s_add_u32 s8, s8, s12
            s_add_u32 s8, s8, 4096
            v_lshl_add_u32 v{t0}, v{vL}, 6, s8
            global_load_dword v254, v{t0}, s[18:19]{nt('pc')}
            """)
        a("L_nopk:")
    for j in range(EO): wuv_load(j)
    a("s_cmp_eq_u32 s3, 0\ns_cbranch_scc1 L_o3")
    gettag()
    a("L_o3:")
    if o.get("bback"): a("s_cmp_lg_u32 s3, 0\ns_cbranch_scc1 L_o2b\ns_waitcnt vmcnt(0)\nL_o2b:")
    a(f"s_and_b32 s8, s3, 1\ns_lshl_b32 s8, s8, 3")
    swz1280(oW, 5, "s8")
    a(f"""
    s_and_b32 s12, s7, 1
    s_lshl_b32 s8, s6, 1
    s_add_u32 s12, s12, s8
    s_mul_i32 s12, s12, {64*1280}
    s_mul_i32 s14, s13, 40960
    s_mul_i32 s9, s3, 5120
    s_add_u32 s14, s14, s9
    s_add_u32 s12, s12, s14
    s_add_u32 s14, s14, {WOL}
    s_mul_i32 s9, s13, 81920
    s_sub_u32 s9, 40960, s9
    s_barrier
    """)
    OPF = opt("opf", 0)
    if OPF:
        a(f"""
        s_cmp_ge_u32 s3, {OPF}
        s_cbranch_scc1 L_nopf
        s_lshl_b32 s8, s6, 17
        s_lshl_b32 s42, s7, 15
        s_add_u32 s8, s8, s42
        s_and_b32 s42, s3, 3
        s_lshl_b32 s42, s42, 13
        s_add_u32 s8, s8, s42
        s_lshr_b32 s42, s3, 2
        s_lshl_b32 s42, s42, 12
        s_sub_u32 s8, s8, s42
        s_add_u32 s8, s8, 4096
        v_lshl_add_u32 v{t0}, v{vL}, 6, s8
        global_load_dword v254, v{t0}, s[18:19]{nt('pc')}
        L_nopf:
        """)
    TH = opt("th", 0); THN = opt("thn", 9)
    def wo_load(j, k='wo'):
        a(f"s_mov_b32 m0, s14\ns_add_u32 s14, s14, 1024\nbuffer_load_dwordx4 v{oW+j}, s[56:59], s12 offen{nt(k)} lds")
    cold = [lambda j=j: wuv_load(j) for j in range(EO, 4)] + [lambda j=j: wo_load(j) for j in range(5)]
    for n_, f in enumerate(cold):
        f()
        if TH and n_ < THN: a(f"s_waitcnt vmcnt({TH-1})")
    a(f"s_add_u32 s12, s12, s9\ns_add_u32 s14, s14, s9\ns_sub_u32 s14, s14, 5120")
    for j in range(5): wo_load(j, 'wo2')
    vt_issue(vSc, PBR)
    a(f"""
    s_lshr_b32 s8, s6, 4
    s_lshl_b32 s8, s8, 15
    s_and_b32 s42, s6, 15
    s_lshl_b32 s42, s42, 4
    s_add_u32 s8, s8, s42
    s_add_u32 s8, s8, {ML_OFF + 512}
    s_lshr_b32 s42, s3, 2             ; hh
    s_lshl_b32 s43, s42, 1
    v_and_b32 v{t0}, 3, v{vL}
    v_xor_b32 v{t0}, s43, v{t0}
    v_lshl_add_u32 v{t0}, v{vS}, 2, v{t0}
    v_lshl_add_u32 v{vML}, v{t0}, 10, s8
    s_lshr_b32 s8, s6, 4
    s_lshl_b32 s8, s8, 16
    s_and_b32 s43, s4, 3
    s_lshl_b32 s43, s43, 8
    s_add_u32 s8, s8, s43
    s_lshr_b32 s43, s4, 2
    s_lshl_b32 s43, s43, 13
    s_add_u32 s8, s8, s43
    s_xor_b32 s8, s8, s38
    s_bfe_u32 s43, s6, 0x10003
    s_lshl_b32 s43, s43, 4
    s_add_u32 s8, s8, s43
    s_add_u32 s8, s8, {MR_OFF}
    v_and_b32 v{t1}, 7, v{t0}
    v_lshl_add_u32 v{vMR}, v{t1}, 10, s8
    v_lshl_add_u32 v{vMR}, v{vG}, 14, v{vMR}
    s_lshl_b32 s43, s42, 3
    v_lshlrev_b32 v{vM2}, 2, v{vL}
    v_xor_b32 v{vM2}, s43, v{vM2}
    s_lshr_b32 s8, s6, 3
    s_lshl_b32 s8, s8, 2
    s_and_b32 s43, s6, 3
    s_add_u32 s8, s8, s43
    s_lshl_b32 s8, s8, 17
    s_lshr_b32 s43, s4, 2
    s_lshl_b32 s43, s43, 13
    s_add_u32 s8, s8, s43
    s_xor_b32 s8, s8, s38
    s_xor_b32 s8, s8, 0x2000
    s_lshl_b32 s43, s13, 10
    s_add_u32 s8, s8, s43
    s_lshl_b32 s43, s15, 7
    s_add_u32 s8, s8, s43
    s_lshl_b32 s43, s42, 12
    s_add_u32 s8, s8, s43
    s_add_u32 s8, s8, {PB_OFF + 512}
    v_lshl_add_u32 v{vPB}, v{vS}, 14, s8
    v_lshl_add_u32 v{vPB}, v{vE}, 4, v{vPB}
    s_lshl_b32 s8, s15, 9
    s_add_u32 s8, s8, {CC}
    s_lshl_b32 s43, s42, 8
    s_add_u32 s43, s43, s8
    v_lshrrev_b32 v{t2}, 1, v{vG}
    v_lshl_add_u32 v{vCW}, v{t2}, 7, s43
    v_lshl_add_u32 v{vCW}, v{vE}, 4, v{vCW}
    v_lshlrev_b32 v{t0}, 9, v{t2}             ; 4*(g>>1) rows
    v_and_b32 v{t2}, 1, v{vG}
    v_lshl_add_u32 v{vCW}, v{t2}, 3, v{vCW}
    v_lshl_add_u32 v{t0}, v{t2}, 7, v{t0}     ; + (g&1) rows
    v_and_b32 v{t2}, 3, v{vL}
    v_lshl_add_u32 v{vCR}, v{t2}, 7, s8
    v_lshl_add_u32 v{vCR}, v{vG}, 4, v{vCR}
    s_lshl_b32 s8, s15, 2
    v_add_u32 v{t2}, s8, v{t2}                ; p = 4u + j
    v_lshrrev_b32 v{t1}, 1, v{t2}
    s_lshl_b32 s8, s42, 2
    v_xor_b32 v{t1}, s8, v{t1}
    v_xor_b32 v{t1}, v{t1}, v{vG}
    v_lshlrev_b32 v{vCT}, 7, v{t2}
    v_lshl_add_u32 v{vCT}, v{t1}, 4, v{vCT}
    v_lshrrev_b32 v{t1}, 1, v{vN}
    v_xor_b32 v{t1}, v{t1}, v{vG}
    v_lshlrev_b32 v{vMS}, 7, v{vN}
    v_lshl_add_u32 v{vMS}, v{t1}, 4, v{vMS}
    v_xor_b32 v{ones}, 64, v{vMS}
    s_lshl_b32 s64, s42, 1
    """)
    rowoff("s8", "s2", "s42"); segoff("s8", "s3", "s42")
    a(f"""
    s_add_u32 s8, s8, {PC_OFF}
    v_lshl_add_u32 v{vPC}, v{vL}, 2, s8
    v_bfe_u32 v{acc}, v{vL}, 2, 2             ; r
    v_lshl_add_u32 v{t0}, v{acc}, 11, v{t0}
    v_and_b32 v{t2}, 3, v{vL}
    v_lshl_add_u32 v{t0}, v{t2}, 3, v{t0}
    s_lshl_b32 s8, s15, 13
    s_add_u32 s8, s8, {WUVL}
    v_add_u32 v{t0}, s8, v{t0}
    """)
    a(f"v_xor_b32 v{acc}, s64, v{acc}")
    for Td in range(2):
        a(f"v_xor_b32 v{t2}, {Td}, v{acc}\nv_lshl_add_u32 v{cf+Td}, v{t2}, 5, v{t0}")
    tr1280(oW, WOL)
    rowmasks()
    a(f"""
    s_lshl_b32 s8, s2, 8
    s_add_u32 s8, s8, {FO_OFF}
    """)
    LW = opt("lw", 7)
    FOA = f"s_lshr_b32 s8, s2, 5\ns_lshl_b32 s8, s8, 14\ns_and_b32 s43, s2, 31\ns_lshl_b32 s43, s43, 8\ns_add_u32 s8, s8, s43\ns_add_u32 s8, s8, {FR_OFF}\nv_lshl_add_u32 v{vFA}, v{vE}, 4, s8\nv_and_b32 v{t0}, 3, v{vS}\nv_lshl_add_u32 v{vFA}, v{t0}, 16, v{vFA}\nv_lshrrev_b32 v{t0}, 5, v{vL}\nv_lshl_add_u32 v{vFA}, v{t0}, 13, v{vFA}"
    FOE = f"s_mov_b64 exec, 1\nglobal_store_dwordx2 v{vFA}, {vr(pub+2,2)}, s[40:41] sc1\ns_mov_b64 exec, -1\ns_mov_b32 s42, 0" if opt("fop", 0) == 2 else ""
    a("s_waitcnt vmcnt(0)")
    vt_finish(vSc, PBR, "L_vo", [vPB, vPC, vMR])
    def opreads():
        for ks in range(2):
            for Td in range(2):
                for aa in range(2):
                    a(f"ds_read_b64_tr_b16 {vr(AUV+8*ks+4*Td+2*aa,2)}, v{cf+Td} offset:{(8*ks+2*aa)*128}")
            a("s_waitcnt lgkmcnt(5)")
        for T in range(5):
            for ks in range(2):
                for aa in range(2):
                    a(f"ds_read_b64_tr_b16 {vr(AO+8*T+4*ks+2*aa,2)}, v{oW+T} offset:{(2*ks+aa)*20480}")
            if T in (1, 3): a("s_waitcnt lgkmcnt(5)")
    if o.get("unm"):
        a("s_barrier")
        opreads()
    a(f"""
    {FOA}
    s_cmp_eq_u32 s3, {LW}
    s_cselect_b64 s[44:45], -1, 0
    s_cmp_eq_u32 s3, 0
    {"s_cselect_b64 s[42:43], -1, 0" if o.get("repf") else "s_cselect_b32 s42, 0xffff, 0" + chr(10) + "s_mov_b32 s43, 0"}
    s_cbranch_scc0 L_gow
    s_mov_b32 s13, 0
    s_mov_b64 vcc, -1
    s_waitcnt vmcnt(0)
    """)
    if o.get("pp"):
        NP = opt("np", 2)
        sets = [ml, D2, D2+4, D2+8][:NP]
        if o.get("half"): a("s_mov_b32 exec_lo, 0x0f0f0f0f\ns_mov_b32 exec_hi, 0x0f0f0f0f")
        for k in range(NP-1): a(f"global_load_dwordx4 {vr(sets[k],4)}, v{vML}, s[40:41] sc1")
        a("L_gop:")
        for k in range(NP):
            a(f"global_load_dwordx4 {vr(sets[(k+NP-1)%NP],4)}, v{vML}, s[40:41] sc1")
            a(f"s_waitcnt vmcnt({NP-1})")
            tagcheck(sets[k]+2)
            a(f"v_mov_b32 v{t3}, v{sets[k]}\ns_cbranch_vccz L_goo")
        a(f"s_add_u32 s13, s13, 1\ns_cmp_lt_u32 s13, {SPIN}\ns_cbranch_scc1 L_gop\nL_goo:")
        a(f"ds_write_b32 v{vM2}, v{t3} offset:{MLS}")
        if o.get("half"): a(f"ds_write_b32 v{vM2}, v{t3} offset:{MLS+16}\ns_mov_b64 exec, -1")
        a("s_branch L_gox")
    else:
        a(f"""
        L_gop:
        s_mov_b64 exec, vcc
        global_load_dwordx4 {vr(ml,4)}, v{vMR if o.get("repm") else vML}, s[40:41] sc1
        s_mov_b64 exec, -1
        s_add_u32 s13, s13, 1
        s_waitcnt vmcnt(0)
        """)
        tagcheck(ml+2)
        spin_tail("L_gop", "L_goo")
    a(f"""
    ds_write_b32 v{vM2}, v{ml} offset:{MLS}
    L_gow:
    s_waitcnt vmcnt(0)
    L_gox:
    """)
    stamp("wo")
    a("s_waitcnt lgkmcnt(0)\ns_barrier")
    stamp("go")
    FO1 = 0
    pbl = [f"global_load_dwordx4 {vr(PBR+4*u,4)}, v{vPB}, s[40:41] offset:{2048*u} sc1" for u in range(2)]
    lrl = f"global_load_dwordx4 {vr(ml,4)}, v{vML}, s[40:41] offset:256 sc1"
    fost = f"s_mov_b64 exec, s[42:43]\nglobal_store_dwordx2 v{vFA}, {vr(pub+2,2)}, s[40:41] sc1\ns_mov_b64 exec, -1"
    if o.get("repf"): fost = f"s_mov_b64 exec, s[42:43]\nglobal_store_dwordx4 v{vFA}, {vr(pub,4)}, s[40:41] sc1\ns_mov_b64 exec, -1"
    for l in pbl: a(l)
    a(f"ds_read_b32 v{t3}, v{vM2} offset:{MLS}")
    a(f"s_mov_b64 exec, s[44:45]\n{lrl}")
    if FO1: a(fost)
    else: a("s_mov_b64 exec, -1")
    a("s_waitcnt lgkmcnt(0)")
    red32("v_max_f32", t0, t3, t1)
    a(f"""
    v_sub_f32 v{t3}, v{t3}, v{t0}
    v_exp_f32 v{t3}, v{t3}
    s_mov_b32 s13, 0
    v_cvt_pk_bf16_f32 v{t2}, v{t3}, v{t3}
    """)
    for u in range(2):
        for r in range(4):
            a(f"v_and_b32_dpp v{YW+4*u+r}, v{t2}, v{msk+r} quad_perm:[{u},{u},{u},{u}] {DPPM}")
    if not o.get('unm'): opreads()
    a(f"s_waitcnt vmcnt({1+FO1})\ns_branch L_pbc\nL_pbp:")
    masked(pbl)
    a("s_waitcnt vmcnt(0)\nL_pbc:\ns_add_u32 s13, s13, 1")
    for u in range(2):
        a(f"v_mfma_f32_16x16x32_bf16 {vr(Dq,4)}, {vr(YW+4*u,4)}, {vr(PBR+4*u,4)}, {'0' if u == 0 else vr(Dq,4)}")
        sent_mask(u, PBR+4*u, t2)
    or_masks(2)
    spin_tail("L_pbp", "L_pbo")
    stamp("pb")
    if DEV: a("s_mov_b32 s98, s13")
    FOP = opt("fop", 0)
    if FOP in (0, 2): a(fost)
    a(f"""
    v_cvt_pk_bf16_f32 v{qp}, v{Dq}, v{Dq+1}
    v_cvt_pk_bf16_f32 v{qp+1}, v{Dq+2}, v{Dq+3}
    """)
    setexec(0xFF00FF0000FF00FF)
    a(f"ds_write_b64 v{vCW}, {vr(qp,2)}")
    setexec(-1)
    a(f"""
    s_waitcnt lgkmcnt(0)
    s_barrier
    ds_read_b128 {vr(cf,4)}, v{vCR}
    ds_read_b128 {vr(cf+4,4)}, v{vCR} offset:64
    """)
    if FOP == 1: a(fost)
    a(f"""
    v_mov_b32 v{t2}, {SCL}
    s_cmp_lg_u32 s3, {LW}
    s_cbranch_scc1 L_nolr
    s_mov_b32 s13, 0
    s_waitcnt vmcnt({0 if FOP == 3 else 1})
    s_branch L_lrc
    L_lrp:
    s_mov_b64 exec, vcc
    {lrl}
    s_mov_b64 exec, -1
    s_waitcnt vmcnt(0)
    L_lrc:
    s_add_u32 s13, s13, 1
    """)
    tagcheck(ml+2)
    spin_tail("L_lrp", "L_lro")
    a(f"v_mul_f32 v{t3}, v{t3}, v{ml}")
    red32("v_add_f32", t0, t3, t1)
    a(f"v_rcp_f32 v{t0}, v{t0}\ns_waitcnt lgkmcnt(0)\nds_write_b32 v{t2}, v{t0}\nL_nolr:")
    for ks in range(2):
        a(f"s_waitcnt lgkmcnt({1-ks})")
        for Td in range(2):
            a(f"v_mfma_f32_16x16x32_bf16 {vr(D2+4*Td,4)}, {vr(AUV+8*ks+4*Td,4)}, {vr(cf+4*ks,4)}, {'0' if ks == 0 else vr(D2+4*Td,4)}")
    for i in range(4): a(f"v_cvt_pk_bf16_f32 v{qp+i}, v{D2+2*i}, v{D2+2*i+1}")
    setexec(0x000F000F000F000F)
    a(f"ds_write_b128 v{vCT}, {vr(qp,4)} offset:{CP}")
    setexec(-1)
    if FOP == 3: a(fost)
    a("s_waitcnt lgkmcnt(0)\ns_barrier")
    stamp("cp", True)
    a(f"""
    ds_read_b128 {vr(qp,4)}, v{vMS} offset:{CP}
    ds_read_b128 {vr(qp+4,4)}, v{ones} offset:{CP}
    ds_read_b32 v{vSc}, v{t2}
    """)
    TO = [4, 0, 2, 1, 3]
    for ks in range(2):
        a(f"s_waitcnt lgkmcnt({2-ks})")
        for T in TO:
            a(f"v_mfma_f32_16x16x32_bf16 {vr(OUT+4*T,4)}, {vr(qp+4*ks,4)}, {vr(AO+8*T+4*ks,4)}, {'0' if ks == 0 else vr(OUT+4*T,4)}")
    R = OUT
    for T in TO:
        a(f"v_pk_add_f32 {vr(R+4*T,2)}, {vr(R+4*T,2)}, {vr(R+4*T+2,2)}")
    for T in TO:
        a(f"v_add_f32 v{R+4*T}, v{R+4*T}, v{R+4*T+1}")
    a(f"""
    v_mov_b32 v{R+17}, v{R+16}
    v_permlane32_swap_b32 v{R}, v{R+8}
    v_permlane32_swap_b32 v{R+4}, v{R+12}
    v_permlane32_swap_b32 v{R+16}, v{R+17}
    v_add_f32 v{R}, v{R}, v{R+8}
    v_add_f32 v{R+4}, v{R+4}, v{R+12}
    v_add_f32 v{R+16}, v{R+16}, v{R+17}
    s_waitcnt lgkmcnt(0)
    v_mov_b32 v{R+17}, v{R+16}
    v_permlane16_swap_b32 v{R}, v{R+4}
    v_add_f32 v{R}, v{R}, v{R+4}
    v_permlane16_swap_b32 v{R+16}, v{R+17}
    v_mul_f32 v{R}, v{vSc}, v{R}
    v_add_f32 v{R+16}, v{R+16}, v{R+17}
    global_store_dword v{vPC}, v{R}, s[40:41] sc1
    v_mul_f32 v{R+16}, v{vSc}, v{R+16}
    s_mov_b32 exec_hi, 0
    global_store_dword v{vPC}, v{R+16}, s[40:41] offset:256 sc1
    s_mov_b32 exec_hi, -1
    """)
    stamp("pc")
    a("s_branch L_fin")
    po_v = V.n
    role[0] = "A"
    CK = BIG; CV = BIG + 64; QB = BIG + 128
    V = VA(BIG + 192)
    MXR = QB; U = QB + 8; DP = QB + 24; DL = QB + 40; on4 = QB + 44
    DS = Dq
    ba = V(8); vPBs = V(4); vMLs = V(); vq = V(); vqw = V(2); vqr = V(2); vPr = V(); vPw = V(); vMw = V(); vMr = V(); vMRs = V()
    QP = V(8, 2)
    ml = pub
    CKV, QAS, PL, MX = 0, 131072, 147456, 151552
    EA = opt("ea", 4); CLR = opt("clr", 1)
    def pbclear():
        a(f"""
        s_lshl_b32 s12, s78, 3
        s_add_u32 s12, s12, s3
        s_lshl_b32 s12, s12, 17
        s_lshr_b32 s13, s79, 2
        s_lshl_b32 s13, s13, 14
        s_add_u32 s12, s12, s13
        s_and_b32 s13, s79, 3
        s_lshl_b32 s13, s13, 11
        s_add_u32 s12, s12, s13
        s_add_u32 s12, s12, {PB_OFF + 512}
        v_lshl_add_u32 v{t0}, v{vL}, 4, s12
        v_lshrrev_b32 v{t1}, 5, v{vL}
        v_lshl_add_u32 v{t0}, v{t1}, 9, v{t0}
        v_add_u32 v{t1}, 0x2000, v{t0}
        global_store_dwordx4 v{t0}, {vr(Dq,4)}, s[40:41] sc1
        global_store_dwordx4 v{t1}, {vr(Dq,4)}, s[40:41] sc1
        """)
    a("L_roleA:")
    if CLR == 0: pbclear()
    a(f"""
    s_lshl_b32 s8, s79, 17
    s_lshl_b32 s9, s3, 14
    s_add_u32 s8, s8, s9
    s_lshl_b32 s10, s78, 13                  ; rotation
    v_lshlrev_b32 v{t3}, 4, v{vL}
    """)
    for k in range(8): a(f"v_xor_b32 v{ba+k}, {32*k}, v{t3}")
    srd(48, 18, SZ['ckv'])
    def ckv_ld(jj):
        if jj % 4 == 0: a("s_add_u32 s11, s9, s10\ns_add_u32 s14, s8, s10\ns_mov_b32 m0, s11\ns_add_u32 s10, s10, 4096\ns_and_b32 s10, s10, 0x3fff")
        a(f"buffer_load_dwordx4 v{ba+(jj&7)}, s[48:51], s14 offen offset:{1024*(jj&3)}{nt('ckv')} lds")
    if o.get("apf"):
        a(f"""
        v_lshrrev_b32 v{t0}, 2, v{vL}
        v_and_b32 v{t1}, 1, v{t0}
        v_lshl_add_u32 v{t1}, v{vS}, 2, v{t1}
        v_and_b32 v{t2}, 3, v{vL}
        v_lshlrev_b32 v{t2}, 6, v{t2}
        v_lshl_add_u32 v{t1}, v{t1}, 13, v{t2}
        s_lshl_b32 s12, s78, 21
        s_lshl_b32 s13, s3, 18
        s_add_u32 s12, s12, s13
        s_lshl_b32 s13, s79, 8
        s_add_u32 s12, s12, s13
        s_add_u32 s12, s12, 16384
        v_add_u32 v{t1}, s12, v{t1}
        global_load_dword v254, v{t1}, s[22:23]{nt('pk')}
        s_barrier
        """)
    a("s_cmp_eq_u32 s3, 0\ns_cbranch_scc1 L_a1\ns_barrier\nL_a1:")
    if o.get("apf1"):
        a(f"""
        s_cmp_lt_u32 s3, 4
        s_cbranch_scc1 L_noapf
        v_lshrrev_b32 v{t0}, 2, v{vL}
        v_and_b32 v{t2}, 3, v{vL}
        v_lshlrev_b32 v{t2}, 6, v{t2}
        v_lshl_add_u32 v{t1}, v{t0}, 15, v{t2}
        s_lshl_b32 s12, s78, 21
        s_lshl_b32 s13, s15, 19
        s_add_u32 s12, s12, s13
        s_lshl_b32 s13, s79, 8
        s_add_u32 s12, s12, s13
        s_add_u32 s12, s12, 8192
        v_add_u32 v{t1}, s12, v{t1}
        global_load_dword v254, v{t1}, s[22:23]{nt('pk')}
        L_noapf:
        """)
        if EA: a("s_cmp_eq_u32 s3, 0\ns_cbranch_scc1 L_a1b\ns_waitcnt lgkmcnt(0)\nL_a1b:")
    for jj in range(EA): ckv_ld(jj)
    a("s_cmp_eq_u32 s3, 0\ns_cbranch_scc1 L_a2")
    gettag()
    stamp("c1")
    a("L_a2:\ns_barrier")
    stamp("c2")
    for jj in range(EA, 8): ckv_ld(jj)
    stamp("c2b")
    if CLR == 1: pbclear()
    QE = o.get("qe")
    if QE:
        a(f"""
        s_lshl_b32 s12, s78, 5
        s_lshr_b32 s13, s3, 2
        s_lshl_b32 s13, s13, 4
        s_add_u32 s12, s12, s13
        s_lshl_b32 s13, s15, 1
        s_add_u32 s12, s12, s13
        s_lshl_b32 s12, s12, 8
        s_add_u32 s12, s12, {FK_OFF}
        v_and_b32 v{t0}, 1, v{vL}
        v_lshl_add_u32 v{vWo}, v{t0}, 8, s12
        v_bfe_u32 v{t0}, v{vL}, 1, 1
        v_lshl_add_u32 v{vWo}, v{t0}, 11, v{vWo}
        global_load_dwordx2 {vr(QP,2)}, v{vWo}, s[40:41] sc1
        """)
    if not o.get("nocb"): a("s_barrier")
    stamp("c3")
    for jj in range(8, 16): ckv_ld(jj)
    stamp("c4")
    vt_issue(vWo, QP)
    if CLR == 2: pbclear()
    a(f"""
    v_lshl_add_u32 v{t0}, v{vN}, 10, s9
    v_lshlrev_b32 v{t1}, 1, v{vE}
    v_xor_b32 v{t1}, v{t1}, v{vG}             ; g ^ 2(i&7)
    """)
    for q in range(4):
        a(f"v_xor_b32 v{t2}, {4*q}, v{t1}\nv_lshl_add_u32 v{ba+q}, v{t2}, 4, v{t0}")
    a(f"""
    v_xor_b32 v{t0}, v{vN}, v{vG}
    v_lshlrev_b32 v{t1}, 8, v{vG}
    v_lshl_add_u32 v{vqr}, v{t0}, 4, v{t1}
    v_add_u32 v{vqr}, {QAS}, v{vqr}
    v_xor_b32 v{vqr+1}, 64, v{vqr}
    s_lshl_b32 s12, s78, 20
    s_lshr_b32 s13, s79, 2
    s_lshl_b32 s13, s13, 14
    s_add_u32 s12, s12, s13
    s_and_b32 s13, s79, 3
    s_lshl_b32 s13, s13, 11
    s_add_u32 s12, s12, s13
    s_lshl_b32 s13, s15, 7
    s_add_u32 s12, s12, s13
    s_lshr_b32 s13, s3, 2
    s_lshl_b32 s13, s13, 10
    s_add_u32 s12, s12, s13
    s_add_u32 s12, s12, {PB_OFF + 512}
    v_lshrrev_b32 v{t0}, 1, v{vG}
    v_lshl_add_u32 v{vPBs}, v{t0}, 19, s12
    v_and_b32 v{t0}, 1, v{vG}
    v_lshl_add_u32 v{vPBs}, v{t0}, 13, v{vPBs}
    s_xor_b32 s13, s38, 0x2000
    v_xor_b32 v{vPBs}, s13, v{vPBs}
    v_lshl_add_u32 v{vPBs}, v{vN}, 3, v{vPBs}
    v_add_u32 v{vPBs+1}, 0x20000, v{vPBs}
    v_add_u32 v{vPBs+2}, 0x40000, v{vPBs}
    v_add_u32 v{vPBs+3}, 0x60000, v{vPBs}
    v_lshlrev_b32 v{vPr}, 4, v{vL}
    v_add_u32 v{vPr}, {PL}, v{vPr}
    s_lshr_b32 s8, s3, 1
    s_lshl_b32 s8, s8, 10
    s_and_b32 s13, s3, 1
    s_lshl_b32 s13, s13, 3
    s_add_u32 s8, s8, s13
    v_add_u32 v{vPw}, s8, v{vPr}
    v_lshlrev_b32 v{vMr}, 5, v{vN}
    v_add_u32 v{vMr}, {MX}, v{vMr}
    s_lshl_b32 s8, s3, 2
    v_add_u32 v{vMw}, s8, v{vMr}
    s_lshl_b32 s10, s78, 15
    s_lshl_b32 s8, s79, 10
    s_add_u32 s10, s10, s8
    s_add_u32 s10, s10, {ML_OFF + 512}
    v_lshl_add_u32 v{vMLs}, v{vN}, 4, s10
    s_lshl_b32 s10, s78, 16
    s_lshr_b32 s8, s79, 3
    s_lshl_b32 s8, s8, 14
    s_add_u32 s10, s10, s8
    s_lshl_b32 s8, s4, 10
    s_add_u32 s10, s10, s8
    s_add_u32 s10, s10, {MR_OFF}
    v_and_b32 v{t0}, 3, v{vL}
    v_lshl_add_u32 v{vMRs}, v{t0}, 8, s10
    v_bfe_u32 v{t0}, v{vL}, 2, 1
    v_lshl_add_u32 v{vMRs}, v{t0}, 13, v{vMRs}
    v_xor_b32 v{vMRs}, s38, v{vMRs}
    v_lshl_add_u32 v{vMRs}, v{vS}, 4, v{vMRs}
    s_lshl_b32 s11, s78, 16
    s_lshr_b32 s12, s3, 1
    s_lshl_b32 s12, s12, 14
    s_add_u32 s11, s11, s12
    s_and_b32 s12, s3, 1
    s_lshl_b32 s12, s12, 12
    s_add_u32 s11, s11, s12
    s_and_b32 s12, s4, 3
    s_lshl_b32 s12, s12, 17
    s_add_u32 s11, s11, s12
    s_lshr_b32 s12, s4, 2
    s_lshl_b32 s12, s12, 13
    s_add_u32 s11, s11, s12
    s_xor_b32 s11, s11, s38
    s_add_u32 s11, s11, {QA_OFF + 512}
    v_lshl_add_u32 v{vq}, v{vL}, 4, s11
    v_lshrrev_b32 v{t0}, 5, v{vL}
    v_lshl_add_u32 v{vq}, v{t0}, 9, v{vq}
    s_lshl_b32 s8, s3, 1
    v_xor_b32 v{t0}, s8, v{vE}
    v_lshlrev_b32 v{t1}, 8, v{vL}
    v_lshl_add_u32 v{vqw}, v{t0}, 4, v{t1}
    v_add_u32 v{vqw}, {QAS}, v{vqw}
    v_xor_b32 v{vqw+1}, 16, v{vqw}
    s_cmp_eq_u32 s3, 3
    {"s_cselect_b64 s[42:43], -1, 0" if o.get("repm") else "s_cselect_b32 s42, 0xffff, 0" + chr(10) + "s_mov_b32 s43, 0"}
    """)
    qal = [f"global_load_dwordx4 {vr(QP+4*j,4)}, v{vq}, s[40:41] offset:{2048*j} sc1" for j in range(2)]
    a("s_waitcnt vmcnt(0) lgkmcnt(0)")
    stamp("ckvl", True)
    for t in range(16):
        a(f"ds_read_b128 {vr(CK+4*t,4)}, v{ba+(t&3)} offset:{256*(t>>2)}")
        if t == 11: a("s_waitcnt lgkmcnt(6)")
    vt_finish(vWo, QP, "L_va", [vq, vMRs, vPBs, vPBs+1, vPBs+2, vPBs+3])
    a(f"""
    v_lshrrev_b32 v{t0}, 2, v{vL}             ; 4g+r
    v_and_b32 v{t1}, 7, v{t0}                 ; key&7
    v_lshlrev_b32 v{t0}, 10, v{t0}
    v_and_b32 v{t2}, 3, v{vL}
    v_lshl_add_u32 v{t0}, v{t2}, 3, v{t0}
    s_lshr_b32 s8, s3, 1
    s_lshl_b32 s8, s8, 8
    v_add_u32 v{t0}, s8, v{t0}
    s_and_b32 s8, s3, 1
    s_lshl_b32 s8, s8, 2
    v_xor_b32 v{t1}, s8, v{t1}
    """)
    for T in range(4):
        a(f"v_xor_b32 v{t2}, {T}, v{t1}\nv_lshl_add_u32 v{ba+T}, v{t2}, 5, v{t0}\nv_add_u32 v{ba+4+T}, 0x10000, v{ba+T}")
    a("s_barrier")
    stamp("ckv")
    if not QE:
        for l in qal: a(l)
    for T in range(4):
        a("s_waitcnt lgkmcnt(4)")
        for t in range(4):
            for aa in range(2):
                off = (32*t + 16*aa) * 1024
                a(f"ds_read_b64_tr_b16 {vr(CV+16*T+4*t+2*aa,2)}, v{ba+T+4*(off>>16)} offset:{off & 0xffff}")
    a("s_mov_b32 s13, 0\ns_branch L_qac\nL_qap:")
    masked(qal)
    a("L_qac:\ns_add_u32 s13, s13, 1")
    for j in range(2):
        a(f"s_waitcnt vmcnt({1-j})")
        a(f"ds_write_b128 v{vqw+j}, {vr(QP+4*j,4)}")
        sent_mask(j, QP+4*j, t2)
    or_masks(2)
    spin_tail("L_qap", "L_qao")
    stamp("qap")
    a("s_waitcnt lgkmcnt(0)\ns_barrier")
    def qread(t): a(f"ds_read_b128 {vr(QB+4*t,4)}, v{vqr+(t&1)} offset:{1024*t}")
    PRE = 12
    for t in range(PRE): qread(t)
    for t in range(16):
        issued = min(16, PRE + t)
        a(f"s_waitcnt lgkmcnt({issued - t - 1})")
        a(f"v_mfma_f32_16x16x32_bf16 {vr(DS,4)}, {vr(CK+4*t,4)}, {vr(QB+4*t,4)}, {'0' if t == 0 else vr(DS,4)}")
        if t + PRE < 16: qread(t + PRE)
    stamp("scm")
    a(f"""
    v_max3_f32 v{t0}, v{DS}, v{DS+1}, v{DS+2}
    v_max_f32 v{t0}, v{t0}, v{DS+3}
    """)
    xrow("v_max_f32", t0, t1)
    a(f"""
    s_mov_b64 exec, 0xffff
    ds_write_b32 v{vMw}, v{t0}
    s_mov_b64 exec, -1
    v_mov_b32 v{on4}, 0x3f803f80
    v_mov_b32 v{on4+1}, 0x3f803f80
    v_mov_b32 v{on4+2}, 0x3f803f80
    v_mov_b32 v{on4+3}, 0x3f803f80
    s_waitcnt lgkmcnt(0)
    s_barrier
    ds_read_b128 {vr(MXR,4)}, v{vMr}
    ds_read_b128 {vr(MXR+4,4)}, v{vMr} offset:16
    """)
    a(f"""
    s_waitcnt lgkmcnt(1)
    v_max3_f32 v{t0}, v{MXR}, v{MXR+1}, v{MXR+2}
    s_waitcnt lgkmcnt(0)
    v_max3_f32 v{t1}, v{MXR+3}, v{MXR+4}, v{MXR+5}
    v_max3_f32 v{t0}, v{t0}, v{MXR+6}, v{MXR+7}
    v_max_f32 v{t0}, v{t0}, v{t1}
    v_ceil_f32 v{ml}, v{t0}
    """)
    mst = f"s_mov_b64 exec, s[42:43]\nglobal_store_dwordx4 v{vMRs if o.get('repm') else vMLs}, {vr(ml,4)}, s[40:41] sc1\ns_mov_b64 exec, -1"
    MP = opt("mp", 0)
    if MP == 0: a(mst)
    for r in range(4): a(f"v_sub_f32 v{DS+r}, v{DS+r}, v{ml}")
    for r in range(4): a(f"v_exp_f32 v{DS+r}, v{DS+r}")
    a(f"""
    v_cvt_pk_bf16_f32 v{DS}, v{DS}, v{DS+1}
    v_cvt_pk_bf16_f32 v{DS+1}, v{DS+2}, v{DS+3}
    ds_write_b64 v{vPw}, {vr(DS,2)}
    {mst if MP == 1 else ""}
    s_waitcnt lgkmcnt(0)
    s_barrier
    """)
    stamp("exp", True)
    for t in range(4): a(f"ds_read_b128 {vr(U+4*t,4)}, v{vPr} offset:{1024*t}")
    if MP == 2: a(mst)
    a("s_cmp_lg_u32 s3, 0\ns_cbranch_scc1 L_nol")
    for t in range(4):
        a(f"s_waitcnt lgkmcnt({3-t})")
        a(f"v_mfma_f32_16x16x32_bf16 {vr(DL,4)}, {vr(on4,4)}, {vr(U+4*t,4)}, {'0' if t == 0 else vr(DL,4)}")
    a("L_nol:")
    for t in range(4):
        a(f"s_waitcnt lgkmcnt({3-t})")
        for T in range(4):
            a(f"v_mfma_f32_16x16x32_bf16 {vr(DP+4*T,4)}, {vr(U+4*t,4)}, {vr(CV+16*T+4*t,4)}, {'0' if t == 0 else vr(DP+4*T,4)}")
        if MP == 3 + t: a(mst)
        if t == 1:
            a(f"""
            s_cmp_lg_u32 s3, 0
            s_cbranch_scc1 L_nol2
            v_mov_b32 v{ml}, v{DL}
            s_mov_b64 exec, 0xffff
            global_store_dwordx4 v{vMLs}, {vr(ml,4)}, s[40:41] offset:256 sc1
            s_mov_b64 exec, -1
            L_nol2:
            """)
    OB = CK
    for r in range(4): a(f"v_cvt_pk_bf16_f32 v{OB+2*r}, v{DP+r}, v{DP+4+r}")
    for r in range(4):
        a(f"v_cvt_pk_bf16_f32 v{OB+2*r+1}, v{DP+8+r}, v{DP+12+r}")
        a(f"global_store_dwordx2 v{vPBs+r}, {vr(OB+2*r,2)}, s[40:41] sc1")
    stamp("pbst")
    gx = CV; gg = CV + 6; vg = CV + 12; RB = CV + 16; RS = CV + 32; RC = CV + 48
    a(f"""
    s_lshr_b32 s8, s3, 1
    s_cmp_lg_u32 s8, 1
    s_cbranch_scc1 L_fin
    s_cmp_ge_u32 s69, 40
    s_cbranch_scc1 L_fin
    v_mul_u32_u24 v{t1}, 20, v{vL}
    global_load_dwordx4 {vr(gx,4)}, v{t1}, s[16:17]
    global_load_dword v{gx+4}, v{t1}, s[16:17] offset:16
    global_load_dwordx4 {vr(gg,4)}, v{t1}, s[34:35]
    global_load_dword v{gg+4}, v{t1}, s[34:35] offset:16
    s_lshr_b32 s8, s69, 3
    s_lshl_b32 s8, s8, 1
    s_and_b32 s9, s3, 1
    s_add_u32 s8, s8, s9
    s_mul_i32 s15, s4, 10
    s_add_u32 s15, s15, s8
    v_lshrrev_b32 v{t2}, 1, v{vL}
    v_and_b32 v{t0}, 3, v{t2}
    v_lshlrev_b32 v{t0}, 11, v{t0}
    v_lshl_add_u32 v{t0}, v{vS}, 14, v{t0}
    v_and_b32 v{t1}, 1, v{vL}
    v_lshl_add_u32 v{t0}, v{t1}, 4, v{t0}
    s_lshl_b32 s9, s8, 5
    """)
    segoff("s9", "s4", "s8")
    a(f"""
    s_add_u32 s9, s9, {PC_OFF}
    v_add_u32 v{ba}, s9, v{t0}
    v_add_u32 v{ba+1}, {32*ROWB}, v{ba}
    v_add_u32 v{ba+2}, {64*ROWB}, v{ba}
    v_add_u32 v{ba+3}, {96*ROWB}, v{ba}
    v_add_u32 v{vPBs}, {PF_OFF-PC_OFF}, v{ba}
    v_add_u32 v{vPBs+1}, {PF_OFF-PC_OFF}, v{ba+1}
    s_lshl_b32 s9, s15, 4
    v_lshl_add_u32 v{ba+4}, v{t1}, 3, s9
    v_lshl_add_u32 v{ba+4}, v{vG}, 1, v{ba+4}
    v_and_b32 v{ba+5}, 31, v{vL}
    v_lshlrev_b32 v{ba+5}, 8, v{ba+5}
    v_lshrrev_b32 v{t0}, 5, v{vL}
    v_lshl_add_u32 v{ba+5}, v{t0}, 14, v{ba+5}
    v_add_u32 v{ba+7}, {FK_OFF}, v{ba+5}
    s_and_b32 s9, s4, 3
    s_lshl_b32 s9, s9, 16
    s_lshr_b32 s8, s4, 2
    s_lshl_b32 s8, s8, 13
    s_add_u32 s9, s9, s8
    s_xor_b32 s9, s9, s38
    s_add_u32 s9, s9, {FR_OFF + 8}
    v_add_u32 v{ba+5}, {"s9" if o.get("repf") else FO_OFF}, v{ba+5}
    v_add_u32 v{ba+6}, 32768, v{ba+5}
    v_mov_b32 v{RB+4}, 0
    v_mov_b32 v{RB+5}, 0
    v_mov_b32 v{RB+6}, 0
    v_mov_b32 v{RB+7}, 0
    """)
    if opt("fop", 0) == 2: flag_wait(ba+7, RS, "L_f2")
    a(f"v_mov_b32 v{t3}, 0\ns_waitcnt vmcnt(0)")
    for i in range(5):
        a(f"""
        v_lshlrev_b32 v{t0}, 16, v{gx+i}
        v_lshlrev_b32 v{t1}, 16, v{gg+i}
        v_mul_f32 v{t0}, v{t0}, v{t1}
        v_and_b32 v{t1}, 0xffff0000, v{gx+i}
        v_and_b32 v{t2}, 0xffff0000, v{gg+i}
        v_mul_f32 v{t1}, v{t1}, v{t2}
        v_cvt_pk_bf16_f32 v{t0}, v{t0}, v{t1}
        v_lshlrev_b32 v{t1}, 16, v{t0}
        v_and_b32 v{t0}, 0xffff0000, v{t0}
        v_add_f32 v{t3}, v{t3}, v{t1}
        v_add_f32 v{t3}, v{t3}, v{t0}
        """)
    allred("v_add_f32", t3, t3, t0)
    rbf(t3, t3)
    a(f"""
    v_mul_f32 v{t3}, {NLOG2E}, v{t3}
    v_exp_f32 v{t3}, v{t3}
    v_add_f32 v{t3}, 1.0, v{t3}
    v_rcp_f32 v{t3}, v{t3}
    """)
    rbf(vg, t3)
    a(f"v_sub_f32 v{vg+1}, 1.0, v{vg}")
    rbf(vg+1, vg+1)
    a(f"""
    s_mov_b32 s13, 0
    s_mov_b64 {MK[0]}, -1
    s_mov_b64 {MK[1]}, -1
    L_frp:
    """)
    masked([f"global_load_dwordx2 {vr(RS,2)}, v{ba+5}, s[40:41] sc1", f"global_load_dwordx2 {vr(RS+2,2)}, v{ba+6}, s[40:41] sc1"])
    a(f"""
    s_add_u32 s13, s13, 1
    s_waitcnt vmcnt(0)
    v_cmp_ne_u64 {MK[0]}, {TAG}, {vr(RS,2)}
    v_cmp_ne_u64 {MK[1]}, {TAG}, {vr(RS+2,2)}
    """)
    or_masks(2)
    spin_tail("L_frp", "L_fro")
    stamp("fo")
    pcl = [f"global_load_dwordx4 {vr(RB+4*j,4)}, v{vPBs+j}, s[40:41] sc1" for j in range(2)] + [f"global_load_dwordx4 {vr(RC+4*j,4)}, v{ba+j}, s[40:41] sc1" for j in range(4)]
    regs = [RB, RB+4, RC, RC+4, RC+8, RC+12]
    a(pcl[0])
    a(f"s_mov_b32 exec_hi, 0xfff\n{pcl[1]}\ns_mov_b32 exec_hi, -1")
    for l in pcl[2:]: a(l)
    a("s_mov_b32 s13, 0\ns_branch L_pcc\nL_pcp:")
    if opt("psl", 0): a(f"s_sleep {opt('psl', 0)}")
    masked(pcl)
    a("L_pcc:\ns_add_u32 s13, s13, 1")
    for j in range(6):
        a(f"s_waitcnt vmcnt({5-j})")
        sent_mask(j, regs[j], t2)
        if j == 1:
            for r in range(4): a(f"v_add_f32 v{RB+8+r}, v{RB+r}, v{RB+4+r}")
            for r in range(4): a(f"v_mul_f32 v{RB+8+r}, v{vg+1}, v{RB+8+r}")
    or_masks(6)
    spin_tail("L_pcp", "L_pco")
    if o.get("cnt"): a("s_mov_b32 s82, s13")
    stamp("pc")
    RB = RB + 8
    R = RC
    for r in range(0, 4, 2): a(f"v_pk_add_f32 {vr(R+r,2)}, {vr(R+r,2)}, {vr(R+4+r,2)}\nv_pk_add_f32 {vr(R+8+r,2)}, {vr(R+8+r,2)}, {vr(R+12+r,2)}")
    for r in range(0, 4, 2): a(f"v_pk_add_f32 {vr(R+r,2)}, {vr(R+r,2)}, {vr(R+8+r,2)}")
    for r in range(4): a(f"v_fmac_f32 v{RB+r}, v{vg}, v{RC+r}")
    R = RB
    a(f"""
    v_permlane32_swap_b32 v{R}, v{R+2}
    v_permlane32_swap_b32 v{R+1}, v{R+3}
    v_add_f32 v{R}, v{R}, v{R+2}
    v_add_f32 v{R+1}, v{R+1}, v{R+3}
    v_permlane16_swap_b32 v{R}, v{R+1}
    v_add_f32 v{R}, v{R}, v{R+1}
    v_add_f32_dpp v{R}, v{R}, v{R} row_ror:8 {DPPM}
    v_add_f32_dpp v{R}, v{R}, v{R} row_ror:4 {DPPM}
    v_add_f32_dpp v{R}, v{R}, v{R} row_ror:2 {DPPM}
    v_cvt_pk_bf16_f32 v{R}, v{R}, v{R}
    """)
    setexec(0x0003000300030003)
    a(f"global_store_short v{ba+4}, v{R}, s[36:37]{' sc1' if o.get('osc') else ''}")
    a(f"""
    s_cmp_lg_u32 s15, 0
    s_cbranch_scc1 L_noep
    s_mov_b64 exec, 1
    v_mov_b32 v{t0}, {EP_OFF}
    global_store_dwordx2 v{t0}, {vr(pub+2,2)}, s[40:41]{' sc1' if (o.get('osc') or o.get('esc')) else ''}
    L_noep:
    """)
    setexec(-1)
    stamp("out")
    a("L_fin:")
    if probe:
        prole, _, amp = probe; idx = 1
        a(f"""
        s_waitcnt lgkmcnt(0)
        s_cmp_eq_u32 s{80+2*idx}, 0
        s_cbranch_scc1 L_end
        s_sub_u32 s8, s{80+2*idx}, s80
        s_mul_i32 s8, s8, {amp}
        s_min_u32 s8, s8, {opt("fix", 100000)}
        L_probe:
        s_sleep 2
        s_memrealtime s[10:11]
        s_waitcnt lgkmcnt(0)
        s_sub_u32 s10, s10, s80
        s_cmp_lt_u32 s10, s8
        s_cbranch_scc1 L_probe
        """)
    if DEV:
        a(f"""
        s_waitcnt vmcnt(0)
        s_memrealtime s[100:101]
        s_waitcnt lgkmcnt(0)
        s_lshl_b32 s7, s2, 3
        s_add_u32 s7, s7, s3
        s_mul_i32 s7, s7, {NST*4}
        s_add_u32 s7, s7, {STAMP_OFF}
        s_mov_b64 exec, 1
        v_mov_b32 v3, s7
        """)
        for i in range(NST):
            a(f"v_mov_b32 v4, s{80+2*i}\nglobal_store_dword v3, v4, s[40:41] offset:{4*i}")
    a("L_end:\ns_endpgm")
    a(".fill 3600, 4, 0xbf800000")
    lines = hazard.fix(a.lines)
    nv = max(po_v, V.n, BIGEND, k_v)
    if DEV:
        for r_ in want: lines.insert(0, f"; STAMPS {r_} start " + " ".join(want[r_] + ["-"] * (NST - 2 - len(want[r_]))) + " end")
    return single("\n".join(lines) + "\n", 256, 512, 152064, vgpr=256, sgpr=102, accum=256), nv

if __name__ == "__main__":
    out = sys.argv[1]
    DEV = "dev" in sys.argv[2:]
    txt, nv = build(DEV, {k: True for k in sys.argv[2:]})
    open(out, "w").write(txt)
    print("vgprs", nv)
```
